```python
import torch

def _softmax(x, axis=-1):
    return torch.softmax(x, dim=axis)
def _gelu(x):
    return torch.nn.functional.gelu(x, approximate="tanh")
def _silu(x):
    return torch.nn.functional.silu(x)
def _sigmoid(x):
    return torch.sigmoid(x)
def _layernorm(x, axis=-1, eps=1e-5):
    m = x.mean(dim=axis, keepdim=True)
    v = x.var(dim=axis, keepdim=True, unbiased=False)
    return (x - m) / torch.sqrt(v + eps)
def _scatter_add(tgt, idx, src, axis=0):
    return tgt.clone().index_add_(axis, idx, src)
def _segment_sum(src, seg, n):
    out = torch.zeros((n,) + src.shape[1:], dtype=src.dtype)
    return out.index_add_(0, seg, src)
def _pad(x, pw):
    flat = tuple(v for pair in reversed(pw) for v in pair)
    return torch.nn.functional.pad(x, flat)

kernel_name = 'recurrent_scan__sliding_block__dense_activation_squared_relu__prompt'

def setup_inputs():

    _w = (lambda a: (lambda t: t.to(torch.bfloat16) if t.is_floating_point() else t)(torch.as_tensor(a)))
    def _A_setup():
        B, S, D = 1, 2048, 640
        return {
            "x": _w((lambda *s: torch.randn(*s, dtype=torch.bfloat16) * 0.05)(B, S, D)),
            "wqkv": _w((lambda *s: torch.randn(*s, dtype=torch.bfloat16) * 0.05)(D, 3 * D)),
            "wo": _w((lambda *s: torch.randn(*s, dtype=torch.bfloat16) * 0.05)(D, D)),
        }
    _A_in = _A_setup()

    def _B_setup():
        B, S, D, F = 1, 2048, 640, 1536
        return {
            "x": _w((lambda *s: torch.randn(*s, dtype=torch.bfloat16) * 0.05)(B, S, D)),
            "w1": _w((lambda *s: torch.randn(*s, dtype=torch.bfloat16) * 0.05)(D, F)),
            "b1": _w((lambda *s: torch.randn(*s, dtype=torch.bfloat16) * 0.4)(F)),
            "w2": _w((lambda *s: torch.randn(*s, dtype=torch.bfloat16) * 0.05)(F, D)),
            "b2": _w((lambda *s: torch.randn(*s, dtype=torch.bfloat16) * 0.8)(D)),
        }
    _B_in = _B_setup()

    return {
        "A_x": _A_in["x"],
        "A_wqkv": _A_in["wqkv"],
        "A_wo": _A_in["wo"],
        "B_x": _B_in["x"],
        "B_w1": _B_in["w1"],
        "B_b1": _B_in["b1"],
        "B_w2": _B_in["w2"],
        "B_b2": _B_in["b2"],
    }

def reference(A_x, A_wqkv, A_wo, B_x, B_w1, B_b1, B_w2, B_b2):
    def _A_ref(x, wqkv, wo):
        B, S, D = x.shape
        H = 32; Dh = D // H; W = 256
        qkv = (lambda x, *d: x.permute(*d))((x @ wqkv).reshape(B, S, 3, H, Dh), 2, 0, 3, 1, 4)
        q, k, v = qkv[0], qkv[1], qkv[2]
        scores = torch.einsum("bhqd,bhkd->bhqk", q, k) * (Dh ** -0.5)
        idx = torch.arange(S)
        mask = (idx[:, None] - idx[None, :] >= 0) & (idx[:, None] - idx[None, :] < W)
        scores = torch.where(mask[None, None], scores, -1e9)
        p = _softmax(scores, axis=-1)
        o = torch.einsum("bhqk,bhkd->bhqd", p, v)
        return (lambda x, *d: x.permute(*d))(o, 0, 2, 1, 3).reshape(B, S, D) @ wo

    def _B_ref(x, w1, b1, w2, b2):
        h = torch.einsum("bsd,df->bsf", x, w1) + b1
        zero = torch.zeros_like(h)
        r = torch.where(h > zero, h, zero)
        h = r * r
        out = torch.einsum("bsf,fd->bsd", h, w2) + b2
        return out

    x = A_x
    xn = _layernorm(x, axis=-1)
    s = _A_ref(xn, A_wqkv, A_wo)
    g = _silu(_B_ref(xn, B_w1, B_b1, B_w2, B_b2))
    return x + s * g
```

```python
class Asm:
    def __init__(self):
        self.lines=[]
        self.vm=[]
        self.lg=[]
        self.uid=0
    def __call__(self, s):
        self.lines.append("    "+s)
    def label(self, s): self.lines.append(s+":")
    def comment(self,s): self.lines.append("    ; "+s)
    def raw(self,s): self.lines.append(s)
    def newlabel(self,p="L"):
        self.uid+=1; return f"{p}_{self.uid}"
    def vmem(self, s, tag=None):
        self(s); self.vm.append(tag); return tag
    def lds(self, s, tag=None):
        self(s); self.lg.append(tag); return tag
    def wait_vm(self, tag):
        idx=[i for i,t in enumerate(self.vm) if t==tag]
        if not idx: return
        n=len(self.vm)-1-idx[-1]
        assert n<=63, n
        self(f"s_waitcnt vmcnt({n})"); self.vm=self.vm[idx[-1]+1:]
    def wait_lg(self, tag):
        idx=[i for i,t in enumerate(self.lg) if t==tag]
        if not idx: return
        n=len(self.lg)-1-idx[-1]
        assert n<=15, n
        self(f"s_waitcnt lgkmcnt({n})"); self.lg=self.lg[idx[-1]+1:]
    def wait_vm_all(self):
        self("s_waitcnt vmcnt(0)"); self.vm=[]
    def wait_lg_all(self):
        self("s_waitcnt lgkmcnt(0)"); self.lg=[]
    def wait_all(self):
        self("s_waitcnt vmcnt(0) lgkmcnt(0)"); self.vm=[]; self.lg=[]
    def text(self): return "\n".join(self.lines)+"\n"

def srd(a, d, lo, hi, size, off=0):
    if off:
        a(f"s_add_u32 s{d}, s{lo}, 0x{off:x}")
        a(f"s_addc_u32 s{d+1}, s{hi}, 0")
        a(f"s_and_b32 s{d+1}, s{d+1}, 0xffff")
    else:
        a(f"s_mov_b32 s{d}, s{lo}")
        a(f"s_and_b32 s{d+1}, s{hi}, 0xffff")
    a(f"s_mov_b32 s{d+2}, 0x{size:x}")
    a(f"s_mov_b32 s{d+3}, 0x00020000")

def kdesc(name, vgpr, accum, sgpr=102):
    return f""".amdhsa_kernel {name}
  .amdhsa_next_free_vgpr {vgpr}
  .amdhsa_next_free_sgpr {sgpr}
  .amdhsa_accum_offset {accum}
  .amdhsa_group_segment_fixed_size 0
  .amdhsa_kernarg_size 88
  .amdhsa_user_sgpr_count 2
  .amdhsa_user_sgpr_kernarg_segment_ptr 1
  .amdhsa_system_sgpr_workgroup_id_x 1
.end_amdhsa_kernel
"""
```

```python
from asmlib import *
QH=0x0000000; KH=0x0400000; VT=0x0800000; VTP=4224; HF=0x0C00000
W2F=0x1400000; WOF=0x1600000; OF=0x1800000; GB=0x1C00000
QSCALE = (20.0**-0.5)*1.4426950408889634
import struct
def fbits(x): return struct.unpack("<I",struct.pack("<f",x))[0]

XS=40960; WR=81920; MISC=147456; ST=MISC; CSA=MISC+1024
WF=0; CS=160; BB=176; XA=192; XD=200; SO=210; E=214; T=222; P=230; SR=238
vS1=242; vS2=243; vRS=244; vMR=245; vSTA=246; vSA=247; vSA2=248; vLANE=249; vTMP=250; vTMP2=251; vTRB=252; vTRB2=253; vWD=254; vONE=255
ACC=[0,16]; XF=32

def gen_k1(a):
    a.label("k1_kernel")
    a("s_cmp_ge_u32 s2, 256"); a("s_cbranch_scc1 K1_END")
    a("s_load_dwordx4 s[4:7], s[0:1], 0")
    a("s_load_dwordx2 s[20:21], s[0:1], 16")
    a("s_load_dwordx4 s[24:27], s[0:1], 32")
    a("s_load_dwordx2 s[28:29], s[0:1], 48")
    a("s_load_dwordx2 s[30:31], s[0:1], 80")
    a("s_and_b32 s32, s2, 7")
    a("s_lshr_b32 s33, s2, 3")
    a("s_lshr_b32 s34, s32, 1")
    a("s_and_b32 s35, s32, 1")
    a("s_lshr_b32 s36, s33, 2")
    a("s_and_b32 s37, s33, 3")
    a("s_mul_i32 s38, s34, 7"); a("s_add_u32 s38, s38, s36")
    a("s_lshl_b32 s39, s35, 5"); a("s_lshl_b32 s40, s37, 3"); a("s_add_u32 s39, s39, s40")
    a(f"v_and_b32 v{vLANE}, 63, v0")
    a("v_lshrrev_b32 v1, 6, v0"); a("s_nop 0"); a("v_readfirstlane_b32 s41, v1")
    a("s_waitcnt lgkmcnt(0)")
    a("s_cmp_ge_u32 s36, 7"); a("s_cbranch_scc1 K1_HELP")
    a("s_cmp_ge_u32 s38, 27"); a("s_cbranch_scc1 K1_HELP")
    srd(a,12,4,5,2048*1280)
    srd(a,16,30,31,0x2000000)
    a("s_cmp_lt_u32 s38, 15"); a("s_cbranch_scc0 K1_W1")
    srd(a,8,6,7,640*3840); a("s_mov_b32 s42, 3840"); a("s_lshl_b32 s43, s38, 8"); a("s_branch K1_WD")
    a.label("K1_W1")
    srd(a,8,24,25,640*3072); a("s_mov_b32 s42, 3072"); a("s_sub_u32 s43, s38, 15"); a("s_lshl_b32 s43, s43, 8")
    a.label("K1_WD")
    L=vLANE
    a(f"v_lshrrev_b32 v1, 4, v{L}")
    a(f"v_bfe_u32 v2, v{L}, 2, 2")
    a("v_xor_b32 v2, v2, v1")
    a(f"v_and_b32 v3, 3, v{L}")
    a("v_lshl_or_b32 v2, v2, 2, v3")
    a("v_lshlrev_b32 v2, 4, v2")
    a("v_mul_lo_u32 v1, v1, s42")
    a(f"v_add_u32 v{vWD}, v1, v2")
    a("s_lshl_b32 s44, s41, 4"); a("s_mul_i32 s44, s44, s42"); a("s_add_u32 s44, s44, s43")
    a("s_lshl_b32 s45, s41, 12"); a(f"s_add_u32 s45, s45, {WR}")
    a("s_lshl_b32 s46, s42, 2")
    a("s_lshl_b32 s47, s42, 6")
    a("s_mul_i32 s48, s41, 640")
    for i in range(10):
        a(f"v_add_u32 v1, s48, v{L}")
        if i: a(f"v_add_u32 v1, {64*i}, v1")
        a("v_mul_u32_u24 v2, 52429, v1"); a("v_lshrrev_b32 v2, 22, v2")
        a("v_mul_u32_u24 v3, 80, v2"); a("v_sub_u32 v3, v1, v3")
        a("v_and_b32 v4, 15, v2"); a("v_xor_b32 v3, v3, v4")
        a("v_mul_u32_u24 v2, 1280, v2"); a(f"v_lshl_add_u32 v{XD+i}, v3, 4, v2")
    a("s_mul_i32 s49, s39, 40960")
    a("s_mul_i32 s50, s41, 10240")
    def dma_w(c):
        slot=c%4
        for i in range(4):
            a(f"s_add_u32 s51, s45, {slot*16384+i*1024}"); a("s_mov_b32 m0, s51")
            a(f"s_mul_i32 s52, s47, {c}"); a("s_add_u32 s52, s52, s44")
            if i: a(f"s_mul_i32 s53, s46, {i}"); a("s_add_u32 s52, s52, s53")
            a.vmem(f"buffer_load_dwordx4 v{vWD}, s[8:11], s52 offen lds", f"W{c}")
    def dma_x(sl_sgpr, soff, tag):
        for i in range(10):
            a(f"s_add_u32 m0, s{sl_sgpr}, {i*1024}"); a("s_nop 0")
            a.vmem(f"buffer_load_dwordx4 v{XD+i}, s[12:15], s{soff} offen lds", tag)
    dma_w(0); dma_w(1)
    dma_x(50,49,"X0")
    dma_w(2); dma_w(3)
    a(f"s_add_u32 s54, s50, {XS}"); a("s_add_u32 s55, s49, 40960")
    dma_x(54,55,"X1")
    a(f"v_bfe_u32 v1, v{L}, 2, 2")
    a(f"v_lshrrev_b32 v2, 5, v{L}")
    a("v_lshl_add_u32 v2, v2, 3, v1"); a("v_lshlrev_b32 v2, 8, v2")
    a("v_xor_b32 v1, s41, v1"); a("v_lshl_add_u32 v2, v1, 6, v2")
    a(f"v_bfe_u32 v1, v{L}, 4, 1"); a("v_lshl_add_u32 v2, v1, 5, v2")
    a(f"v_and_b32 v1, 3, v{L}"); a("v_lshl_add_u32 v2, v1, 3, v2")
    a(f"v_add_u32 v{vTRB}, {WR}, v2")
    a(f"v_and_b32 v1, 31, v{L}"); a(f"v_lshrrev_b32 v2, 5, v{L}"); a("v_and_b32 v3, 15, v1"); a("v_mul_u32_u24 v4, 1280, v1")
    for j in range(8):
        a(f"v_add_u32 v5, {2*j}, v2"); a("v_xor_b32 v5, v5, v3"); a(f"v_lshl_add_u32 v{XA+j}, v5, 4, v4")
    a(f"v_lshrrev_b32 v1, 3, v{L}"); a("s_lshl_b32 s51, s41, 3"); a("v_add_u32 v1, s51, v1")
    a(f"v_and_b32 v2, 7, v{L}"); a("v_and_b32 v3, 15, v1"); a("v_mul_u32_u24 v4, 1280, v1")
    a("v_xor_b32 v5, v2, v3"); a(f"v_lshl_add_u32 v{vSA}, v5, 4, v4")
    a("v_add_u32 v5, 8, v2"); a("v_xor_b32 v5, v5, v3"); a(f"v_lshl_add_u32 v{vSA2}, v5, 4, v4")
    a(f"v_lshlrev_b32 v{vSTA}, 2, v1"); a(f"v_add_u32 v{vSTA}, {ST}, v{vSTA}")
    a(f"v_mov_b32 v{vONE}, 0x3f803f80")
    a(f"v_mov_b32 v{vS1}, 0")
    for c in range(10):
        a.wait_vm(f"W{c}")
        if c==0: pass
        a("s_barrier")
        if c>=1 and c+3<10: dma_w(c+3)
        for sp in range(4):
            for rd in range(2):
                r=WF+16*c+4*sp+2*rd
                a.lds(f"ds_read_b64_tr_b16 v[{r}:{r+1}], v{vTRB} offset:{(c%4)*16384+sp*4096+rd*1024}","tr")
        if c>=1:
            for r in range(16): a(f"v_dot2c_f32_bf16 v{vS1}, v{vONE}, v{WF+16*(c-1)+r}")
        a.wait_lg_all()
    for r in range(16): a(f"v_dot2c_f32_bf16 v{vS1}, v{vONE}, v{WF+144+r}")
    a("s_nop 2"); a(f"v_mov_b32 v230, v{vS1}"); a("s_nop 1"); a(f"v_permlane32_swap_b32 v{vS1}, v230"); a("s_nop 1")
    a(f"v_add_f32 v{CS}, v{vS1}, v230")
    a.wait_vm("X0")
    a(f"v_and_b32 v230, 31, v{L}"); a("v_lshlrev_b32 v230, 2, v230"); a("s_lshl_b32 s51, s41, 7"); a(f"s_add_u32 s51, s51, {CSA}")
    a("v_add_u32 v230, s51, v230"); a(f"ds_write_b32 v230, v{CS}")
    a(f"v_lshrrev_b32 v231, 5, v{L}"); a("v_lshlrev_b32 v231, 4, v231"); a(f"v_add_u32 v{vTMP}, s51, v231")
    a("s_waitcnt lgkmcnt(0)")
    a("s_barrier")
    a("s_cmp_lt_u32 s38, 10"); a("s_cbranch_scc1 K1_QK")
    a("s_cmp_lt_u32 s38, 15"); a("s_cbranch_scc1 K1_V")
    for typ in ("H","QK","V"):
        a.label(f"K1_{typ}")
        gen_type(a,typ,dma_x)
    gen_help(a)
    a.label("K1_END")
    a("s_endpgm")

def gen_type(a,typ,dma_x):
    L=vLANE
    a.vm=["X1"]*10; a.lg=[]
    if typ!="V":
        for q in range(4):
            a(f"ds_read_b128 v[{CS+4*q}:{CS+4*q+3}], v{vTMP} offset:{32*q}")
    a(f"v_and_b32 v230, 31, v{L}"); a(f"v_lshrrev_b32 v231, 5, v{L}")
    if typ=="QK":
        a("s_cmp_lt_u32 s38, 5"); a(f"s_cselect_b32 s56, 0, {KH}"); a("s_cselect_b32 s57, 0, 5")
        a(f"s_cselect_b32 s62, 0x{fbits(QSCALE):x}, 0x3f800000")
        a("s_sub_u32 s57, s38, s57"); a("s_lshl_b32 s57, s57, 7"); a("s_lshl_b32 s58, s41, 5"); a("s_add_u32 s57, s57, s58")
        a("v_mul_u32_u24 v232, 40, v230")
        for q in range(4):
            a(f"v_lshl_add_u32 v233, v231, 2, s57");
            if q: a(f"v_add_u32 v233, {8*q}, v233")
            a("v_mul_u32_u24 v234, 3277, v233"); a("v_lshrrev_b32 v234, 16, v234")
            a("v_mul_u32_u24 v234, 81880, v234"); a("v_lshl_add_u32 v234, v233, 1, v234"); a(f"v_add_u32 v{SO+q}, v234, v232")
        a("s_mul_i32 s59, s39, 1280"); a("s_add_u32 s59, s59, s56")
        a("s_movk_i32 s60, 1280")
    elif typ=="H":
        srd(a,64,26,27,1536*2)
        a("s_sub_u32 s57, s38, 15"); a("s_lshl_b32 s57, s57, 2"); a("s_add_u32 s57, s57, s41")
        a("s_lshl_b32 s58, s57, 6")
        a("v_lshl_add_u32 v232, v231, 3, s58")
        for q in range(4):
            a(f"buffer_load_dwordx2 v[{E+2*q}:{E+2*q+1}], v232, s[64:67], 0 offen offset:{16*q}")
        a("v_lshrrev_b32 v232, 4, v230"); a("v_mul_u32_u24 v232, 49152, v232"); a("v_and_b32 v233, 15, v230")
        a("v_lshl_add_u32 v232, v233, 4, v232"); a(f"v_lshl_add_u32 v{SO}, v231, 8, v232")
        a("s_mul_i32 s59, s39, 98304"); a("s_lshl_b32 s58, s57, 10"); a("s_add_u32 s59, s59, s58"); a(f"s_add_u32 s59, s59, {HF}")
        a("s_mov_b32 s60, 98304")
        a("s_waitcnt vmcnt(0)")
        for q in range(4):
            for j in range(2):
                a(f"v_lshlrev_b32 v{BB+4*q+2*j}, 16, v{E+2*q+j}"); a(f"v_and_b32 v{BB+4*q+2*j+1}, 0xffff0000, v{E+2*q+j}")
        a.vm=[]
    else:
        a("s_sub_u32 s57, s38, 10"); a("s_lshl_b32 s57, s57, 7"); a("s_lshl_b32 s58, s41, 5"); a("s_add_u32 s57, s57, s58")
        a(f"v_mul_u32_u24 v232, {VTP}, v230"); a(f"v_lshl_add_u32 v{SO}, v231, 4, v232")
        a(f"s_mul_i32 s59, s57, {VTP}"); a("s_lshl_b32 s58, s39, 6"); a("s_add_u32 s59, s59, s58"); a(f"s_add_u32 s59, s59, {VT}")
        a("s_movk_i32 s60, 64")
    a("s_waitcnt lgkmcnt(0)")
    if typ=="V": a(f"v_lshlrev_b32 v{vTMP}, 4, v231"); a(f"v_add_u32 v{vTMP}, {ST}, v{vTMP}")
    else: a(f"v_lshlrev_b32 v{vTMP}, 2, v230"); a(f"v_add_u32 v{vTMP}, {ST}, v{vTMP}")
    a("s_mov_b32 s61, 0x7f000000")
    a("s_add_u32 s68, s49, 81920")
    a("s_mov_b32 s69, 0"); a("s_mov_b32 s70, 0")
    a("s_mov_b32 s71, 0x3acccccd")
    a(f"s_mov_b32 s75, {-2*XS & 0xffffffff}"); a(f"s_mov_b32 s76, {XS}")
    a("s_mov_b32 s72, 0x3727c5ac")
    LA=6
    def xread(s):
        a.lds(f"ds_read_b128 a[{XF+4*(s%8)}:{XF+4*(s%8)+3}], v{XA+(s%8)} offset:{((s%40)>>3)*256}", f"x{s%8}")
    for s in range(LA): xread(s)
    nst = 4 if typ=="QK" else 2
    lab=f"K1_LOOP_{typ}"
    a.label(lab)
    def stats_fill(par):
        f=[]
        f.append(lambda: (a(f"v_mov_b32 v{vS1}, 0"), a(f"v_mov_b32 v{vS2}, 0")))
        for i in range(10):
            def rd(i=i):
                a.lds(f"ds_read_b128 v[{SR}:{SR+3}], v{vSA2 if i&1 else vSA} offset:{(i>>1)*256}","sr")
            def cmp(i=i):
                a.wait_lg("sr")
                for r in range(4):
                    a(f"v_dot2c_f32_bf16 v{vS1}, v{vONE}, v{SR+r}"); a(f"v_dot2c_f32_bf16 v{vS2}, v{SR+r}, v{SR+r}")
            f.append(rd); f.append(None); f.append(cmp)
        def red(ctrl):
            def g():
                a("s_nop 2")
                a(f"v_add_f32_dpp v{vS1}, v{vS1}, v{vS1} {ctrl} row_mask:0xf bank_mask:0xf")
                a(f"v_add_f32_dpp v{vS2}, v{vS2}, v{vS2} {ctrl} row_mask:0xf bank_mask:0xf")
            return g
        f.append(red("quad_perm:[1,0,3,2]")); f.append(red("quad_perm:[2,3,0,1]")); f.append(red("row_half_mirror"))
        def fin():
            a(f"v_mul_f32 v{vS1}, s71, v{vS1}")
            a(f"v_mul_f32 v{vS2}, s71, v{vS2}")
            a(f"v_fma_f32 v{vS2}, -v{vS1}, v{vS1}, v{vS2}")
            a(f"v_add_f32 v{vS2}, s72, v{vS2}")
            a(f"v_rsq_f32 v{vS2}, v{vS2}")
            a("s_nop 0")
            a(f"v_mul_f32 v{vS1}, v{vS1}, v{vS2}")
            a.lds(f"ds_write_b32 v{vSTA}, v{vS2} offset:{par*256}","sw")
            a.lds(f"ds_write_b32 v{vSTA}, v{vS1} offset:{par*256+128}","sw")
        f.append(fin)
        return f
    def epi_fill(par):
        f=[]; acc=ACC[par]
        if typ!="V":
            def rd():
                a.lds(f"ds_read2_b32 v[{vRS}:{vMR}], v{vTMP} offset0:{par*64} offset1:{par*64+32}","st")
            f.append(rd); f.append(None)
            def w():
                a.wait_lg("st")
                if typ=="QK": a(f"v_mul_f32 v{vRS}, s62, v{vRS}"); a(f"v_mul_f32 v{vMR}, s62, v{vMR}")
            f.append(w)
            for q in range(4):
                for i in range(4):
                    k=4*q+i
                    def el(k=k,i=i):
                        a(f"v_accvgpr_read_b32 v{E+i}, a{acc+k}")
                        if typ=="H":
                            a(f"v_fma_f32 v{T+i}, -v{vMR}, v{CS+k}, v{BB+k}")
                            a(f"v_fmac_f32 v{T+i}, v{E+i}, v{vRS}")
                            a(f"v_max_f32 v{T+i}, 0, v{T+i}"); a(f"v_mul_f32 v{T+i}, v{T+i}, v{T+i}")
                        else:
                            a(f"v_mul_f32 v{T+i}, v{vMR}, v{CS+k}")
                            a(f"v_fma_f32 v{T+i}, v{E+i}, v{vRS}, -v{T+i}")
                    f.append(el)
                def pk(q=q):
                    a(f"v_cvt_pk_bf16_f32 v{P+2*q}, v{T}, v{T+1}"); a(f"v_cvt_pk_bf16_f32 v{P+2*q+1}, v{T+2}, v{T+3}")
                    if typ=="QK":
                        a(f"buffer_store_dwordx2 v[{P+2*q}:{P+2*q+1}], v{SO+q}, s[16:19], s61 offen")
                    elif q&1:
                        b=P+2*(q-1)
                        a("s_nop 1"); a(f"v_permlane32_swap_b32 v{b}, v{b+2}"); a(f"v_permlane32_swap_b32 v{b+1}, v{b+3}")
                        a(f"buffer_store_dwordx4 v[{b}:{b+3}], v{SO}, s[16:19], s61 offen offset:{512*(q>>1)}")
                f.append(pk)
        else:
            for q in range(4):
                def rd(q=q):
                    a.lds(f"ds_read_b128 v[{E+4}:{E+7}], v{vTMP} offset:{par*256+32*q}","st")
                    a.lds(f"ds_read_b128 v[{T+4}:{T+7}], v{vTMP} offset:{par*256+128+32*q}","st")
                f.append(rd); f.append(None)
                def el(q=q):
                    a.wait_lg("st")
                    for i in range(4):
                        a(f"v_accvgpr_read_b32 v{E+i}, a{acc+4*q+i}")
                        a(f"v_mul_f32 v{T+i}, v{T+4+i}, v{CS}")
                        a(f"v_fma_f32 v{T+i}, v{E+i}, v{E+4+i}, -v{T+i}")
                    a(f"v_cvt_pk_bf16_f32 v{P+2*q}, v{T}, v{T+1}"); a(f"v_cvt_pk_bf16_f32 v{P+2*q+1}, v{T+2}, v{T+3}")
                    if q&1:
                        b=P+2*(q-1)
                        a("s_nop 1"); a(f"v_permlane32_swap_b32 v{b}, v{b+2}"); a(f"v_permlane32_swap_b32 v{b+1}, v{b+3}")
                        a(f"buffer_store_dwordx4 v[{b}:{b+3}], v{SO}, s[16:19], s61 offen offset:{32*(q>>1)}")
                f.append(el)
        return f
    for par in range(2):
        acc=ACC[par]
        sf=stats_fill(par); ef=epi_fill(par^1)
        sched=[[] for _ in range(40)]
        for i,fn in enumerate(sf): sched[min(39,(i*30)//len(sf))].append(fn)
        for i,fn in enumerate(ef): sched[3+(i*28)//len(ef)].append(fn)
        a("s_barrier")
        a("s_add_u32 s73, s69, 2"); a("s_cmp_ge_u32 s73, 3"); a("s_cbranch_scc0 %s_a%d"%(lab,par)); a("s_sub_u32 s73, s73, 3"); a.label("%s_a%d"%(lab,par))
        a(f"s_mul_i32 s73, s73, {XS}"); a("s_add_u32 s73, s73, s50")
        dma_x(73,68,"XD")
        a("s_add_u32 s68, s68, 40960")
        a("s_add_u32 s69, s69, 1"); a("s_cmp_ge_u32 s69, 3"); a("s_cselect_b32 s74, s75, s76"); a("s_cselect_b32 s69, 0, s69")
        for s in range(40):
            if s==32:
                a(f"s_waitcnt vmcnt({10+nst}) lgkmcnt(0)"); a.lg=[]
                a("s_barrier")
            a.wait_lg(f"x{s%8}")
            c = "0" if s==0 else f"a[{acc}:{acc+15}]"
            wf=f"v[{WF+4*s}:{WF+4*s+3}]"; xf=f"a[{XF+4*(s%8)}:{XF+4*(s%8)+3}]"
            if typ=="V": a(f"v_mfma_f32_32x32x16_bf16 a[{acc}:{acc+15}], {xf}, {wf}, {c}")
            else: a(f"v_mfma_f32_32x32x16_bf16 a[{acc}:{acc+15}], {wf}, {xf}, {c}")
            if s+LA==40:
                for j in range(8): a(f"v_add_u32 v{XA+j}, s74, v{XA+j}")
            xread(s+LA)
            for fn in sched[s]:
                if fn: fn()
            if s==31:
                a(f"v_add_u32 v{vSA}, s74, v{vSA}"); a(f"v_add_u32 v{vSA2}, s74, v{vSA2}")
        if par==0:
            a("s_cmp_eq_u32 s70, 0"); a("s_cselect_b32 s61, s59, s61"); a("s_cbranch_scc1 %s_b"%lab); a("s_add_u32 s61, s61, s60"); a.label("%s_b"%lab)
        else:
            a("s_add_u32 s61, s61, s60")
    a("s_add_u32 s70, s70, 1"); a("s_cmp_lt_u32 s70, 4"); a(f"s_cbranch_scc1 {lab}")
    a("s_waitcnt lgkmcnt(0)"); a.lg=[]
    a("s_barrier")
    a("s_nop 7"); a("s_nop 7")
    for fn in epi_fill(1):
        if fn: fn()
    a("s_endpgm")

def gen_help(a):
    L=vLANE
    a.label("K1_HELP")
    a("s_cmp_ge_u32 s32, 6"); a("s_cbranch_scc1 K1_H2")
    a("s_lshl_b32 s40, s32, 2"); a("s_add_u32 s40, s40, s33"); a("s_sub_u32 s40, s40, 28"); a("s_branch K1_H3")
    a.label("K1_H2")
    a("s_sub_u32 s40, s32, 6"); a("s_lshl_b32 s40, s40, 3"); a("s_add_u32 s40, s40, s33")
    a.label("K1_H3")
    a("s_lshl_b32 s40, s40, 2"); a("s_add_u32 s40, s40, s41")
    srd(a,16,30,31,0x2000000)
    a(f"v_lshrrev_b32 v1, 4, v{L}"); a("v_mul_u32_u24 v1, 10240, v1"); a(f"v_and_b32 v2, 15, v{L}"); a("v_lshl_add_u32 v1, v2, 1, v1")
    a("v_add_u32 v2, 5120, v1"); a(f"v_lshlrev_b32 v3, 4, v{L}")
    for (lo,hi,nk,dst,n) in ((28,29,1536,W2F,12),(20,21,640,WOF,5)):
        srd(a,8,lo,hi,nk*1280)
        for g0 in range(0,n,6):
            gs=list(range(g0,min(n,g0+6)))
            for t,it in enumerate(gs):
                a(f"s_add_u32 s{44+t}, s40, {160*it}")
                a(f"s_mul_i32 s51, s{44+t}, 1639"); a("s_lshr_b32 s51, s51, 16")
                a("s_mul_i32 s52, s51, 40"); a(f"s_sub_u32 s52, s{44+t}, s52")
                a("s_mul_i32 s51, s51, 40960"); a("s_lshl_b32 s52, s52, 5"); a("s_add_u32 s51, s51, s52")
                for j in range(8):
                    a(f"buffer_load_ushort v{40+8*t+j}, v{1 if j<4 else 2}, s[8:11], s51 offen offset:{(j&3)*1280}")
            a("s_waitcnt vmcnt(0)")
            for t,it in enumerate(gs):
                for j in range(4): a(f"v_lshl_or_b32 v{8+4*t+j}, v{40+8*t+2*j+1}, 16, v{40+8*t+2*j}")
                a(f"s_lshl_b32 s51, s{44+t}, 10"); a(f"s_add_u32 s51, s51, {dst}")
                a(f"buffer_store_dwordx4 v[{8+4*t}:{8+4*t+3}], v3, s[16:19], s51 offen")
            a("s_nop 1")
```

```python
from asmlib import *
from k1 import QH,KH,VT,VTP,HF,W2F,WOF,OF,GB
KF=0; VF=72; S=144; Q=216; O=232
vKO=240; vVO=241; vVO1=242; vQO=243; vOO=244; vOO1=245; vNEG=246; vM=247; vT=248; vT2=249; vBP=250; vL=251

def attn_body(a, s_m, s_h, pfx, sc1=""):
    L=vL
    a(f"v_and_b32 v151, 15, v{L}"); a(f"v_lshrrev_b32 v152, 4, v{L}")
    a("v_lshrrev_b32 v153, 2, v151"); a("v_and_b32 v154, 3, v151"); a("v_lshl_add_u32 v153, v153, 3, v154")
    a(f"s_lshl_b32 s72, s{s_h}, 11"); a(f"s_lshl_b32 s73, s{s_m}, 6"); a("s_add_u32 s72, s72, s73")
    a("s_mul_i32 s74, s72, 40")
    a("v_mul_u32_u24 v153, 40, v153"); a("v_lshl_add_u32 v153, v152, 4, v153"); a(f"v_add_u32 v{vKO}, s74, v153")
    a("v_mul_u32_u24 v153, 40, v151"); a("v_lshl_add_u32 v153, v152, 4, v153"); a(f"v_add_u32 v{vQO}, s74, v153")
    a(f"s_mul_i32 s75, s{s_h}, 20"); a("v_add_u32 v153, s75, v151"); a(f"v_mul_u32_u24 v153, {VTP}, v153")
    a("v_lshl_add_u32 v153, v152, 4, v153"); a("s_lshl_b32 s76, s73, 1"); a(f"v_add_u32 v{vVO}, s76, v153")
    a(f"v_add_u32 v{vVO1}, {16*VTP}, v{vVO}")
    def ldK(g):
        sl=g%9
        a(f"s_movk_i32 s77, {1280*g}")
        for ab in range(2):
            a.vmem(f"buffer_load_dwordx4 v[{KF+8*sl+4*ab}:{KF+8*sl+4*ab+3}], v{vKO}, s[8:11], s77 offen offset:{160*ab}",f"K{g}")
    def ldV(g):
        sl=g%9
        a.vmem(f"buffer_load_dwordx4 v[{VF+8*sl}:{VF+8*sl+3}], v{vVO}, s[12:15], 0 offen offset:{64*g}",f"V{g}")
        a("s_mov_b64 exec, s[78:79]")
        a.vmem(f"buffer_load_dwordx4 v[{VF+8*sl+4}:{VF+8*sl+7}], v{vVO1}, s[12:15], 0 offen offset:{64*g}",f"V{g}")
        a("s_mov_b64 exec, -1")
    a("v_cmp_gt_u32 s[78:79], 4, v151")
    for qb in range(4):
        a.vmem(f"buffer_load_dwordx4 v[{Q+4*qb}:{Q+4*qb+3}], v{vQO}, s[16:19], 0 offen offset:{640*qb}","Q")
    for g in range(9): ldK(g)
    a("v_cmp_eq_u32 vcc, 4, v151"); a("v_mov_b32 v153, 0x3f803f80"); a("s_nop 0"); a("v_cndmask_b32 v153, 0, v153, vcc")
    for sl in range(9):
        for r in range(4): a(f"v_mov_b32 v{VF+8*sl+4+r}, v153")
    for g in range(9): ldV(g)
    a("v_lshlrev_b32 v153, 3, v152")
    for par in range(2):
        for k in range(8):
            a(f"v_add_u32 v154, {k-16*par}, v153")
            a(f"v_cmp_le_i32 s[{40+2*(8*par+k)}:{41+2*(8*par+k)}], v154, v151")
    a(f"v_mov_b32 v{vNEG}, 0xf149f2ca")
    a("v_lshl_add_u32 v153, v152, 2, s75")
    a("v_lshrrev_b32 v154, 5, v153"); a("v_lshlrev_b32 v154, 10, v154"); a("v_lshl_add_u32 v154, v151, 4, v154")
    a("v_bfe_u32 v155, v153, 3, 2"); a("v_lshl_add_u32 v154, v155, 8, v154"); a("v_and_b32 v155, 4, v153"); a(f"v_lshl_add_u32 v{vOO}, v155, 1, v154")
    a("s_add_u32 s80, s75, 16"); a("s_lshr_b32 s81, s80, 5"); a("s_lshl_b32 s81, s81, 10"); a("s_bfe_u32 s82, s80, 0x20003"); a("s_lshl_b32 s82, s82, 8")
    a("s_add_u32 s81, s81, s82"); a("s_and_b32 s82, s80, 4"); a("s_lshl_b32 s82, s82, 1"); a("s_add_u32 s81, s81, s82")
    a(f"v_lshl_add_u32 v{vOO1}, v151, 4, s81")
    a(f"v_add_u32 v{vBP}, 16, v151"); a(f"v_lshlrev_b32 v{vBP}, 2, v{vBP}")
    a(f"s_mul_i32 s83, s{s_m}, 81920"); a(f"s_add_u32 s83, s83, {OF}")
    a("v_cmp_gt_u32 s[84:85], 3, v152"); a("v_cmp_gt_u32 s[86:87], 2, v152"); a("v_cmp_eq_u32 s[88:89], 0, v152")
    a.wait_vm("Q")
    for qb in range(4):
        for r in range(4): a(f"v_cndmask_b32 v{Q+4*qb+r}, 0, v{Q+4*qb+r}, s[{84 if r<2 else 86}:{85 if r<2 else 87}]")
    a(f"s_lshl_b32 s90, s{s_m}, 1"); a("s_sub_i32 s90, 8, s90"); a("s_max_i32 s90, s90, 0")
    def zeroV(g):
        lab=a.newlabel(pfx+"zv"); sl=g%9
        a(f"s_cmp_gt_u32 s90, {g}"); a(f"s_cbranch_scc0 {lab}")
        for r in range(4): a(f"v_mov_b32 v{VF+8*sl+r}, 0");
        a("s_mov_b64 exec, s[78:79]")
        for r in range(4): a(f"v_mov_b32 v{VF+8*sl+4+r}, 0")
        a("s_mov_b64 exec, -1")
        a.label(lab)
    for qb in range(4):
        g0=qb>>1; par=qb&1
        for gr in range(9):
            g=g0+gr; sl=g%9
            a.wait_vm(f"K{g}")
            for ab in range(2):
                a(f"v_mfma_f32_16x16x32_bf16 v[{S+8*gr+4*ab}:{S+8*gr+4*ab+3}], v[{KF+8*sl+4*ab}:{KF+8*sl+4*ab+3}], v[{Q+4*qb}:{Q+4*qb+3}], 0")
        if qb==1: ldK(9)
        a("s_nop 7")
        for k in range(8):
            m=f"s[{40+2*(8*par+k)}:{41+2*(8*par+k)}]"
            a(f"v_cndmask_b32 v{S+k}, v{S+k}, v{vNEG}, {m}")
            a(f"v_cndmask_b32 v{S+64+k}, v{vNEG}, v{S+64+k}, {m}")
        for gr in range(8):
            g=g0+gr
            if g<8:
                lab=a.newlabel(pfx+"inv")
                a(f"s_cmp_gt_u32 s90, {g}"); a(f"s_cbranch_scc0 {lab}")
                for k in range(8): a(f"v_mov_b32 v{S+8*gr+k}, v{vNEG}")
                a.label(lab)
        a(f"v_max3_f32 v{vM}, v{S}, v{S+1}, v{S+2}")
        for k in range(3,71,2): a(f"v_max3_f32 v{vM}, v{vM}, v{S+k}, v{S+k+1}")
        a(f"v_max_f32 v{vM}, v{vM}, v{S+71}")
        a(f"v_mov_b32 v{vT}, v{vM}"); a("s_nop 1"); a(f"v_permlane32_swap_b32 v{vM}, v{vT}"); a("s_nop 1"); a(f"v_max_f32 v{vM}, v{vM}, v{vT}")
        a(f"v_mov_b32 v{vT}, v{vM}"); a("s_nop 1"); a(f"v_permlane16_swap_b32 v{vM}, v{vT}"); a("s_nop 1"); a(f"v_max_f32 v{vM}, v{vM}, v{vT}")
        for gr in range(9):
            g=g0+gr; sl=g%9; b=S+8*gr
            for k in range(8): a(f"v_sub_f32 v{b+k}, v{b+k}, v{vM}")
            for k in range(8): a(f"v_exp_f32 v{b+k}, v{b+k}")
            a("s_nop 0")
            for k in range(4): a(f"v_cvt_pk_bf16_f32 v{b+k}, v{b+2*k}, v{b+2*k+1}")
            a.wait_vm(f"V{g}")
            if qb in (0,) and g<8: zeroV(g)
            a("s_nop 1")
            for dt in range(2):
                c = "0" if gr==0 else f"v[{O+4*dt}:{O+4*dt+3}]"
                a(f"v_mfma_f32_16x16x32_bf16 v[{O+4*dt}:{O+4*dt+3}], v[{VF+8*sl+4*dt}:{VF+8*sl+4*dt+3}], v[{b}:{b+3}], {c}")
        if qb==1: ldV(9)
        a("s_nop 7")
        a(f"ds_bpermute_b32 v{vT}, v{vBP}, v{O+4}")
        a("s_waitcnt lgkmcnt(0)")
        a(f"v_rcp_f32 v{vT}, v{vT}"); a("s_nop 0")
        for k in range(8): a(f"v_mul_f32 v{O+k}, v{O+k}, v{vT}")
        for k in range(4): a(f"v_cvt_pk_bf16_f32 v{O+k}, v{O+2*k}, v{O+2*k+1}")
        a(f"s_add_u32 s91, s83, {20480*qb}")
        a.vmem(f"buffer_store_dwordx2 v[{O}:{O+1}], v{vOO}, s[16:19], s91 offen {sc1}","st")
        a("s_mov_b64 exec, s[88:89]")
        a.vmem(f"buffer_store_dwordx2 v[{O+2}:{O+3}], v{vOO1}, s[16:19], s91 offen {sc1}","st")
        a("s_mov_b64 exec, -1")
        a("s_nop 1")

def attn_srds(a, wslo, wshi):
    srd(a,8,wslo,wshi,2621440+10240,KH-10240)
    srd(a,12,wslo,wshi,640*VTP+512,VT-512)
    srd(a,16,wslo,wshi,0x2000000)

def gen_k2(a):
    a.label("k2_kernel")
    a("s_cmp_ge_u32 s2, 256"); a("s_cbranch_scc1 K2_END")
    a("s_load_dwordx2 s[30:31], s[0:1], 80")
    a(f"v_and_b32 v{vL}, 63, v0"); a("v_lshrrev_b32 v1, 6, v0"); a("s_nop 0"); a("v_readfirstlane_b32 s36, v1")
    a("s_and_b32 s34, s2, 7"); a("s_lshl_b32 s34, s34, 2"); a("s_lshr_b32 s35, s2, 6"); a("s_add_u32 s34, s34, s35"); a("s_bfe_u32 s35, s2, 0x30003"); a("s_lshl_b32 s35, s35, 2"); a("s_add_u32 s35, s35, s36")
    a("s_waitcnt lgkmcnt(0)")
    attn_srds(a,30,31)
    attn_body(a,34,35,"K2")
    a.label("K2_END")
    a("s_endpgm")
```

```python
from asmlib import *
from k1 import QH,KH,VT,VTP,HF,W2F,WOF,OF,GB
ACC=0
FR=80
G=188
vA=208; vW=209; vL=210; vX=211; vRW=212; vRR=213; vRR2=214; TT=216
def gemm_part(a, nk, sA, sW, strideA_kg, tag, sc1=""):
    def ld(k):
        b=FR+36*(k%3)
        for t in range(4):
            a(f"s_add_u32 s60, s{sA}, {t*strideA_kg+k*1024}")
            a.vmem(f"buffer_load_dwordx4 v[{b+4*t}:{b+4*t+3}], v{vA}, s[16:19], s60 offen {sc1}",f"{tag}{k}")
        a(f"s_add_u32 s60, s{sW}, {k*40960}")
        for j in range(5):
            if j==4:
                a.vmem(f"buffer_load_dwordx4 v[{b+16+4*j}:{b+16+4*j+3}], v{vW}, s[16:19], s60 offen",f"{tag}{k}")
            else:
                a.vmem(f"buffer_load_dwordx4 v[{b+16+4*j}:{b+16+4*j+3}], v{vA}, s[16:19], s60 offen offset:{1024*j}",f"{tag}{k}")
    return ld
def mm(a,k,first):
    b=FR+36*(k%3)
    for t in range(4):
        for j in range(5):
            d=ACC+4*(5*t+j)
            c="0" if first else f"v[{d}:{d+3}]"
            a(f"v_mfma_f32_16x16x32_bf16 v[{d}:{d+3}], v[{b+16+4*j}:{b+16+4*j+3}], v[{b+4*t}:{b+4*t+3}], {c}")
def reduce(a, dst):
    a("s_nop 7")
    for t in range(4):
        for j in range(5):
            d=ACC+4*(5*t+j)
            a.lds(f"ds_write_b128 v{vRW}, v[{d}:{d+3}] offset:{(t*5+j)*1024}","rw")
    a.wait_lg_all(); a("s_barrier")
    for w in range(4):
        for j in range(5):
            r = dst+4*j if w==0 else ACC+20*w+4*j
            a.lds(f"ds_read_b128 v[{r}:{r+3}], v{vRR if w<2 else vRR2} offset:{(w&1)*20480+j*1024}","rr")
    a.wait_lg_all()
    for w in range(1,4):
        for k in range(20): a(f"v_add_f32 v{dst+k}, v{dst+k}, v{ACC+20*w+k}")
    a("s_barrier")

def gen_k3(a):
    a.label("k3_kernel")
    a("s_cmp_ge_u32 s2, 256"); a("s_cbranch_scc1 K3_END")
    a("s_load_dwordx2 s[4:5], s[0:1], 0")
    a("s_load_dwordx4 s[24:27], s[0:1], 56")
    a("s_load_dwordx2 s[30:31], s[0:1], 80")
    a(f"v_and_b32 v{vL}, 63, v0"); a("v_lshrrev_b32 v1, 6, v0"); a("s_nop 0"); a("v_readfirstlane_b32 s36, v1")
    a("s_and_b32 s34, s2, 7"); a("s_lshl_b32 s34, s34, 2"); a("s_lshr_b32 s35, s2, 6"); a("s_add_u32 s34, s34, s35"); a("s_bfe_u32 s35, s2, 0x30003")
    a("s_waitcnt lgkmcnt(0)")
    srd(a,16,30,31,0x2000000); srd(a,8,4,5,2048*1280); srd(a,12,26,27,2048*1280); srd(a,20,24,25,1280)
    body_k3(a)
    a.label("K3_END")
    a("s_endpgm")

def body_k3(a, mid=None, sc1=""):
    a(f"v_lshlrev_b32 v{vA}, 4, v{vL}"); a(f"v_add_u32 v{vW}, 4096, v{vA}")
    a("s_mul_i32 s37, s36, 20480"); a(f"v_add_u32 v{vRW}, s37, v{vA}")
    a("s_mul_i32 s37, s36, 5120"); a(f"v_add_u32 v{vRR}, s37, v{vA}"); a(f"v_add_u32 v{vRR2}, 40960, v{vRR}")
    a("s_mul_i32 s40, s34, 196608"); a("s_mul_i32 s37, s36, 12288"); a("s_add_u32 s40, s40, s37"); a(f"s_add_u32 s40, s40, {HF}")
    a("s_mul_i32 s41, s36, 491520"); a("s_mul_i32 s37, s35, 5120"); a("s_add_u32 s41, s41, s37"); a(f"s_add_u32 s41, s41, {W2F}")
    a("s_mul_i32 s42, s34, 81920"); a("s_mul_i32 s37, s36, 5120"); a("s_add_u32 s42, s42, s37"); a(f"s_add_u32 s42, s42, {OF}")
    a("s_mul_i32 s43, s36, 204800"); a("s_mul_i32 s37, s35, 5120"); a("s_add_u32 s43, s43, s37"); a(f"s_add_u32 s43, s43, {WOF}")
    ld=gemm_part(a,12,40,41,49152,"F")
    ld(0); ld(1)
    a(f"v_and_b32 v1, 15, v{vL}"); a(f"v_lshrrev_b32 v2, 4, v{vL}")
    a("s_lshl_b32 s37, s34, 6"); a("s_lshl_b32 s38, s36, 4"); a("s_add_u32 s37, s37, s38"); a("v_add_u32 v1, s37, v1"); a("v_mul_u32_u24 v1, 1280, v1")
    a("s_mul_i32 s38, s35, 160"); a("v_lshlrev_b32 v2, 3, v2"); a("v_add_u32 v2, s38, v2"); a(f"v_add_u32 v{vX}, v1, v2")
    a(f"v_mov_b32 v{TT+30}, v2")
    for k in range(12):
        if k+2<12: ld(k+2)
        a.wait_vm(f"F{k}")
        mm(a,k,k==0)
    reduce(a,G)
    for j in range(5): a.vmem(f"buffer_load_dwordx2 v[{TT+2*j}:{TT+2*j+1}], v{TT+30}, s[20:23], 0 offen offset:{32*j}","b2")
    for j in range(5): a.vmem(f"buffer_load_dwordx2 v[{TT+10+2*j}:{TT+10+2*j+1}], v{vX}, s[8:11], 0 offen offset:{32*j}","xr")
    if mid: mid()
    ld2=gemm_part(a,5,42,43,20480,"O",sc1)
    ld2(0); ld2(1)
    a.wait_vm("b2")
    a("s_mov_b32 s44, 0xbfb8aa3b")
    for j in range(5):
        for h in range(2):
            a(f"v_lshlrev_b32 v{TT+20}, 16, v{TT+2*j+h}"); a(f"v_and_b32 v{TT+21}, 0xffff0000, v{TT+2*j+h}")
            for e in range(2):
                r=G+4*j+2*h+e
                a(f"v_add_f32 v{r}, v{r}, v{TT+20+e}")
                a(f"v_mul_f32 v{TT+22+e}, s44, v{r}"); a(f"v_exp_f32 v{TT+22+e}, v{TT+22+e}"); a("s_nop 0")
                a(f"v_add_f32 v{TT+22+e}, 1.0, v{TT+22+e}"); a(f"v_rcp_f32 v{TT+22+e}, v{TT+22+e}"); a("s_nop 0")
                a(f"v_mul_f32 v{r}, v{r}, v{TT+22+e}")
    for k in range(5):
        if k+2<5: ld2(k+2)
        a.wait_vm(f"O{k}")
        mm(a,k,k==0)
    R=FR
    reduce(a,R)
    for j in range(5):
        for h in range(2):
            a(f"v_lshlrev_b32 v{TT+20}, 16, v{TT+10+2*j+h}"); a(f"v_and_b32 v{TT+21}, 0xffff0000, v{TT+10+2*j+h}")
            for e in range(2):
                a(f"v_fma_f32 v{TT+20+e}, v{R+4*j+2*h+e}, v{G+4*j+2*h+e}, v{TT+20+e}")
            a(f"v_cvt_pk_bf16_f32 v{TT+24+h}, v{TT+20}, v{TT+21}")
        a(f"buffer_store_dwordx2 v[{TT+24}:{TT+25}], v{vX}, s[12:15], 0 offen offset:{32*j}")
        a("s_nop 1")
```

```python
import sys
from asmlib import *
import k1,k2,k3
hdr=open('recurrent_scan__sliding_block__dense_activation_squared_relu__prompt.s.ref').read().split("; Override")[0]
out=hdr
out+="; @launch kernel=k1_kernel grid=(256,1,1) block=(256,1,1) lds=163840\n"
out+="; @launch kernel=k2_kernel grid=(256,1,1) block=(256,1,1) lds=0\n"
out+="; @launch kernel=k3_kernel grid=(256,1,1) block=(256,1,1) lds=81920\n"
out+='.amdgcn_target "amdgcn-amd-amdhsa--gfx950"\n.text\n'
for name,fn in (("k1_kernel",k1.gen_k1),("k2_kernel",k2.gen_k2),("k3_kernel",k3.gen_k3)):
    a=Asm(); fn(a)
    out+=f".globl {name}\n.p2align 8\n.type {name},@function\n"+a.text()
out+='.section .rodata,"a"\n.p2align 6\n'
out+=kdesc("k1_kernel",320,256)+".p2align 6\n"+kdesc("k2_kernel",256,256)+".p2align 6\n"+kdesc("k3_kernel",256,256)
open('recurrent_scan__sliding_block__dense_activation_squared_relu__prompt.s','w').write(out)
```

```python
class Asm:
    def __init__(self):
        self.lines=[]
        self.vm=[]
        self.lg=[]
        self.uid=0
    def __call__(self, s):
        self.lines.append("    "+s)
    def label(self, s): self.lines.append(s+":")
    def comment(self,s): self.lines.append("    ; "+s)
    def raw(self,s): self.lines.append(s)
    def newlabel(self,p="L"):
        self.uid+=1; return f"{p}_{self.uid}"
    def vmem(self, s, tag=None):
        self(s); self.vm.append(tag); return tag
    def lds(self, s, tag=None):
        self(s); self.lg.append(tag); return tag
    def wait_vm(self, tag):
        idx=[i for i,t in enumerate(self.vm) if t==tag]
        if not idx: return
        n=len(self.vm)-1-idx[-1]
        assert n<=63, n
        self(f"s_waitcnt vmcnt({n})"); self.vm=self.vm[idx[-1]+1:]
    def wait_lg(self, tag):
        idx=[i for i,t in enumerate(self.lg) if t==tag]
        if not idx: return
        n=len(self.lg)-1-idx[-1]
        assert n<=15, n
        self(f"s_waitcnt lgkmcnt({n})"); self.lg=self.lg[idx[-1]+1:]
    def wait_vm_all(self):
        self("s_waitcnt vmcnt(0)"); self.vm=[]
    def wait_lg_all(self):
        self("s_waitcnt lgkmcnt(0)"); self.lg=[]
    def wait_all(self):
        self("s_waitcnt vmcnt(0) lgkmcnt(0)"); self.vm=[]; self.lg=[]
    def text(self): return "\n".join(self.lines)+"\n"

def srd(a, d, lo, hi, size, off=0):
    if off:
        a(f"s_add_u32 s{d}, s{lo}, 0x{off:x}")
        a(f"s_addc_u32 s{d+1}, s{hi}, 0")
        a(f"s_and_b32 s{d+1}, s{d+1}, 0xffff")
    else:
        a(f"s_mov_b32 s{d}, s{lo}")
        a(f"s_and_b32 s{d+1}, s{hi}, 0xffff")
    a(f"s_mov_b32 s{d+2}, 0x{size:x}")
    a(f"s_mov_b32 s{d+3}, 0x00020000")

def kdesc(name, vgpr, accum, sgpr=102):
    return f""".amdhsa_kernel {name}
  .amdhsa_next_free_vgpr {vgpr}
  .amdhsa_next_free_sgpr {sgpr}
  .amdhsa_accum_offset {accum}
  .amdhsa_group_segment_fixed_size 0
  .amdhsa_kernarg_size 88
  .amdhsa_user_sgpr_count 2
  .amdhsa_user_sgpr_kernarg_segment_ptr 1
  .amdhsa_system_sgpr_workgroup_id_x 1
.end_amdhsa_kernel
"""

import os
STAMP=int(os.environ.get("STAMP","0"))
def stamp(a,i):
    if not STAMP: return
    a("s_memtime s[100:101]"); a("s_waitcnt lgkmcnt(0)"); a(f"s_mov_b32 s{84+i}, s100")
def stamp_out(a,n,wg,dbgslot,vt=1):
    if not STAMP: return
    lab=a.newlabel("STO")
    a(f"s_cmp_eq_u32 s2, {wg}"); a(f"s_cbranch_scc0 {lab}")
    a("s_load_dwordx2 s[100:101], s[0:1], 72"); a("s_waitcnt lgkmcnt(0)")
    for i in range(n):
        a(f"v_mov_b32 v{vt}, s{84+i}"); a(f"v_mov_b32 v{vt+1}, {4*(dbgslot+i)}")
        a(f"global_store_dword v{vt+1}, v{vt}, s[100:101]"); a("s_nop 1")
    a.label(lab)
```

```python
from asmlib import *
QH=0x0000000; KH=0x0400000; VT=0x0800000; VTP=4224; HF=0x0C00000
W2F=0x1400000; WOF=0x1600000; OF=0x1800000; GB=0x1C00000
QSCALE = (20.0**-0.5)*1.4426950408889634
import struct
def fbits(x): return struct.unpack("<I",struct.pack("<f",x))[0]

XS=40960; WR=81920; MISC=147456; ST=MISC; CSA=MISC+1024
WF=0; CS=160; BB=176; XA=192; XD=200; SO=210; E=214; T=222; P=230; SR=238
vS1=242; vS2=243; vRS=244; vMR=245; vSTA=246; vSA=247; vSA2=248; vLANE=249; vTMP=250; vTMP2=251; vTRB=252; vTRB2=253; vWD=254; vONE=255
ACC=[0,16]; XF=32

def gen_k1(a):
    a.label("k1_kernel")
    a("s_cmp_ge_u32 s2, 256"); a("s_cbranch_scc1 K1_END")
    stamp(a,0)
    a("s_load_dwordx4 s[4:7], s[0:1], 0")
    a("s_load_dwordx2 s[20:21], s[0:1], 16")
    a("s_load_dwordx4 s[24:27], s[0:1], 32")
    a("s_load_dwordx2 s[28:29], s[0:1], 48")
    a("s_load_dwordx2 s[30:31], s[0:1], 80")
    a("s_and_b32 s32, s2, 7")
    a("s_lshr_b32 s33, s2, 3")
    a("s_lshr_b32 s34, s32, 1")
    a("s_and_b32 s35, s32, 1")
    a("s_lshr_b32 s36, s33, 2")
    a("s_and_b32 s37, s33, 3")
    a("s_mul_i32 s38, s34, 7"); a("s_add_u32 s38, s38, s36")
    a("s_lshl_b32 s39, s35, 5"); a("s_lshl_b32 s40, s37, 3"); a("s_add_u32 s39, s39, s40")
    a(f"v_and_b32 v{vLANE}, 63, v0")
    a("v_lshrrev_b32 v1, 6, v0"); a("s_nop 0"); a("v_readfirstlane_b32 s41, v1")
    a("s_waitcnt lgkmcnt(0)")
    a("s_cmp_ge_u32 s36, 7"); a("s_cbranch_scc1 K1_HELP")
    a("s_cmp_ge_u32 s38, 27"); a("s_cbranch_scc1 K1_HELP")
    srd(a,12,4,5,2048*1280)
    srd(a,16,30,31,0x2000000)
    a("s_cmp_lt_u32 s38, 15"); a("s_cbranch_scc0 K1_W1")
    srd(a,8,6,7,640*3840); a("s_mov_b32 s42, 3840"); a("s_lshl_b32 s43, s38, 8"); a("s_branch K1_WD")
    a.label("K1_W1")
    srd(a,8,24,25,640*3072); a("s_mov_b32 s42, 3072"); a("s_sub_u32 s43, s38, 15"); a("s_lshl_b32 s43, s43, 8")
    a.label("K1_WD")
    L=vLANE
    a(f"v_lshrrev_b32 v1, 4, v{L}")
    a(f"v_bfe_u32 v2, v{L}, 2, 2")
    a("v_xor_b32 v2, v2, v1")
    a(f"v_and_b32 v3, 3, v{L}")
    a("v_lshl_or_b32 v2, v2, 2, v3")
    a("v_lshlrev_b32 v2, 4, v2")
    a("v_mul_lo_u32 v1, v1, s42")
    a(f"v_add_u32 v{vWD}, v1, v2")
    a("s_lshl_b32 s44, s41, 4"); a("s_mul_i32 s44, s44, s42"); a("s_add_u32 s44, s44, s43")
    a("s_lshl_b32 s45, s41, 12"); a(f"s_add_u32 s45, s45, {WR}")
    a("s_lshl_b32 s46, s42, 2")
    a("s_lshl_b32 s47, s42, 6")
    a("s_mul_i32 s48, s41, 640")
    for i in range(10):
        a(f"v_add_u32 v1, s48, v{L}")
        if i: a(f"v_add_u32 v1, {64*i}, v1")
        a("v_mul_u32_u24 v2, 52429, v1"); a("v_lshrrev_b32 v2, 22, v2")
        a("v_mul_u32_u24 v3, 80, v2"); a("v_sub_u32 v3, v1, v3")
        a("v_and_b32 v4, 15, v2"); a("v_xor_b32 v3, v3, v4")
        a("v_mul_u32_u24 v2, 1280, v2"); a(f"v_lshl_add_u32 v{XD+i}, v3, 4, v2")
    a("s_mul_i32 s49, s39, 40960")
    a("s_mul_i32 s50, s41, 10240")
    def dma_w(c):
        slot=c%4
        for i in range(4):
            a(f"s_add_u32 s51, s45, {slot*16384+i*1024}"); a("s_mov_b32 m0, s51")
            a(f"s_mul_i32 s52, s47, {c}"); a("s_add_u32 s52, s52, s44")
            if i: a(f"s_mul_i32 s53, s46, {i}"); a("s_add_u32 s52, s52, s53")
            a.vmem(f"buffer_load_dwordx4 v{vWD}, s[8:11], s52 offen lds", f"W{c}")
    def dma_x(sl_sgpr, soff, tag):
        for i in range(10):
            a(f"s_add_u32 m0, s{sl_sgpr}, {i*1024}"); a("s_nop 0")
            a.vmem(f"buffer_load_dwordx4 v{XD+i}, s[12:15], s{soff} offen lds", tag)
    dma_w(0); dma_w(1)
    dma_x(50,49,"X0")
    dma_w(2); dma_w(3)
    a(f"s_add_u32 s54, s50, {XS}"); a("s_add_u32 s55, s49, 40960")
    dma_x(54,55,"X1")
    a(f"s_add_u32 s51, s36, 2"); a("s_mul_i32 s51, s51, 40960"); a("s_add_u32 s51, s51, s49")
    a("s_mul_i32 s52, s41, 10240"); a("s_add_u32 s51, s51, s52")
    a(f"v_lshlrev_b32 v1, 7, v{L}")
    a.vmem("buffer_load_dword v214, v1, s[12:15], s51 offen","PF")
    a("s_add_u32 s51, s51, 8192"); a("s_mov_b64 exec, 0xffff")
    a.vmem("buffer_load_dword v215, v1, s[12:15], s51 offen","PF")
    a("s_mov_b64 exec, -1")
    a("s_lshl_b32 s51, s37, 2"); a("s_add_u32 s51, s51, s41"); a("s_mul_i32 s51, s51, 24"); a("s_add_u32 s51, s51, 256")
    a("s_mul_i32 s51, s51, s42"); a("s_add_u32 s51, s51, s43")
    a(f"v_lshrrev_b32 v1, 1, v{L}"); a("v_mul_lo_u32 v1, v1, s42"); a(f"v_and_b32 v2, 1, v{L}"); a("v_lshl_add_u32 v1, v2, 7, v1")
    a("s_mov_b32 exec_hi, 0xffff")
    a.vmem("buffer_load_dword v216, v1, s[8:11], s51 offen","PF")
    a("s_mov_b64 exec, -1")
    a(f"v_bfe_u32 v1, v{L}, 2, 2")
    a(f"v_lshrrev_b32 v2, 5, v{L}")
    a("v_lshl_add_u32 v2, v2, 3, v1"); a("v_lshlrev_b32 v2, 8, v2")
    a("v_xor_b32 v1, s41, v1"); a("v_lshl_add_u32 v2, v1, 6, v2")
    a(f"v_bfe_u32 v1, v{L}, 4, 1"); a("v_lshl_add_u32 v2, v1, 5, v2")
    a(f"v_and_b32 v1, 3, v{L}"); a("v_lshl_add_u32 v2, v1, 3, v2")
    a(f"v_add_u32 v{vTRB}, {WR}, v2")
    a(f"v_and_b32 v1, 31, v{L}"); a(f"v_lshrrev_b32 v2, 5, v{L}"); a("v_and_b32 v3, 15, v1"); a("v_mul_u32_u24 v4, 1280, v1")
    for j in range(8):
        a(f"v_add_u32 v5, {2*j}, v2"); a("v_xor_b32 v5, v5, v3"); a(f"v_lshl_add_u32 v{XA+j}, v5, 4, v4")
    a(f"v_lshrrev_b32 v1, 3, v{L}"); a("s_lshl_b32 s51, s41, 3"); a("v_add_u32 v1, s51, v1")
    a(f"v_and_b32 v2, 7, v{L}"); a("v_and_b32 v3, 15, v1"); a("v_mul_u32_u24 v4, 1280, v1")
    a("v_xor_b32 v5, v2, v3"); a(f"v_lshl_add_u32 v{vSA}, v5, 4, v4")
    a("v_add_u32 v5, 8, v2"); a("v_xor_b32 v5, v5, v3"); a(f"v_lshl_add_u32 v{vSA2}, v5, 4, v4")
    a(f"v_lshlrev_b32 v{vSTA}, 2, v1"); a(f"v_add_u32 v{vSTA}, {ST}, v{vSTA}")
    a(f"v_mov_b32 v{vONE}, 0x3f803f80")
    a(f"v_mov_b32 v{vS1}, 0")
    stamp(a,1)
    for c in range(10):
        a.wait_vm(f"W{c}")
        if c==0: stamp(a,2)
        if c==5: stamp(a,3)
        if c==0: pass
        a("s_barrier")
        if c>=1 and c+3<10: dma_w(c+3)
        for sp in range(4):
            for rd in range(2):
                r=WF+16*c+4*sp+2*rd
                a.lds(f"ds_read_b64_tr_b16 v[{r}:{r+1}], v{vTRB} offset:{(c%4)*16384+sp*4096+rd*1024}","tr")
        if c>=1:
            for r in range(16): a(f"v_dot2c_f32_bf16 v{vS1}, v{vONE}, v{WF+16*(c-1)+r}")
        a.wait_lg_all()
    for r in range(16): a(f"v_dot2c_f32_bf16 v{vS1}, v{vONE}, v{WF+144+r}")
    a("s_nop 2"); a(f"v_mov_b32 v230, v{vS1}"); a("s_nop 1"); a(f"v_permlane32_swap_b32 v{vS1}, v230"); a("s_nop 1")
    a(f"v_add_f32 v{CS}, v{vS1}, v230")
    a.wait_vm("X0")
    a(f"v_and_b32 v230, 31, v{L}"); a("v_lshlrev_b32 v230, 2, v230"); a("s_lshl_b32 s51, s41, 7"); a(f"s_add_u32 s51, s51, {CSA}")
    a("v_add_u32 v230, s51, v230"); a(f"ds_write_b32 v230, v{CS}")
    a(f"v_lshrrev_b32 v231, 5, v{L}"); a("v_lshlrev_b32 v231, 4, v231"); a(f"v_add_u32 v{vTMP}, s51, v231")
    a("s_waitcnt lgkmcnt(0)")
    a("s_barrier")
    a("s_cmp_lt_u32 s38, 10"); a("s_cbranch_scc1 K1_QK")
    a("s_cmp_lt_u32 s38, 15"); a("s_cbranch_scc1 K1_V")
    for typ in ("H","QK","V"):
        a.label(f"K1_{typ}")
        gen_type(a,typ,dma_x)
    gen_help(a)
    a.label("K1_END")
    a("s_endpgm")

def gen_type(a,typ,dma_x):
    L=vLANE
    a.vm=["X1"]*10; a.lg=[]
    if typ!="V":
        for q in range(4):
            a(f"ds_read_b128 v[{CS+4*q}:{CS+4*q+3}], v{vTMP} offset:{32*q}")
    a(f"v_and_b32 v230, 31, v{L}"); a(f"v_lshrrev_b32 v231, 5, v{L}")
    if typ=="QK":
        a("s_cmp_lt_u32 s38, 5"); a(f"s_cselect_b32 s56, 0, {KH}"); a("s_cselect_b32 s57, 0, 5")
        a(f"s_cselect_b32 s62, 0x{fbits(QSCALE):x}, 0x3f800000")
        a("s_sub_u32 s57, s38, s57"); a("s_lshl_b32 s57, s57, 7"); a("s_lshl_b32 s58, s41, 5"); a("s_add_u32 s57, s57, s58")
        a("v_mul_u32_u24 v232, 40, v230")
        for q in range(4):
            a(f"v_lshl_add_u32 v233, v231, 2, s57");
            if q: a(f"v_add_u32 v233, {8*q}, v233")
            a("v_mul_u32_u24 v234, 3277, v233"); a("v_lshrrev_b32 v234, 16, v234")
            a("v_mul_u32_u24 v234, 81880, v234"); a("v_lshl_add_u32 v234, v233, 1, v234"); a(f"v_add_u32 v{SO+q}, v234, v232")
        a("s_mul_i32 s59, s39, 1280"); a("s_add_u32 s59, s59, s56")
        a("s_movk_i32 s60, 1280")
    elif typ=="H":
        srd(a,64,26,27,1536*2)
        a("s_sub_u32 s57, s38, 15"); a("s_lshl_b32 s57, s57, 2"); a("s_add_u32 s57, s57, s41")
        a("s_lshl_b32 s58, s57, 6")
        a("v_lshl_add_u32 v232, v231, 3, s58")
        for q in range(4):
            a(f"buffer_load_dwordx2 v[{E+2*q}:{E+2*q+1}], v232, s[64:67], 0 offen offset:{16*q}")
        a("v_lshrrev_b32 v232, 4, v230"); a("v_mul_u32_u24 v232, 49152, v232"); a("v_and_b32 v233, 15, v230")
        a("v_lshl_add_u32 v232, v233, 4, v232"); a(f"v_lshl_add_u32 v{SO}, v231, 8, v232")
        a("s_mul_i32 s59, s39, 98304"); a("s_lshl_b32 s58, s57, 10"); a("s_add_u32 s59, s59, s58"); a(f"s_add_u32 s59, s59, {HF}")
        a("s_mov_b32 s60, 98304")
        a("s_waitcnt vmcnt(0)")
        for q in range(4):
            for j in range(2):
                a(f"v_lshlrev_b32 v{BB+4*q+2*j}, 16, v{E+2*q+j}"); a(f"v_and_b32 v{BB+4*q+2*j+1}, 0xffff0000, v{E+2*q+j}")
        a.vm=[]
    else:
        a("s_sub_u32 s57, s38, 10"); a("s_lshl_b32 s57, s57, 7"); a("s_lshl_b32 s58, s41, 5"); a("s_add_u32 s57, s57, s58")
        a(f"v_mul_u32_u24 v232, {VTP}, v230"); a(f"v_lshl_add_u32 v{SO}, v231, 4, v232")
        a(f"s_mul_i32 s59, s57, {VTP}"); a("s_lshl_b32 s58, s39, 6"); a("s_add_u32 s59, s59, s58"); a(f"s_add_u32 s59, s59, {VT}")
        a("s_movk_i32 s60, 64")
    a("s_waitcnt lgkmcnt(0)")
    if typ=="V": a(f"v_lshlrev_b32 v{vTMP}, 4, v231"); a(f"v_add_u32 v{vTMP}, {ST}, v{vTMP}")
    else: a(f"v_lshlrev_b32 v{vTMP}, 2, v230"); a(f"v_add_u32 v{vTMP}, {ST}, v{vTMP}")
    a("s_mov_b32 s61, 0x7f000000")
    a("s_add_u32 s68, s49, 81920")
    a("s_mov_b32 s69, 0"); a("s_mov_b32 s70, 0")
    a("s_mov_b32 s71, 0x3acccccd")
    a(f"s_mov_b32 s75, {-2*XS & 0xffffffff}"); a(f"s_mov_b32 s76, {XS}")
    a("s_mov_b32 s72, 0x3727c5ac")
    LA=6
    def xread(s):
        a.lds(f"ds_read_b128 a[{XF+4*(s%8)}:{XF+4*(s%8)+3}], v{XA+(s%8)} offset:{((s%40)>>3)*256}", f"x{s%8}")
    for s in range(LA): xread(s)
    nst = 4 if typ=="QK" else 2
    lab=f"K1_LOOP_{typ}"
    stamp(a,4)
    a.label(lab)
    if STAMP:
        a("s_memtime s[100:101]"); a("s_waitcnt lgkmcnt(0)")
        for i in range(4):
            a(f"s_cmp_eq_u32 s70, {i}"); a(f"s_cselect_b32 s{89+i}, s100, s{89+i}")
    def stats_fill(par):
        f=[]
        f.append(lambda: (a(f"v_mov_b32 v{vS1}, 0"), a(f"v_mov_b32 v{vS2}, 0")))
        for i in range(10):
            def rd(i=i):
                a.lds(f"ds_read_b128 v[{SR}:{SR+3}], v{vSA2 if i&1 else vSA} offset:{(i>>1)*256}","sr")
            def cmp(i=i):
                a.wait_lg("sr")
                for r in range(4):
                    a(f"v_dot2c_f32_bf16 v{vS1}, v{vONE}, v{SR+r}"); a(f"v_dot2c_f32_bf16 v{vS2}, v{SR+r}, v{SR+r}")
            f.append(rd); f.append(None); f.append(cmp)
        def red(ctrl):
            def g():
                a("s_nop 2")
                a(f"v_add_f32_dpp v{vS1}, v{vS1}, v{vS1} {ctrl} row_mask:0xf bank_mask:0xf")
                a(f"v_add_f32_dpp v{vS2}, v{vS2}, v{vS2} {ctrl} row_mask:0xf bank_mask:0xf")
            return g
        f.append(red("quad_perm:[1,0,3,2]")); f.append(red("quad_perm:[2,3,0,1]")); f.append(red("row_half_mirror"))
        def fin():
            a(f"v_mul_f32 v{vS1}, s71, v{vS1}")
            a(f"v_mul_f32 v{vS2}, s71, v{vS2}")
            a(f"v_fma_f32 v{vS2}, -v{vS1}, v{vS1}, v{vS2}")
            a(f"v_add_f32 v{vS2}, s72, v{vS2}")
            a(f"v_rsq_f32 v{vS2}, v{vS2}")
            a("s_nop 0")
            a(f"v_mul_f32 v{vS1}, v{vS1}, v{vS2}")
            a.lds(f"ds_write_b32 v{vSTA}, v{vS2} offset:{par*256}","sw")
            a.lds(f"ds_write_b32 v{vSTA}, v{vS1} offset:{par*256+128}","sw")
        f.append(fin)
        return f
    def epi_fill(par):
        f=[]; acc=ACC[par]
        if typ!="V":
            def rd():
                a.lds(f"ds_read2_b32 v[{vRS}:{vMR}], v{vTMP} offset0:{par*64} offset1:{par*64+32}","st")
            f.append(rd); f.append(None)
            def w():
                a.wait_lg("st")
                if typ=="QK": a(f"v_mul_f32 v{vRS}, s62, v{vRS}"); a(f"v_mul_f32 v{vMR}, s62, v{vMR}")
            f.append(w)
            for q in range(4):
                for i in range(4):
                    k=4*q+i
                    def el(k=k,i=i):
                        a(f"v_accvgpr_read_b32 v{E+i}, a{acc+k}")
                        if typ=="H":
                            a(f"v_fma_f32 v{T+i}, -v{vMR}, v{CS+k}, v{BB+k}")
                            a(f"v_fmac_f32 v{T+i}, v{E+i}, v{vRS}")
                            a(f"v_max_f32 v{T+i}, 0, v{T+i}"); a(f"v_mul_f32 v{T+i}, v{T+i}, v{T+i}")
                        else:
                            a(f"v_mul_f32 v{T+i}, v{vMR}, v{CS+k}")
                            a(f"v_fma_f32 v{T+i}, v{E+i}, v{vRS}, -v{T+i}")
                    f.append(el)
                def pk(q=q):
                    a(f"v_cvt_pk_bf16_f32 v{P+2*q}, v{T}, v{T+1}"); a(f"v_cvt_pk_bf16_f32 v{P+2*q+1}, v{T+2}, v{T+3}")
                    if typ=="QK":
                        a(f"buffer_store_dwordx2 v[{P+2*q}:{P+2*q+1}], v{SO+q}, s[16:19], s61 offen")
                    elif q&1:
                        b=P+2*(q-1)
                        a("s_nop 1"); a(f"v_permlane32_swap_b32 v{b}, v{b+2}"); a(f"v_permlane32_swap_b32 v{b+1}, v{b+3}")
                        a(f"buffer_store_dwordx4 v[{b}:{b+3}], v{SO}, s[16:19], s61 offen offset:{512*(q>>1)}")
                f.append(pk)
        else:
            for q in range(4):
                def rd(q=q):
                    a.lds(f"ds_read_b128 v[{E+4}:{E+7}], v{vTMP} offset:{par*256+32*q}","st")
                    a.lds(f"ds_read_b128 v[{T+4}:{T+7}], v{vTMP} offset:{par*256+128+32*q}","st")
                f.append(rd); f.append(None)
                def el(q=q):
                    a.wait_lg("st")
                    for i in range(4):
                        a(f"v_accvgpr_read_b32 v{E+i}, a{acc+4*q+i}")
                        a(f"v_mul_f32 v{T+i}, v{T+4+i}, v{CS}")
                        a(f"v_fma_f32 v{T+i}, v{E+i}, v{E+4+i}, -v{T+i}")
                    a(f"v_cvt_pk_bf16_f32 v{P+2*q}, v{T}, v{T+1}"); a(f"v_cvt_pk_bf16_f32 v{P+2*q+1}, v{T+2}, v{T+3}")
                    if q&1:
                        b=P+2*(q-1)
                        a("s_nop 1"); a(f"v_permlane32_swap_b32 v{b}, v{b+2}"); a(f"v_permlane32_swap_b32 v{b+1}, v{b+3}")
                        a(f"buffer_store_dwordx4 v[{b}:{b+3}], v{SO}, s[16:19], s61 offen offset:{32*(q>>1)}")
                f.append(el)
        return f
    for par in range(2):
        acc=ACC[par]
        sf=stats_fill(par); ef=epi_fill(par^1)
        sched=[[] for _ in range(40)]
        for i,fn in enumerate(sf): sched[min(39,(i*30)//len(sf))].append(fn)
        for i,fn in enumerate(ef): sched[3+(i*28)//len(ef)].append(fn)
        a("s_barrier")
        a("s_add_u32 s73, s69, 2"); a("s_cmp_ge_u32 s73, 3"); a("s_cbranch_scc0 %s_a%d"%(lab,par)); a("s_sub_u32 s73, s73, 3"); a.label("%s_a%d"%(lab,par))
        a(f"s_mul_i32 s73, s73, {XS}"); a("s_add_u32 s73, s73, s50")
        def dma1(i):
            def g():
                a(f"s_add_u32 m0, s73, {i*1024}"); a("s_nop 0")
                a(f"buffer_load_dwordx4 v{XD+i}, s[12:15], s68 offen lds")
                if i==9: a("s_add_u32 s68, s68, 40960")
            return g
        for i in range(10): sched[3*i].insert(0,dma1(i))
        a("s_add_u32 s69, s69, 1"); a("s_cmp_ge_u32 s69, 3"); a("s_cselect_b32 s74, s75, s76"); a("s_cselect_b32 s69, 0, s69")
        for s in range(40):
            if s==32:
                a(f"s_waitcnt vmcnt({10+nst}) lgkmcnt(0)"); a.lg=[]
                a("s_barrier")
            a.wait_lg(f"x{s%8}")
            c = "0" if s==0 else f"a[{acc}:{acc+15}]"
            wf=f"v[{WF+4*s}:{WF+4*s+3}]"; xf=f"a[{XF+4*(s%8)}:{XF+4*(s%8)+3}]"
            if typ=="V": a(f"v_mfma_f32_32x32x16_bf16 a[{acc}:{acc+15}], {xf}, {wf}, {c}")
            else: a(f"v_mfma_f32_32x32x16_bf16 a[{acc}:{acc+15}], {wf}, {xf}, {c}")
            if s+LA==40:
                for j in range(8): a(f"v_add_u32 v{XA+j}, s74, v{XA+j}")
            xread(s+LA)
            for fn in sched[s]:
                if fn: fn()
            if s==31:
                a(f"v_add_u32 v{vSA}, s74, v{vSA}"); a(f"v_add_u32 v{vSA2}, s74, v{vSA2}")
        if par==0:
            a("s_cmp_eq_u32 s70, 0"); a("s_cselect_b32 s61, s59, s61"); a("s_cbranch_scc1 %s_b"%lab); a("s_add_u32 s61, s61, s60"); a.label("%s_b"%lab)
        else:
            a("s_add_u32 s61, s61, s60")
    a("s_add_u32 s70, s70, 1"); a("s_cmp_lt_u32 s70, 4"); a(f"s_cbranch_scc1 {lab}")
    stamp(a,9)
    a("s_waitcnt lgkmcnt(0)"); a.lg=[]
    a("s_barrier")
    a("s_nop 7"); a("s_nop 7")
    for fn in epi_fill(1):
        if fn: fn()
    a("s_waitcnt vmcnt(0)")
    stamp(a,10)
    stamp_out(a,11,8 if typ=="QK" else (120+2 if typ=="V" else 6),{"QK":0,"V":16,"H":32}[typ],230)
    a("s_endpgm")

def gen_help(a):
    L=vLANE
    a.label("K1_HELP")
    a("s_cmp_ge_u32 s32, 6"); a("s_cbranch_scc1 K1_H2")
    a("s_lshl_b32 s40, s32, 2"); a("s_add_u32 s40, s40, s33"); a("s_sub_u32 s40, s40, 28"); a("s_branch K1_H3")
    a.label("K1_H2")
    a("s_sub_u32 s40, s32, 6"); a("s_lshl_b32 s40, s40, 3"); a("s_add_u32 s40, s40, s33")
    a.label("K1_H3")
    a("s_lshl_b32 s40, s40, 2"); a("s_add_u32 s40, s40, s41")
    srd(a,16,30,31,0x2000000)
    a(f"v_lshrrev_b32 v1, 4, v{L}"); a("v_mul_u32_u24 v1, 10240, v1"); a(f"v_and_b32 v2, 15, v{L}"); a("v_lshl_add_u32 v1, v2, 1, v1")
    a("v_add_u32 v2, 5120, v1"); a(f"v_lshlrev_b32 v3, 4, v{L}")
    for (lo,hi,nk,dst,n) in ((28,29,1536,W2F,12),(20,21,640,WOF,5)):
        srd(a,8,lo,hi,nk*1280)
        for g0 in range(0,n,6):
            gs=list(range(g0,min(n,g0+6)))
            for t,it in enumerate(gs):
                a(f"s_add_u32 s{44+t}, s40, {160*it}")
                a(f"s_mul_i32 s51, s{44+t}, 1639"); a("s_lshr_b32 s51, s51, 16")
                a("s_mul_i32 s52, s51, 40"); a(f"s_sub_u32 s52, s{44+t}, s52")
                a("s_mul_i32 s51, s51, 40960"); a("s_lshl_b32 s52, s52, 5"); a("s_add_u32 s51, s51, s52")
                for j in range(8):
                    a(f"buffer_load_ushort v{40+8*t+j}, v{1 if j<4 else 2}, s[8:11], s51 offen offset:{(j&3)*1280}")
            a("s_waitcnt vmcnt(0)")
            for t,it in enumerate(gs):
                for j in range(4): a(f"v_lshl_or_b32 v{8+4*t+j}, v{40+8*t+2*j+1}, 16, v{40+8*t+2*j}")
                a(f"s_lshl_b32 s51, s{44+t}, 10"); a(f"s_add_u32 s51, s51, {dst}")
                a(f"buffer_store_dwordx4 v[{8+4*t}:{8+4*t+3}], v3, s[16:19], s51 offen")
            a("s_nop 1")
```

```python
from asmlib import *
from k1 import QH,KH,VT,VTP,HF,W2F,WOF,OF,QSCALE,fbits
XS=40960
WSL=[122880,139264,81920,98304]
MISC=155648; ST=MISC; CSA=MISC+2048; BBA=MISC+2560; STG=0x1C00000
WF=0; ACC=[160,176]; XF=192; XA=224; SO=232; T=236; P=240; C4=244; B4=248
vRS=252; vMR=253; vTMP=254; vCB=255
vTRB=236; vTRB2=237; vS1=238; vONE=239; vLANE=243
XD=200; vWD=210; vSA=211; vSA2=212; vSTA=213; lS1=214; lS2=215; lONE=216; SRB=160

import os
EXP=int(os.environ.get('EXP','0'))
PFX_AT=int(os.environ.get('PFX_AT','2'))
PRIO=int(os.environ.get('PRIO','2'))
def gen_k1(a):
    a.label("k1_kernel")
    a("s_cmp_ge_u32 s2, 256"); a("s_cbranch_scc1 K1_END")
    stamp(a,0)
    a("s_load_dwordx4 s[4:7], s[0:1], 0")
    a("s_load_dwordx2 s[20:21], s[0:1], 16")
    a("s_load_dwordx4 s[24:27], s[0:1], 32")
    a("s_load_dwordx2 s[28:29], s[0:1], 48")
    a("s_load_dwordx2 s[30:31], s[0:1], 80")
    a("s_and_b32 s32, s2, 7")
    a("s_lshr_b32 s80, s2, 3"); a("s_add_u32 s33, s80, 28"); a("s_and_b32 s33, s33, 31")
    a("s_load_dwordx2 s[82:83], s[0:1], 72")
    a("s_lshr_b32 s34, s32, 1")
    a("s_and_b32 s35, s32, 1")
    a("s_lshr_b32 s36, s33, 2")
    a("s_and_b32 s37, s33, 3")
    a("s_mul_i32 s38, s34, 7"); a("s_add_u32 s38, s38, s36")
    a("s_lshl_b32 s39, s35, 5"); a("s_lshl_b32 s40, s37, 3"); a("s_add_u32 s39, s39, s40")
    L=vLANE
    a(f"v_and_b32 v{L}, 63, v0")
    a("v_lshrrev_b32 v1, 6, v0"); a("s_nop 0"); a("v_readfirstlane_b32 s78, v1")
    a("s_and_b32 s41, s78, 3")
    a("s_mul_i32 s49, s39, 40960")
    a("s_mul_i32 s50, s41, 10240")
    a("s_waitcnt lgkmcnt(0)")
    a("s_cmp_ge_u32 s36, 7"); a("s_cbranch_scc1 K1_HELP")
    a("s_cmp_ge_u32 s38, 27"); a("s_cbranch_scc1 K1_HELP")
    srd(a,12,4,5,2048*1280)
    srd(a,16,30,31,0x2000000)
    def xd_calc():
        for i in range(10):
            if i: a(f"v_add_u32 v1, {64*i}, v{L}")
            src = "v1" if i else f"v{L}"
            a(f"v_mul_u32_u24 v2, 52429, {src}"); a("v_lshrrev_b32 v2, 22, v2")
            a("v_mul_u32_u24 v3, 80, v2"); a(f"v_sub_u32 v3, {src}, v3")
            a("v_add_u32 v2, s79, v2")
            a("v_and_b32 v4, 15, v2"); a("v_xor_b32 v3, v3, v4")
            a("v_mul_u32_u24 v2, 1280, v2"); a(f"v_lshl_add_u32 v{XD+i}, v3, 4, v2")
    def dma_x(sl_sgpr, soff, tag):
        for i in range(10):
            a(f"s_add_u32 m0, s{sl_sgpr}, {i*1024}"); a("s_nop 0")
            a.vmem(f"buffer_load_dwordx4 v{XD+i}, s[12:15], s{soff} offen lds", tag)
    a("s_lshl_b32 s79, s41, 3")
    a("s_cmp_ge_u32 s78, 4"); a("s_cbranch_scc1 K1_LOAD")
    xd_calc()
    dma_x(50,49,"X0")
    a(f"s_add_u32 s54, s50, {XS}"); a("s_add_u32 s55, s49, 40960")
    dma_x(54,55,"X1")
    a(f"s_setprio {PRIO}")
    a(f"v_bfe_u32 v1, v{L}, 2, 2")
    a(f"v_lshrrev_b32 v2, 5, v{L}")
    a("v_lshl_add_u32 v2, v2, 3, v1"); a("v_lshlrev_b32 v2, 8, v2")
    a("v_xor_b32 v1, s41, v1"); a("v_lshl_add_u32 v2, v1, 6, v2")
    a(f"v_bfe_u32 v1, v{L}, 4, 1"); a("v_lshl_add_u32 v2, v1, 5, v2")
    a(f"v_and_b32 v1, 3, v{L}"); a("v_lshl_add_u32 v2, v1, 3, v2")
    a(f"v_add_u32 v{vTRB}, {WSL[2]}, v2"); a(f"v_add_u32 v{vTRB2}, {WSL[0]}, v2")
    a(f"v_and_b32 v1, 31, v{L}"); a(f"v_lshrrev_b32 v2, 5, v{L}"); a("v_and_b32 v3, 15, v1"); a("v_mul_u32_u24 v4, 1280, v1")
    for j in range(8):
        a(f"v_add_u32 v5, {2*j}, v2"); a("v_xor_b32 v5, v5, v3"); a(f"v_lshl_add_u32 v{XA+j}, v5, 4, v4")
    a(f"v_mov_b32 v{vONE}, 0x3f803f80")
    a(f"v_mov_b32 v{vS1}, 0")
    a("s_cmp_lt_u32 s38, 10"); a("s_cbranch_scc1 K1_QK")
    a("s_cmp_lt_u32 s38, 15"); a("s_cbranch_scc1 K1_V")
    for typ in ("H","QK","V"):
        a.label(f"K1_{typ}")
        gen_type(a,typ)
    gen_loader(a,xd_calc,dma_x)
    gen_help(a)
    a.label("K1_END")
    a("s_endpgm")

def gen_loader(a,xd_calc,dma_x):
    L=vLANE
    a.label("K1_LOAD"); a.vm=[]; a.lg=[]
    a("s_cmp_lt_u32 s38, 15"); a("s_cbranch_scc0 K1_W1")
    srd(a,8,6,7,640*3840); a("s_mov_b32 s42, 3840"); a("s_lshl_b32 s43, s38, 8"); a("s_branch K1_WD")
    a.label("K1_W1")
    srd(a,8,24,25,640*3072); a("s_mov_b32 s42, 3072"); a("s_sub_u32 s43, s38, 15"); a("s_lshl_b32 s43, s43, 8")
    a.label("K1_WD")
    a(f"v_lshrrev_b32 v1, 4, v{L}")
    a(f"v_bfe_u32 v2, v{L}, 2, 2")
    a("v_xor_b32 v2, v2, v1")
    a(f"v_and_b32 v3, 3, v{L}")
    a("v_lshl_or_b32 v2, v2, 2, v3")
    a("v_lshlrev_b32 v2, 4, v2")
    a("v_mul_lo_u32 v1, v1, s42")
    a(f"v_add_u32 v{vWD}, v1, v2")
    a("s_lshl_b32 s44, s41, 4"); a("s_mul_i32 s44, s44, s42"); a("s_add_u32 s44, s44, s43")
    a("s_lshl_b32 s45, s41, 12")
    a("s_lshl_b32 s46, s42, 2")
    a("s_lshl_b32 s47, s42, 6")
    def ld_w(c):
        for i in range(4):
            if c: a(f"s_mul_i32 s52, s47, {c}"); a("s_add_u32 s52, s52, s44")
            else: a("s_mov_b32 s52, s44")
            if i: a(f"s_mul_i32 s53, s46, {i}"); a("s_add_u32 s52, s52, s53")
            r=16*c+4*i
            a.vmem(f"buffer_load_dwordx4 v[{r}:{r+3}], v{vWD}, s[8:11], s52 offen", f"W{c}")
    for c in range(10): ld_w(c)
    vXG=200; vWA=201; vWC=202; vXW=203
    a(f"v_lshrrev_b32 v{SRB+1}, 3, v{L}"); a(f"v_add_u32 v{SRB+1}, s79, v{SRB+1}")
    a(f"v_and_b32 v{SRB+2}, 7, v{L}"); a(f"v_and_b32 v{SRB+3}, 15, v{SRB+1}"); a(f"v_mul_u32_u24 v{SRB+4}, 1280, v{SRB+1}")
    a(f"v_lshl_add_u32 v{vXG}, v{SRB+2}, 4, v{SRB+4}")
    a(f"v_xor_b32 v{SRB+5}, v{SRB+2}, v{SRB+3}"); a(f"v_lshl_add_u32 v{vXW}, v{SRB+5}, 4, v{SRB+4}")
    a(f"v_add_u32 v{SRB+5}, 8, v{SRB+2}"); a(f"v_xor_b32 v{SRB+5}, v{SRB+5}, v{SRB+3}"); a(f"v_lshl_add_u32 v{vXW+1}, v{SRB+5}, 4, v{SRB+4}")
    for sl in (1,2):
        for o in range(2): a(f"v_add_u32 v{vXW+2*sl+o}, {sl*XS}, v{vXW+o}")
    a(f"v_lshlrev_b32 v{vSTA}, 2, v{SRB+1}"); a(f"v_add_u32 v{vSTA}, {ST}, v{vSTA}")
    a(f"v_lshlrev_b32 v{vWA}, 4, v{L}"); a(f"v_add_u32 v{vWA}, s45, v{vWA}"); a(f"v_add_u32 v{vWC}, {WSL[2]}, v{vWA}"); a(f"v_add_u32 v{vWA}, {WSL[0]}, v{vWA}")
    a(f"v_mov_b32 v{lONE}, 0x3f803f80")
    a("s_mov_b32 s71, 0x3acccccd")
    a("s_mov_b32 s72, 0x3727c5ac")
    def ld_x(j):
        b=40*((j-2)%4)
        a(f"s_add_u32 s55, s49, {40960*j}")
        for i in range(10):
            a.vmem(f"buffer_load_dwordx4 v[{b+4*i}:{b+4*i+3}], v{vXG}, s[12:15], s55 offen offset:{128*i}", f"X{j}")
    def stats(j):
        sl=j%3
        b=40*((j-2)%4)
        a.wait_vm(f"X{j}")
        for i in range(10):
            a(f"ds_write_b128 v{vXW+2*sl+(i&1)}, v[{b+4*i}:{b+4*i+3}] offset:{(i>>1)*256}")
        a("s_waitcnt lgkmcnt(0)")
    def get_stats():
        a(f"v_mov_b32 v{SRB}, 0")
        a.label("K1_POLL")
        a(f"global_load_dword v{SRB+1}, v{SRB}, s[82:83] offset:252 sc1")
        a("s_waitcnt vmcnt(0)"); a.vm=[]
        a(f"v_readfirstlane_b32 s51, v{SRB+1}")
        a("s_cmp_ge_u32 s51, 32"); a("s_cbranch_scc1 K1_POLLD")
        a("s_sleep 2"); a("s_branch K1_POLL")
        a.label("K1_POLLD")
        a("s_lshl_b32 s51, s39, 8"); a("s_lshl_b32 s52, s41, 9"); a("s_add_u32 s51, s51, s52"); a(f"s_add_u32 s51, s51, {STG}")
        a(f"v_lshlrev_b32 v{SRB}, 4, v{L}")
        a("s_mov_b32 exec_hi, 0")
        a(f"buffer_load_dwordx4 v[{SRB+4}:{SRB+7}], v{SRB}, s[16:19], s51 offen sc1")
        a(f"s_add_u32 s52, s52, {ST}"); a(f"v_add_u32 v{SRB}, s52, v{SRB}")
        a("s_waitcnt vmcnt(0)")
        a(f"ds_write_b128 v{SRB}, v[{SRB+4}:{SRB+7}]")
        a("s_mov_b64 exec, -1")
        a("s_waitcnt lgkmcnt(0)")
    for c in range(10):
        a.wait_vm(f"W{c}")
        for i in range(4):
            r=16*c+4*i
            a(f"ds_write_b128 v{vWA if (c%4)<2 else vWC}, v[{r}:{r+3}] offset:{(c%2)*16384+i*1024}")
        a("s_waitcnt lgkmcnt(0)")
        a("s_barrier")
        if c==2: ld_x(2)
        if c==4: ld_x(3)
        if c==7: ld_x(4)
        if c==9: get_stats(); ld_x(5)
    stats(2); ld_x(6)
    a("s_barrier")
    stats(3); ld_x(7)
    a("s_barrier")
    for j in range(4,8):
        stats(j)
        a("s_barrier")
    a("s_barrier")
    a("s_endpgm")

def gen_type(a,typ):
    L=vLANE
    a.vm=[]; a.lg=[]
    a(f"v_and_b32 v10, 31, v{L}"); a(f"v_lshrrev_b32 v11, 5, v{L}")
    if typ=="QK":
        a("s_cmp_lt_u32 s38, 5"); a(f"s_cselect_b32 s56, 0, {KH}"); a("s_cselect_b32 s57, 0, 5")
        a(f"s_cselect_b32 s62, 0x{fbits(QSCALE):x}, 0x3f800000")
        a("s_sub_u32 s57, s38, s57"); a("s_lshl_b32 s57, s57, 7"); a("s_lshl_b32 s58, s41, 5"); a("s_add_u32 s57, s57, s58")
        a("v_mul_u32_u24 v12, 40, v10")
        for q in range(4):
            a(f"v_lshl_add_u32 v13, v11, 2, s57")
            if q: a(f"v_add_u32 v13, {8*q}, v13")
            a("v_mul_u32_u24 v14, 3277, v13"); a("v_lshrrev_b32 v14, 16, v14")
            a("v_mul_u32_u24 v14, 81880, v14"); a("v_lshl_add_u32 v14, v13, 1, v14"); a(f"v_add_u32 v{SO+q}, v14, v12")
        a("s_mul_i32 s59, s39, 1280"); a("s_add_u32 s59, s59, s56")
        a("s_movk_i32 s60, 1280")
    elif typ=="H":
        srd(a,64,26,27,1536*2)
        a("s_sub_u32 s57, s38, 15"); a("s_lshl_b32 s57, s57, 2"); a("s_add_u32 s57, s57, s41")
        a("s_lshl_b32 s58, s57, 6")
        a("v_lshlrev_b32 v12, 1, v10")
        a("buffer_load_ushort v15, v12, s[64:67], s58 offen")
        a("v_lshrrev_b32 v12, 4, v10"); a("v_mul_u32_u24 v12, 50176, v12"); a("v_and_b32 v13, 15, v10")
        a("v_lshl_add_u32 v12, v13, 4, v12"); a(f"v_lshl_add_u32 v{SO}, v11, 8, v12")
        a("s_mul_i32 s59, s39, 100352"); a("s_lshl_b32 s58, s57, 10"); a("s_add_u32 s59, s59, s58"); a(f"s_add_u32 s59, s59, {HF}")
        a("s_mov_b32 s60, 100352")
    else:
        a("s_sub_u32 s57, s38, 10"); a("s_lshl_b32 s57, s57, 7"); a("s_lshl_b32 s58, s41, 5"); a("s_add_u32 s57, s57, s58")
        a(f"v_mul_u32_u24 v12, {VTP}, v10"); a(f"v_lshl_add_u32 v{SO}, v11, 4, v12")
        a(f"s_mul_i32 s59, s57, {VTP}"); a("s_lshl_b32 s58, s39, 6"); a("s_add_u32 s59, s59, s58"); a(f"s_add_u32 s59, s59, {VT}")
        a("s_movk_i32 s60, 64")
    if typ=="V": a(f"v_lshlrev_b32 v{vTMP}, 4, v11"); a(f"v_add_u32 v{vTMP}, {ST}, v{vTMP}")
    else: a(f"v_lshlrev_b32 v{vTMP}, 2, v10"); a(f"v_add_u32 v{vTMP}, {ST}, v{vTMP}")
    a("s_lshl_b32 s51, s41, 7"); a(f"s_add_u32 s51, s51, {CSA}")
    a(f"v_lshlrev_b32 v{vCB}, 4, v11"); a(f"v_add_u32 v{vCB}, s51, v{vCB}")
    a(f"v_lshlrev_b32 v{vRS}, 2, v10"); a(f"v_add_u32 v{vRS}, s51, v{vRS}")
    stamp(a,1)
    a("s_waitcnt vmcnt(0)")
    if typ=="H":
        a("v_lshlrev_b32 v15, 16, v15"); a(f"ds_write_b32 v{vRS}, v15 offset:{BBA-CSA}")
    stamp(a,2)
    def mf(acc,s,xf,first):
        c = "0" if first else f"v[{acc}:{acc+15}]"
        wf=f"v[{WF+4*s}:{WF+4*s+3}]"; x=f"v[{xf}:{xf+3}]"
        if typ=="V": a(f"v_mfma_f32_32x32x16_bf16 v[{acc}:{acc+15}], {x}, {wf}, {c}")
        else: a(f"v_mfma_f32_32x32x16_bf16 v[{acc}:{acc+15}], {wf}, {x}, {c}")
    def xr2(c,k):
        s=4*c+(k&3)
        a(f"ds_read_b128 v[{XF+4*k}:{XF+4*k+3}], v{XA+(s%8)} offset:{(k>>2)*XS+(s>>3)*256}")
    for c in range(11):
        if c<10:
            a("s_barrier")
            if c==5: stamp(a,3)
            tb = vTRB2 if (c%4)<2 else vTRB
            for sp in range(4):
                for rd in range(2):
                    r=WF+16*c+4*sp+2*rd
                    a(f"ds_read_b64_tr_b16 v[{r}:{r+1}], v{tb} offset:{(c%2)*16384+sp*4096+rd*1024}")
        if c==0:
            for k in range(8): xr2(0,k)
        else:
            a(f"s_waitcnt lgkmcnt({8 if c<10 else 0})")
            for r in range(16): a(f"v_dot2c_f32_bf16 v{vS1}, v{vONE}, v{WF+16*(c-1)+r}")
            for k in range(8):
                kk=(k&1)*4+(k>>1)
                mf(ACC[kk>>2],4*(c-1)+(kk&3),XF+4*kk,(c==1 and (kk&3)==0))
                if c<10: xr2(c,kk)
        if c<10: a("s_waitcnt lgkmcnt(8)")
    a("s_waitcnt lgkmcnt(0)")
    a("s_barrier")
    a("s_nop 2")
    a(f"v_mov_b32 v{P}, v{vS1}"); a("s_nop 1"); a(f"v_permlane32_swap_b32 v{vS1}, v{P}"); a("s_nop 1")
    a(f"v_add_f32 v{vS1}, v{vS1}, v{P}")
    if typ=="V": a(f"v_mov_b32 v{vCB}, v{vS1}")
    else: a(f"ds_write_b32 v{vRS}, v{vS1}")
    a("s_waitcnt lgkmcnt(0)")
    stamp(a,4)
    def epi_fill(par,stoff):
        f=[]; acc=ACC[par]
        if typ!="V":
            def rd():
                a.lds(f"ds_read2_b32 v[{vRS}:{vMR}], v{vTMP} offset0:{stoff//4} offset1:{stoff//4+32}","st")
            f.append(rd)
            def rdq(q):
                def g():
                    a.lds(f"ds_read_b128 v[{C4}:{C4+3}], v{vCB} offset:{32*q}","cb")
                    if typ=="H": a.lds(f"ds_read_b128 v[{B4}:{B4+3}], v{vCB} offset:{BBA-CSA+32*q}","cb")
                return g
            for q in range(4):
                f.append(rdq(q)); f.append(None); f.append(None)
                def w(q=q):
                    a.wait_lg("cb")
                    if q==0 and typ=="QK": a(f"v_mul_f32 v{vRS}, s62, v{vRS}"); a(f"v_mul_f32 v{vMR}, s62, v{vMR}")
                f.append(w)
                for i in range(4):
                    k=4*q+i
                    def el(k=k,i=i):
                        if typ=="H":
                            a(f"v_fma_f32 v{T+i}, -v{vMR}, v{C4+i}, v{B4+i}")
                            a(f"v_fmac_f32 v{T+i}, v{acc+k}, v{vRS}")
                            a(f"v_max_f32 v{T+i}, 0, v{T+i}"); a(f"v_mul_f32 v{T+i}, v{T+i}, v{T+i}")
                        else:
                            a(f"v_mul_f32 v{T+i}, v{vMR}, v{C4+i}")
                            a(f"v_fma_f32 v{T+i}, v{acc+k}, v{vRS}, -v{T+i}")
                    f.append(el)
                def pk(q=q):
                    if typ=="QK":
                        b=P+2*(q&1)
                        a(f"v_cvt_pk_bf16_f32 v{b}, v{T}, v{T+1}"); a(f"v_cvt_pk_bf16_f32 v{b+1}, v{T+2}, v{T+3}")
                        a(f"buffer_store_dwordx2 v[{b}:{b+1}], v{SO+q}, s[16:19], s61 offen")
                    else:
                        b=P+2*(q&1)
                        a(f"v_cvt_pk_bf16_f32 v{b}, v{T}, v{T+1}"); a(f"v_cvt_pk_bf16_f32 v{b+1}, v{T+2}, v{T+3}")
                        if q&1:
                            a("s_nop 1"); a(f"v_permlane32_swap_b32 v{P}, v{P+2}"); a(f"v_permlane32_swap_b32 v{P+1}, v{P+3}")
                            a(f"buffer_store_dwordx4 v[{P}:{P+3}], v{SO}, s[16:19], s61 offen offset:{512*(q>>1)}")
                f.append(pk)
        else:
            for q in range(4):
                def rd(q=q):
                    a.lds(f"ds_read_b128 v[{C4}:{C4+3}], v{vTMP} offset:{stoff+32*q}","st")
                    a.lds(f"ds_read_b128 v[{B4}:{B4+3}], v{vTMP} offset:{stoff+128+32*q}","st")
                f.append(rd); f.append(None); f.append(None)
                def el(q=q):
                    a.wait_lg("st")
                    for i in range(4):
                        a(f"v_mul_f32 v{T+i}, v{B4+i}, v{vCB}")
                        a(f"v_fma_f32 v{T+i}, v{acc+4*q+i}, v{C4+i}, -v{T+i}")
                f.append(el)
                def pk(q=q):
                    b=P+2*(q&1)
                    a(f"v_cvt_pk_bf16_f32 v{b}, v{T}, v{T+1}"); a(f"v_cvt_pk_bf16_f32 v{b+1}, v{T+2}, v{T+3}")
                    if q&1:
                        a("s_nop 1"); a(f"v_permlane32_swap_b32 v{P}, v{P+2}"); a(f"v_permlane32_swap_b32 v{P+1}, v{P+3}")
                        a(f"buffer_store_dwordx4 v[{P}:{P+3}], v{SO}, s[16:19], s61 offen offset:{32*(q>>1)}")
                f.append(pk)
        return f
    a("s_mov_b32 s61, s59")
    a("s_nop 7"); a("s_nop 7")
    for fn in epi_fill(0,0):
        if fn: fn()
    a(f"v_add_u32 v{vTMP}, 256, v{vTMP}")
    a("s_add_u32 s61, s61, s60")
    a(f"s_mov_b32 s74, {2*XS}")
    for j in range(8): a(f"v_add_u32 v{XA+j}, s74, v{XA+j}")
    a(f"s_mov_b32 s75, {-2*XS & 0xffffffff}"); a(f"s_mov_b32 s76, {XS}")
    a("s_mov_b32 s69, 2"); a("s_mov_b32 s70, 0")
    a("s_waitcnt lgkmcnt(0)"); a.lg=[]
    a("s_barrier")
    stamp(a,5)
    LA=6
    def xread(s):
        a.lds(f"ds_read_b128 v[{XF+4*(s%8)}:{XF+4*(s%8)+3}], v{XA+(s%8)} offset:{((s%40)>>3)*256}", f"x{s%8}")
    for s in range(LA): xread(s)
    lab=f"K1_LOOP_{typ}"
    a.label(lab)
    if STAMP:
        a("s_memtime s[100:101]"); a("s_waitcnt lgkmcnt(0)")
        for i in range(3):
            a(f"s_cmp_eq_u32 s70, {i}"); a(f"s_cselect_b32 s{90+i}, s100, s{90+i}")
    for par in range(2):
        acc=ACC[par]
        ef=epi_fill(par^1, 0)
        sched=[[] for _ in range(40)]
        for i,fn in enumerate(ef):
            if EXP!=2: sched[2+(i*31)//len(ef)].append(fn)
        a("s_add_u32 s69, s69, 1"); a("s_cmp_ge_u32 s69, 3"); a("s_cselect_b32 s74, s75, s76"); a("s_cselect_b32 s69, 0, s69")
        for s in range(40):
            if s==36:
                a("s_waitcnt lgkmcnt(0)"); a.lg=[]
                if par==1:
                    a("s_cmp_eq_u32 s70, 2"); a(f"s_cbranch_scc1 {lab}_nb")
                a("s_barrier")
                if par==1: a.label(f"{lab}_nb")
                for j in range(8): a(f"v_add_u32 v{XA+j}, s74, v{XA+j}")
                xread(40); xread(41)
            a.wait_lg(f"x{s%8}")
            mf(acc,s,XF+4*(s%8),s==0)
            if s<34 or s>=36: xread(s+LA)
            for fn in sched[s]:
                if fn: fn()
        a("s_add_u32 s61, s61, s60"); a(f"v_add_u32 v{vTMP}, 256, v{vTMP}")
    a("s_add_u32 s70, s70, 1"); a("s_cmp_lt_u32 s70, 3"); a(f"s_cbranch_scc1 {lab}")
    stamp(a,9)
    a("s_waitcnt lgkmcnt(0)"); a.lg=[]
    a("s_nop 7"); a("s_nop 7")
    for fn in epi_fill(1,0):
        if fn: fn()
    if STAMP:
        a("s_waitcnt vmcnt(0)")
        stamp(a,10)
        stamp_out(a,11,32 if typ=="QK" else (130 if typ=="V" else 38),{"QK":0,"V":16,"H":32}[typ],1)
    a("s_endpgm")

def gen_help(a):
    L=vLANE
    a.label("K1_HELP")
    srd(a,16,30,31,0x2000000)
    a("s_cmp_ge_u32 s80, 4"); a("s_cbranch_scc1 K1_H1")
    a("s_cmp_lg_u32 s2, 0"); a("s_cbranch_scc1 K1_H0")
    a(f"v_lshlrev_b32 v1, 8, v{L}"); a("v_mov_b32 v2, 0"); a("s_mov_b32 s51, 0x1C10000")
    a("buffer_store_dword v2, v1, s[16:19], s51 offen")
    a.label("K1_H0")
    srd(a,12,4,5,2048*1280)
    a("s_lshl_b32 s51, s80, 3"); a("s_add_u32 s51, s51, s32"); a("s_lshl_b32 s51, s51, 6"); a("s_lshl_b32 s52, s78, 3"); a("s_add_u32 s51, s51, s52")
    a(f"v_lshrrev_b32 v1, 3, v{L}"); a("v_add_u32 v1, s51, v1")
    a(f"v_and_b32 v2, 7, v{L}"); a("v_mul_u32_u24 v3, 1280, v1"); a("v_lshl_add_u32 v3, v2, 4, v3")
    for i in range(10): a(f"buffer_load_dwordx4 v[{8+4*i}:{11+4*i}], v3, s[12:15], 0 offen offset:{128*i}")
    a("v_mov_b32 v4, 0"); a("v_mov_b32 v5, 0"); a("v_mov_b32 v6, 0x3f803f80")
    a("v_lshrrev_b32 v7, 5, v1"); a("v_lshlrev_b32 v7, 8, v7"); a("v_and_b32 v1, 31, v1"); a("v_lshl_add_u32 v7, v1, 2, v7")
    a("s_mov_b32 s71, 0x3acccccd"); a("s_mov_b32 s72, 0x3727c5ac"); a(f"s_mov_b32 s73, {STG}")
    for i in range(10):
        a(f"s_waitcnt vmcnt({9-i})")
        for r in range(4):
            a(f"v_dot2c_f32_bf16 v4, v6, v{8+4*i+r}"); a(f"v_dot2c_f32_bf16 v5, v{8+4*i+r}, v{8+4*i+r}")
    for ctrl in ("quad_perm:[1,0,3,2]","quad_perm:[2,3,0,1]","row_half_mirror"):
        a("s_nop 2")
        a(f"v_add_f32_dpp v4, v4, v4 {ctrl} row_mask:0xf bank_mask:0xf")
        a(f"v_add_f32_dpp v5, v5, v5 {ctrl} row_mask:0xf bank_mask:0xf")
    a("v_mul_f32 v4, s71, v4"); a("v_mul_f32 v5, s71, v5"); a("v_fma_f32 v5, -v4, v4, v5"); a("v_add_f32 v5, s72, v5")
    a("v_rsq_f32 v5, v5"); a("s_nop 0"); a("v_mul_f32 v4, v4, v5")
    a("v_cmp_eq_u32 vcc, 0, v2"); a("s_and_saveexec_b64 s[74:75], vcc")
    a("buffer_store_dword v5, v7, s[16:19], s73 offen sc1")
    a("buffer_store_dword v4, v7, s[16:19], s73 offen offset:128 sc1")
    a("s_mov_b64 exec, s[74:75]")
    a("s_waitcnt vmcnt(0)")
    a("s_barrier")
    a("s_cmp_lg_u32 s78, 0"); a("s_cbranch_scc1 K1_H1")
    a("v_mov_b32 v4, 1"); a("v_mov_b32 v5, 0")
    a("s_mov_b64 exec, 1")
    a("global_atomic_add v5, v4, s[82:83] offset:252 sc1")
    a("s_mov_b64 exec, -1")
    a.label("K1_H1")
    a("s_cmp_ge_u32 s32, 6"); a("s_cbranch_scc1 K1_H2")
    a("s_lshl_b32 s40, s32, 2"); a("s_add_u32 s40, s40, s33"); a("s_sub_u32 s40, s40, 28"); a("s_branch K1_H3")
    a.label("K1_H2")
    a("s_sub_u32 s40, s32, 6"); a("s_lshl_b32 s40, s40, 3"); a("s_add_u32 s40, s40, s33")
    a.label("K1_H3")
    a("s_lshl_b32 s40, s40, 3"); a("s_add_u32 s40, s40, s78")
    a(f"v_lshrrev_b32 v1, 4, v{L}"); a("v_mul_u32_u24 v1, 10240, v1"); a(f"v_and_b32 v2, 15, v{L}"); a("v_lshl_add_u32 v1, v2, 1, v1")
    a("v_add_u32 v2, 5120, v1"); a(f"v_lshlrev_b32 v3, 4, v{L}")
    for (lo,hi,nk,dst,n) in ((28,29,1536,W2F,6),(20,21,640,WOF,3)):
        srd(a,8,lo,hi,nk*1280)
        gs=list(range(n))
        for t,it in enumerate(gs):
            a(f"s_add_u32 s{44+t}, s40, {320*it}")
            a(f"s_mul_i32 s51, s{44+t}, 1639"); a("s_lshr_b32 s51, s51, 16")
            a("s_mul_i32 s52, s51, 40"); a(f"s_sub_u32 s52, s{44+t}, s52")
            a("s_mul_i32 s51, s51, 40960"); a("s_lshl_b32 s52, s52, 5"); a("s_add_u32 s51, s51, s52")
            for j in range(8):
                a(f"buffer_load_ushort v{40+8*t+j}, v{1 if j<4 else 2}, s[8:11], s51 offen offset:{(j&3)*1280}")
        a("s_waitcnt vmcnt(0)")
        for t,it in enumerate(gs):
            for j in range(4): a(f"v_lshl_or_b32 v{8+4*t+j}, v{40+8*t+2*j+1}, 16, v{40+8*t+2*j}")
            a(f"s_lshl_b32 s51, s{44+t}, 10"); a(f"s_add_u32 s51, s51, {dst}")
            a(f"buffer_store_dwordx4 v[{8+4*t}:{8+4*t+3}], v3, s[16:19], s51 offen")
        a("s_nop 1")
```

```python
from asmlib import *
from k1 import QH,KH,VT,VTP,HF,W2F,WOF,OF,GB
KF=0; VF=72; S=144; Q=216; O=232
vKO=240; vVO=241; vVO1=242; vQO=243; vOO=244; vOO1=245; vNEG=246; vM=247; vT=248; vT2=249; vBP=250; vL=251

def attn_body(a, s_m, s_h, pfx, sc1=""):
    L=vL
    a(f"v_and_b32 v151, 15, v{L}"); a(f"v_lshrrev_b32 v152, 4, v{L}")
    a("v_lshrrev_b32 v153, 2, v151"); a("v_and_b32 v154, 3, v151"); a("v_lshl_add_u32 v153, v153, 3, v154")
    a(f"s_lshl_b32 s72, s{s_h}, 11"); a(f"s_lshl_b32 s73, s{s_m}, 6"); a("s_add_u32 s72, s72, s73")
    a("s_mul_i32 s74, s72, 40")
    a("v_mul_u32_u24 v153, 40, v153"); a("v_lshl_add_u32 v153, v152, 4, v153"); a(f"v_add_u32 v{vKO}, s74, v153")
    a("v_mul_u32_u24 v153, 40, v151"); a("v_lshl_add_u32 v153, v152, 4, v153"); a(f"v_add_u32 v{vQO}, s74, v153")
    a(f"s_mul_i32 s75, s{s_h}, 20"); a("v_add_u32 v153, s75, v151"); a(f"v_mul_u32_u24 v153, {VTP}, v153")
    a("v_lshl_add_u32 v153, v152, 4, v153"); a("s_lshl_b32 s76, s73, 1"); a(f"v_add_u32 v{vVO}, s76, v153")
    a(f"v_add_u32 v{vVO1}, {16*VTP}, v{vVO}")
    def ldK(g):
        sl=g%9
        a(f"s_movk_i32 s77, {1280*g}")
        for ab in range(2):
            a.vmem(f"buffer_load_dwordx4 v[{KF+8*sl+4*ab}:{KF+8*sl+4*ab+3}], v{vKO}, s[8:11], s77 offen offset:{160*ab}",f"K{g}")
    def ldV(g):
        sl=g%9
        a.vmem(f"buffer_load_dwordx4 v[{VF+8*sl}:{VF+8*sl+3}], v{vVO}, s[12:15], 0 offen offset:{64*g}",f"V{g}")
        a("s_mov_b64 exec, s[78:79]")
        a.vmem(f"buffer_load_dwordx4 v[{VF+8*sl+4}:{VF+8*sl+7}], v{vVO1}, s[12:15], 0 offen offset:{64*g}",f"V{g}")
        a("s_mov_b64 exec, -1")
    a("v_cmp_gt_u32 s[78:79], 4, v151")
    for qb in range(4):
        a.vmem(f"buffer_load_dwordx4 v[{Q+4*qb}:{Q+4*qb+3}], v{vQO}, s[16:19], 0 offen offset:{640*qb}","Q")
    for g in range(9): ldK(g)
    a("v_cmp_eq_u32 vcc, 4, v151"); a("v_mov_b32 v153, 0x3f803f80"); a("s_nop 0"); a("v_cndmask_b32 v153, 0, v153, vcc")
    for sl in range(9):
        for r in range(4): a(f"v_mov_b32 v{VF+8*sl+4+r}, v153")
    for g in range(9): ldV(g)
    a("v_lshlrev_b32 v153, 3, v152")
    for par in range(2):
        for k in range(8):
            a(f"v_add_u32 v154, {k-16*par}, v153")
            a(f"v_cmp_le_i32 s[{40+2*(8*par+k)}:{41+2*(8*par+k)}], v154, v151")
    a(f"v_mov_b32 v{vNEG}, 0xf149f2ca")
    a("v_lshl_add_u32 v153, v152, 2, s75")
    a("v_lshrrev_b32 v154, 5, v153"); a("v_lshlrev_b32 v154, 10, v154"); a("v_lshl_add_u32 v154, v151, 4, v154")
    a("v_bfe_u32 v155, v153, 3, 2"); a("v_lshl_add_u32 v154, v155, 8, v154"); a("v_and_b32 v155, 4, v153"); a(f"v_lshl_add_u32 v{vOO}, v155, 1, v154")
    a("s_add_u32 s80, s75, 16"); a("s_lshr_b32 s81, s80, 5"); a("s_lshl_b32 s81, s81, 10"); a("s_bfe_u32 s82, s80, 0x20003"); a("s_lshl_b32 s82, s82, 8")
    a("s_add_u32 s81, s81, s82"); a("s_and_b32 s82, s80, 4"); a("s_lshl_b32 s82, s82, 1"); a("s_add_u32 s81, s81, s82")
    a(f"v_lshl_add_u32 v{vOO1}, v151, 4, s81")
    a(f"v_add_u32 v{vBP}, 16, v151"); a(f"v_lshlrev_b32 v{vBP}, 2, v{vBP}")
    a(f"s_mul_i32 s83, s{s_m}, 81920"); a(f"s_add_u32 s83, s83, {OF}")
    a("v_cmp_gt_u32 s[84:85], 3, v152"); a("v_cmp_gt_u32 s[86:87], 2, v152"); a("v_cmp_eq_u32 s[88:89], 0, v152")
    a.wait_vm("Q")
    for qb in range(4):
        for r in range(4): a(f"v_cndmask_b32 v{Q+4*qb+r}, 0, v{Q+4*qb+r}, s[{84 if r<2 else 86}:{85 if r<2 else 87}]")
    a(f"s_lshl_b32 s90, s{s_m}, 1"); a("s_sub_i32 s90, 8, s90"); a("s_max_i32 s90, s90, 0")
    def zeroV(g):
        lab=a.newlabel(pfx+"zv"); sl=g%9
        a(f"s_cmp_gt_u32 s90, {g}"); a(f"s_cbranch_scc0 {lab}")
        for r in range(4): a(f"v_mov_b32 v{VF+8*sl+r}, 0");
        a("s_mov_b64 exec, s[78:79]")
        for r in range(4): a(f"v_mov_b32 v{VF+8*sl+4+r}, 0")
        a("s_mov_b64 exec, -1")
        a.label(lab)
    for qb in range(4):
        g0=qb>>1; par=qb&1
        for gr in range(9):
            g=g0+gr; sl=g%9
            a.wait_vm(f"K{g}")
            for ab in range(2):
                a(f"v_mfma_f32_16x16x32_bf16 v[{S+8*gr+4*ab}:{S+8*gr+4*ab+3}], v[{KF+8*sl+4*ab}:{KF+8*sl+4*ab+3}], v[{Q+4*qb}:{Q+4*qb+3}], 0")
        if qb==1: ldK(9)
        a("s_nop 7")
        for k in range(8):
            m=f"s[{40+2*(8*par+k)}:{41+2*(8*par+k)}]"
            a(f"v_cndmask_b32 v{S+k}, v{S+k}, v{vNEG}, {m}")
            a(f"v_cndmask_b32 v{S+64+k}, v{vNEG}, v{S+64+k}, {m}")
        for gr in range(8):
            g=g0+gr
            if g<8:
                lab=a.newlabel(pfx+"inv")
                a(f"s_cmp_gt_u32 s90, {g}"); a(f"s_cbranch_scc0 {lab}")
                for k in range(8): a(f"v_mov_b32 v{S+8*gr+k}, v{vNEG}")
                a.label(lab)
        a(f"v_max3_f32 v{vM}, v{S}, v{S+1}, v{S+2}")
        for k in range(3,71,2): a(f"v_max3_f32 v{vM}, v{vM}, v{S+k}, v{S+k+1}")
        a(f"v_max_f32 v{vM}, v{vM}, v{S+71}")
        a(f"v_mov_b32 v{vT}, v{vM}"); a("s_nop 1"); a(f"v_permlane32_swap_b32 v{vM}, v{vT}"); a("s_nop 1"); a(f"v_max_f32 v{vM}, v{vM}, v{vT}")
        a(f"v_mov_b32 v{vT}, v{vM}"); a("s_nop 1"); a(f"v_permlane16_swap_b32 v{vM}, v{vT}"); a("s_nop 1"); a(f"v_max_f32 v{vM}, v{vM}, v{vT}")
        for gr in range(9):
            g=g0+gr; sl=g%9; b=S+8*gr
            for k in range(8): a(f"v_sub_f32 v{b+k}, v{b+k}, v{vM}")
            for k in range(8): a(f"v_exp_f32 v{b+k}, v{b+k}")
            a("s_nop 0")
            for k in range(4): a(f"v_cvt_pk_bf16_f32 v{b+k}, v{b+2*k}, v{b+2*k+1}")
            a.wait_vm(f"V{g}")
            if qb in (0,) and g<8: zeroV(g)
            a("s_nop 1")
            for dt in range(2):
                c = "0" if gr==0 else f"v[{O+4*dt}:{O+4*dt+3}]"
                a(f"v_mfma_f32_16x16x32_bf16 v[{O+4*dt}:{O+4*dt+3}], v[{VF+8*sl+4*dt}:{VF+8*sl+4*dt+3}], v[{b}:{b+3}], {c}")
        if qb==1: ldV(9)
        a("s_nop 7")
        a(f"ds_bpermute_b32 v{vT}, v{vBP}, v{O+4}")
        a("s_waitcnt lgkmcnt(0)")
        a(f"v_rcp_f32 v{vT}, v{vT}"); a("s_nop 0")
        for k in range(8): a(f"v_mul_f32 v{O+k}, v{O+k}, v{vT}")
        for k in range(4): a(f"v_cvt_pk_bf16_f32 v{O+k}, v{O+2*k}, v{O+2*k+1}")
        a(f"s_add_u32 s91, s83, {20480*qb}")
        a.vmem(f"buffer_store_dwordx2 v[{O}:{O+1}], v{vOO}, s[16:19], s91 offen {sc1}","st")
        a("s_mov_b64 exec, s[88:89]")
        a.vmem(f"buffer_store_dwordx2 v[{O+2}:{O+3}], v{vOO1}, s[16:19], s91 offen {sc1}","st")
        a("s_mov_b64 exec, -1")
        a("s_nop 1")

def attn_loop(a, s_m, s_h, pfx, sc1=""):
    L=vL
    a(f"v_and_b32 v151, 15, v{L}"); a(f"v_lshrrev_b32 v152, 4, v{L}")
    a("v_lshrrev_b32 v153, 2, v151"); a("v_and_b32 v154, 3, v151"); a("v_lshl_add_u32 v153, v153, 3, v154")
    a(f"s_lshl_b32 s72, s{s_h}, 11"); a(f"s_lshl_b32 s73, s{s_m}, 6"); a("s_add_u32 s72, s72, s73")
    a("s_mul_i32 s74, s72, 40")
    a("v_mul_u32_u24 v153, 40, v153"); a("v_lshl_add_u32 v153, v152, 4, v153"); a(f"v_add_u32 v{vKO}, s74, v153")
    a("v_mul_u32_u24 v153, 40, v151"); a("v_lshl_add_u32 v153, v152, 4, v153"); a(f"v_add_u32 v{vQO}, s74, v153")
    a(f"s_mul_i32 s75, s{s_h}, 20"); a("v_add_u32 v153, s75, v151"); a(f"v_mul_u32_u24 v153, {VTP}, v153")
    a("v_lshl_add_u32 v153, v152, 4, v153"); a("s_lshl_b32 s76, s73, 1"); a(f"v_add_u32 v{vVO}, s76, v153")
    a(f"v_add_u32 v{vVO1}, {16*VTP}, v{vVO}")
    def ldK(g):
        sl=g%9
        a(f"s_movk_i32 s77, {1280*g}")
        for ab in range(2):
            a.vmem(f"buffer_load_dwordx4 v[{KF+8*sl+4*ab}:{KF+8*sl+4*ab+3}], v{vKO}, s[8:11], s77 offen offset:{160*ab}",f"K{g}")
    def ldV(g):
        sl=g%9
        a.vmem(f"buffer_load_dwordx4 v[{VF+8*sl}:{VF+8*sl+3}], v{vVO}, s[12:15], 0 offen offset:{64*g}",f"V{g}")
        a("s_mov_b64 exec, s[78:79]")
        a.vmem(f"buffer_load_dwordx4 v[{VF+8*sl+4}:{VF+8*sl+7}], v{vVO1}, s[12:15], 0 offen offset:{64*g}",f"V{g}")
        a("s_mov_b64 exec, -1")
    a("v_cmp_gt_u32 s[78:79], 4, v151")
    for qb in range(4):
        a.vmem(f"buffer_load_dwordx4 v[{Q+4*qb}:{Q+4*qb+3}], v{vQO}, s[16:19], 0 offen offset:{640*qb}","Q")
    for g in range(9): ldK(g)
    a("v_cmp_eq_u32 vcc, 4, v151"); a("v_mov_b32 v153, 0x3f803f80"); a("s_nop 0"); a("v_cndmask_b32 v153, 0, v153, vcc")
    for sl in range(9):
        for r in range(4): a(f"v_mov_b32 v{VF+8*sl+4+r}, v153")
    for g in range(9): ldV(g)
    a("s_waitcnt lgkmcnt(0)"); a("s_barrier")
    a("v_lshlrev_b32 v253, 3, v152"); a("v_mov_b32 v252, v151")
    a(f"v_mov_b32 v{vNEG}, 0xf149f2ca")
    a("v_lshl_add_u32 v153, v152, 2, s75")
    a("v_lshrrev_b32 v154, 5, v153"); a("v_lshlrev_b32 v154, 10, v154"); a("v_lshl_add_u32 v154, v151, 4, v154")
    a("v_bfe_u32 v155, v153, 3, 2"); a("v_lshl_add_u32 v154, v155, 8, v154"); a("v_and_b32 v155, 4, v153"); a(f"v_lshl_add_u32 v{vOO}, v155, 1, v154")
    a("s_add_u32 s80, s75, 16"); a("s_lshr_b32 s81, s80, 5"); a("s_lshl_b32 s81, s81, 10"); a("s_bfe_u32 s82, s80, 0x20003"); a("s_lshl_b32 s82, s82, 8")
    a("s_add_u32 s81, s81, s82"); a("s_and_b32 s82, s80, 4"); a("s_lshl_b32 s82, s82, 1"); a("s_add_u32 s81, s81, s82")
    a(f"v_lshl_add_u32 v{vOO1}, v151, 4, s81")
    a(f"v_add_u32 v{vBP}, 16, v151"); a(f"v_lshlrev_b32 v{vBP}, 2, v{vBP}")
    a(f"s_mul_i32 s83, s{s_m}, 81920"); a(f"s_add_u32 s83, s83, {OF}")
    a("v_cmp_gt_u32 s[84:85], 3, v152"); a("v_cmp_gt_u32 s[86:87], 2, v152"); a("v_cmp_eq_u32 s[88:89], 0, v152")
    a.wait_vm("Q")
    for qb in range(4):
        for r in range(4): a(f"v_cndmask_b32 v{Q+4*qb+r}, 0, v{Q+4*qb+r}, s[{84 if r<2 else 86}:{85 if r<2 else 87}]")
    a(f"s_lshl_b32 s90, s{s_m}, 1"); a("s_sub_i32 s90, 8, s90"); a("s_max_i32 s90, s90, 0")
    def zeroV(g):
        lab=a.newlabel(pfx+"zv"); sl=g%9
        a(f"s_cmp_gt_u32 s90, {g}"); a(f"s_cbranch_scc0 {lab}")
        for r in range(4): a(f"v_mov_b32 v{VF+8*sl+r}, 0");
        a("s_mov_b64 exec, s[78:79]")
        for r in range(4): a(f"v_mov_b32 v{VF+8*sl+4+r}, 0")
        a("s_mov_b64 exec, -1")
        a.label(lab)
    a("s_waitcnt vmcnt(0)"); a.vm=[]
    for g in range(8): zeroV(g)
    stamp(a,11)
    a("s_mov_b32 s92, 0"); a("s_mov_b32 s91, s83")
    lp=pfx+"_QB"
    a.label(lp)
    if STAMP:
        a("s_memtime s[100:101]"); a("s_waitcnt lgkmcnt(0)")
        a("s_cmp_eq_u32 s92, 1"); a("s_cselect_b32 s98, s100, s98"); a("s_cmp_eq_u32 s92, 2"); a("s_cselect_b32 s99, s100, s99")
    for sl in range(9):
        for ab in range(2):
            a(f"v_mfma_f32_16x16x32_bf16 v[{S+8*sl+4*ab}:{S+8*sl+4*ab+3}], v[{KF+8*sl+4*ab}:{KF+8*sl+4*ab+3}], v[{Q}:{Q+3}], 0")
    a("s_cmp_lg_u32 s92, 1"); a(f"s_cbranch_scc1 {lp}_a")
    ldK(9)
    a.label(lp+"_a")
    a("s_and_b32 s93, s92, 1"); a("s_lshl_b32 s93, s93, 4")
    a("v_subrev_u32 v254, s93, v253")
    for k in range(8):
        a(f"v_cmp_le_i32 s[{40+2*k}:{41+2*k}], v254, v252")
        if k<7: a("v_add_u32 v254, 1, v254")
    for r in range(3): a(f"v_mov_b32 v{Q+4*r}, v{Q+4*r+4}"); a(f"v_mov_b32 v{Q+4*r+1}, v{Q+4*r+5}"); a(f"v_mov_b32 v{Q+4*r+2}, v{Q+4*r+6}"); a(f"v_mov_b32 v{Q+4*r+3}, v{Q+4*r+7}")
    a("s_nop 3")
    a("s_cmp_ge_u32 s92, 2"); a(f"s_cbranch_scc1 {lp}_m2")
    for k in range(8):
        m=f"s[{40+2*k}:{41+2*k}]"
        a(f"v_cndmask_b32 v{S+k}, v{S+k}, v{vNEG}, {m}")
        a(f"v_cndmask_b32 v{S+64+k}, v{vNEG}, v{S+64+k}, {m}")
    a("s_mov_b32 s93, 0"); a(f"s_branch {lp}_m3")
    a.label(lp+"_m2")
    for k in range(8):
        m=f"s[{40+2*k}:{41+2*k}]"
        a(f"v_cndmask_b32 v{S+8+k}, v{S+8+k}, v{vNEG}, {m}")
        a(f"v_cndmask_b32 v{S+k}, v{vNEG}, v{S+k}, {m}")
    a("s_mov_b32 s93, 9")
    a.label(lp+"_m3")
    a(f"s_cmp_eq_u32 s90, 0"); a(f"s_cbranch_scc1 {lp}_nv")
    for sl in range(8):
        lab=a.newlabel(pfx+"inv")
        if sl==0: a("s_cmp_gt_u32 s90, s93")
        else: a(f"s_cmp_gt_u32 s90, {sl}")
        a(f"s_cbranch_scc0 {lab}")
        for k in range(8): a(f"v_mov_b32 v{S+8*sl+k}, v{vNEG}")
        a.label(lab)
    a.label(lp+"_nv")
    a(f"v_max3_f32 v{vM}, v{S}, v{S+1}, v{S+2}")
    for k in range(3,71,2): a(f"v_max3_f32 v{vM}, v{vM}, v{S+k}, v{S+k+1}")
    a(f"v_max_f32 v{vM}, v{vM}, v{S+71}")
    a(f"v_mov_b32 v{vT}, v{vM}"); a("s_nop 1"); a(f"v_permlane32_swap_b32 v{vM}, v{vT}"); a("s_nop 1"); a(f"v_max_f32 v{vM}, v{vM}, v{vT}")
    a(f"v_mov_b32 v{vT}, v{vM}"); a("s_nop 1"); a(f"v_permlane16_swap_b32 v{vM}, v{vT}"); a("s_nop 1"); a(f"v_max_f32 v{vM}, v{vM}, v{vT}")
    for sl in range(9):
        b=S+8*sl
        for k in range(8): a(f"v_sub_f32 v{b+k}, v{b+k}, v{vM}")
        for k in range(8): a(f"v_exp_f32 v{b+k}, v{b+k}")
        a("s_nop 0")
        for k in range(4): a(f"v_cvt_pk_bf16_f32 v{b+k}, v{b+2*k}, v{b+2*k+1}")
        a("s_nop 1")
        for dt in range(2):
            c = "0" if sl==0 else f"v[{O+4*dt}:{O+4*dt+3}]"
            a(f"v_mfma_f32_16x16x32_bf16 v[{O+4*dt}:{O+4*dt+3}], v[{VF+8*sl+4*dt}:{VF+8*sl+4*dt+3}], v[{b}:{b+3}], {c}")
    a("s_cmp_lg_u32 s92, 1"); a(f"s_cbranch_scc1 {lp}_b")
    ldV(9)
    a.label(lp+"_b")
    a("s_nop 7")
    a(f"ds_bpermute_b32 v{vT}, v{vBP}, v{O+4}")
    a("s_waitcnt lgkmcnt(0)")
    a(f"v_rcp_f32 v{vT}, v{vT}"); a("s_nop 0")
    for k in range(8): a(f"v_mul_f32 v{O+k}, v{O+k}, v{vT}")
    for k in range(4): a(f"v_cvt_pk_bf16_f32 v{O+k}, v{O+2*k}, v{O+2*k+1}")
    a(f"buffer_store_dwordx2 v[{O}:{O+1}], v{vOO}, s[16:19], s91 offen {sc1}")
    a("s_mov_b64 exec, s[88:89]")
    a(f"buffer_store_dwordx2 v[{O+2}:{O+3}], v{vOO1}, s[16:19], s91 offen {sc1}")
    a("s_mov_b64 exec, -1")
    a("s_add_u32 s91, s91, 20480")
    a("s_add_u32 s92, s92, 1"); a("s_cmp_lt_u32 s92, 4")
    a("s_waitcnt vmcnt(2)")
    a(f"s_cbranch_scc1 {lp}")
    a.vm=[]

def attn_srds(a, wslo, wshi):
    srd(a,8,wslo,wshi,2621440+10240,KH-10240)
    srd(a,12,wslo,wshi,640*VTP+512,VT-512)
    srd(a,16,wslo,wshi,0x2000000)

def gen_k2(a):
    a.label("k2_kernel")
    a("s_cmp_ge_u32 s2, 256"); a("s_cbranch_scc1 K2_END")
    a("s_load_dwordx2 s[30:31], s[0:1], 80")
    a(f"v_and_b32 v{vL}, 63, v0"); a("v_lshrrev_b32 v1, 6, v0"); a("s_nop 0"); a("v_readfirstlane_b32 s36, v1")
    a("s_and_b32 s34, s2, 7"); a("s_lshl_b32 s34, s34, 2"); a("s_lshr_b32 s35, s2, 6"); a("s_add_u32 s34, s34, s35"); a("s_bfe_u32 s35, s2, 0x30003"); a("s_lshl_b32 s35, s35, 2"); a("s_add_u32 s35, s35, s36")
    a("s_waitcnt lgkmcnt(0)")
    attn_srds(a,30,31)
    attn_body(a,34,35,"K2")
    a.label("K2_END")
    a("s_endpgm")
```

```python
from asmlib import *
from k1 import QH,KH,VT,VTP,HF,W2F,WOF,OF,GB
import k2,k3
ACC=0; FR=80; NS=4; G=200
vA=224; vW=225; vL=226; vX=227; vRW=228; vRR=229; vRR2=230; vFO=231; TT=232; TP=242; LCNT=102400
def gemm_part(a, nk, sA, sW, strideA_kg, tag):
    def ld(k):
        b=FR+36*(k%NS)
        for t in range(4):
            a(f"s_add_u32 s60, s{sA}, {t*strideA_kg+k*1024}")
            a.vmem(f"buffer_load_dwordx4 v[{b+4*t}:{b+4*t+3}], v{vA}, s[16:19], s60 offen",f"{tag}{k}")
        a(f"s_add_u32 s60, s{sW}, {k*40960}")
        for j in range(5):
            if j==4:
                a.vmem(f"buffer_load_dwordx4 v[{b+16+4*j}:{b+16+4*j+3}], v{vW}, s[16:19], s60 offen",f"{tag}{k}")
            else:
                a.vmem(f"buffer_load_dwordx4 v[{b+16+4*j}:{b+16+4*j+3}], v{vA}, s[16:19], s60 offen offset:{1024*j}",f"{tag}{k}")
    return ld
def mm(a,k,first):
    b=FR+36*(k%NS)
    for t in range(4):
        for j in range(5):
            d=ACC+4*(5*t+j)
            c="0" if first else f"v[{d}:{d+3}]"
            a(f"v_mfma_f32_16x16x32_bf16 v[{d}:{d+3}], v[{b+16+4*j}:{b+16+4*j+3}], v[{b+4*t}:{b+4*t+3}], {c}")
def reduce(a, dst):
    a("s_nop 7")
    for t in range(4):
        for j in range(5):
            d=ACC+4*(5*t+j)
            a.lds(f"ds_write_b128 v{vRW}, v[{d}:{d+3}] offset:{(t*5+j)*1024}","rw")
    a.wait_lg_all(); a("s_barrier")
    for w in range(4):
        for j in range(5):
            r = dst+4*j if w==0 else ACC+20*w+4*j
            a.lds(f"ds_read_b128 v[{r}:{r+3}], v{vRR if w<2 else vRR2} offset:{(w&1)*20480+j*1024}","rr")
    a.wait_lg_all()
    for w in range(1,4):
        for k in range(20): a(f"v_add_f32 v{dst+k}, v{dst+k}, v{ACC+20*w+k}")
CNT=0x1C10000
def gen_k23(a):
    a.label("k23_kernel")
    a("s_cmp_ge_u32 s2, 256"); a("s_cbranch_scc1 K23_END")
    stamp(a,0); stamp(a,10)
    a("s_load_dwordx2 s[4:5], s[0:1], 0")
    a("s_load_dwordx4 s[24:27], s[0:1], 56")
    a("s_load_dwordx4 s[28:31], s[0:1], 72")
    a("v_lshrrev_b32 v1, 6, v0"); a("s_nop 0"); a("v_readfirstlane_b32 s33, v1")
    a("s_and_b32 s36, s33, 3")
    a("s_and_b32 s34, s2, 7"); a("s_lshl_b32 s34, s34, 2"); a("s_lshr_b32 s35, s2, 6"); a("s_add_u32 s34, s34, s35"); a("s_bfe_u32 s35, s2, 0x30003")
    a(f"v_mov_b32 v1, {LCNT}"); a("v_mov_b32 v2, 0"); a("ds_write_b32 v1, v2")
    a("s_cmp_ge_u32 s33, 4"); a("s_cbranch_scc1 K23_F")
    a(f"v_and_b32 v{k2.vL}, 63, v0")
    a("s_lshl_b32 s35, s35, 2"); a("s_add_u32 s35, s35, s36")
    a("s_waitcnt lgkmcnt(0)")
    k2.attn_srds(a,30,31)
    a("s_setprio 3")
    k2.attn_loop(a,34,35,"K2",sc1="sc1")
    a("s_waitcnt vmcnt(0)")
    stamp(a,12)
    a(f"v_mov_b32 v1, {LCNT}"); a("v_mov_b32 v2, 1")
    a("s_mov_b64 exec, 1")
    a("ds_add_rtn_u32 v3, v1, v2")
    a("s_waitcnt lgkmcnt(0)")
    a("v_readfirstlane_b32 s38, v3")
    a("s_mov_b64 exec, -1")
    a("s_cmp_lg_u32 s38, 3"); a("s_cbranch_scc1 K23_END")
    a("s_lshl_b32 s37, s34, 8"); a(f"s_add_u32 s37, s37, {CNT}"); a("v_mov_b32 v1, s37"); a("v_mov_b32 v2, 1")
    a("s_mov_b64 exec, 1")
    a("global_atomic_add v1, v2, s[30:31] sc1")
    a("s_barrier")
    a.label("K23_POLL")
    a("global_load_dword v3, v1, s[30:31] sc1")
    a("s_waitcnt vmcnt(0)")
    a("v_readfirstlane_b32 s38, v3")
    a("s_cmp_ge_u32 s38, 8"); a("s_cbranch_scc1 K23_PD")
    a("s_sleep 4"); a("s_branch K23_POLL")
    a.label("K23_PD")
    a("s_mov_b64 exec, -1")
    stamp(a,13)
    if STAMP:
        a("s_mov_b32 s84, s94"); a("s_mov_b32 s85, s95"); a("s_mov_b32 s86, s96"); a("s_mov_b32 s87, s97"); a("s_mov_b32 s88, s98"); a("s_mov_b32 s89, s99")
    stamp_out(a,6,8,128,5)
    a("s_barrier")
    a("s_endpgm")
    a.label("K23_F"); a.vm=[]; a.lg=[]
    a(f"v_and_b32 v{vL}, 63, v0")
    a("s_waitcnt lgkmcnt(0)")
    srd(a,16,30,31,0x2000000); srd(a,8,4,5,2048*1280); srd(a,12,26,27,2048*1280); srd(a,20,24,25,1280)
    a(f"v_lshlrev_b32 v{vA}, 4, v{vL}"); a(f"v_add_u32 v{vW}, 4096, v{vA}")
    a("s_mul_i32 s40, s34, 200704"); a("s_mul_i32 s37, s36, 12288"); a("s_add_u32 s40, s40, s37"); a(f"s_add_u32 s40, s40, {HF}")
    a("s_mul_i32 s41, s36, 491520"); a("s_mul_i32 s37, s35, 5120"); a("s_add_u32 s41, s41, s37"); a(f"s_add_u32 s41, s41, {W2F}")
    ld=gemm_part(a,12,40,41,50176,"F")
    a("s_barrier")
    ld(0); ld(1); ld(2)
    a("s_mul_i32 s37, s36, 20480"); a(f"v_add_u32 v{vRW}, s37, v{vA}")
    a("s_mul_i32 s37, s36, 5120"); a(f"v_add_u32 v{vRR}, s37, v{vA}"); a(f"v_add_u32 v{vRR2}, 40960, v{vRR}")
    a("s_mul_i32 s42, s34, 81920"); a("s_mul_i32 s37, s36, 5120"); a("s_add_u32 s42, s42, s37"); a(f"s_add_u32 s42, s42, {OF}")
    a("s_mul_i32 s43, s36, 204800"); a("s_mul_i32 s37, s35, 5120"); a("s_add_u32 s43, s43, s37"); a(f"s_add_u32 s43, s43, {WOF}")
    a(f"v_and_b32 v1, 15, v{vL}"); a(f"v_lshrrev_b32 v2, 4, v{vL}")
    a("s_lshl_b32 s37, s34, 6"); a("s_lshl_b32 s38, s36, 4"); a("s_add_u32 s37, s37, s38"); a("v_add_u32 v1, s37, v1"); a("v_mul_u32_u24 v1, 1280, v1")
    a("s_mul_i32 s38, s35, 160"); a("v_lshlrev_b32 v2, 3, v2"); a("v_add_u32 v2, s38, v2"); a(f"v_add_u32 v{vX}, v1, v2")
    a(f"v_mov_b32 v{vFO}, v2")
    for k in range(4):
        ld(k+3); a.wait_vm(f"F{k}"); mm(a,k,k==0)
    a("s_mov_b32 s45, 0"); a.label("K23_FL")
    for k in range(4,8):
        if k==4:
            ld(k+3); a("s_waitcnt vmcnt(27)")
        else:
            l1=a.newlabel("FLs"); l2=a.newlabel("FLt")
            a("s_cmp_eq_u32 s45, 1"); a(f"s_cbranch_scc1 {l1}")
            ld(k+3); a("s_waitcnt vmcnt(27)"); a(f"s_branch {l2}")
            a.label(l1)
            if k==6:
                for j in range(5): a(f"buffer_load_dwordx2 v[{TT+2*j}:{TT+2*j+1}], v{vFO}, s[20:23], 0 offen offset:{32*j}")
            a(f"s_waitcnt vmcnt({ {5:18,6:14,7:5}[k] })")
            a.label(l2)
        mm(a,k,False)
    a("s_add_u32 s40, s40, 4096"); a("s_add_u32 s41, s41, 163840")
    a("s_add_u32 s45, s45, 1"); a("s_cmp_lt_u32 s45, 2"); a("s_cbranch_scc1 K23_FL")
    a.vm=["b2"]*5
    stamp(a,1)
    a("s_nop 7")
    for t in range(4):
        for j in range(5):
            d=ACC+4*(5*t+j)
            a.lds(f"ds_write_b128 v{vRW}, v[{d}:{d+3}] offset:{(t*5+j)*1024}","rw")
    def ldw(k):
        a(f"s_add_u32 s60, s43, {k*40960}")
        for j in range(5):
            r=FR+20*(k%3)+4*j
            if j==4: a.vmem(f"buffer_load_dwordx4 v[{r}:{r+3}], v{vW}, s[16:19], s60 offen",f"W{k}")
            else: a.vmem(f"buffer_load_dwordx4 v[{r}:{r+3}], v{vA}, s[16:19], s60 offen offset:{1024*j}",f"W{k}")
    a.wait_lg_all(); a("s_barrier")
    for k in range(3): ldw(k)
    stamp(a,2)
    for w in range(4):
        for j in range(5):
            r = G+4*j if w==0 else ACC+20*w+4*j
            a.lds(f"ds_read_b128 v[{r}:{r+3}], v{vRR if w<2 else vRR2} offset:{(w&1)*20480+j*1024}","rr")
    a.wait_lg_all()
    for w in range(1,4):
        for k in range(20): a(f"v_add_f32 v{G+k}, v{G+k}, v{ACC+20*w+k}")
    a.wait_vm("b2")
    a("s_mov_b32 s44, 0xbfb8aa3b")
    for j in range(5):
        for h in range(2):
            a(f"v_lshlrev_b32 v{TP}, 16, v{TT+2*j+h}"); a(f"v_and_b32 v{TP+1}, 0xffff0000, v{TT+2*j+h}")
            for e in range(2):
                r=G+4*j+2*h+e
                a(f"v_add_f32 v{r}, v{r}, v{TP+e}")
                a(f"v_mul_f32 v{TP+2+e}, s44, v{r}"); a(f"v_exp_f32 v{TP+2+e}, v{TP+2+e}"); a("s_nop 0")
                a(f"v_add_f32 v{TP+2+e}, 1.0, v{TP+2+e}"); a(f"v_rcp_f32 v{TP+2+e}, v{TP+2+e}"); a("s_nop 0")
                a(f"v_mul_f32 v{r}, v{r}, v{TP+2+e}")
    a(f"v_add_u32 v1, 81920, v{vRR}")
    for j in range(5): a.lds(f"ds_write_b128 v1, v[{G+4*j}:{G+4*j+3}] offset:{j*1024}","gp")
    a.wait_lg_all()
    a("s_barrier")
    stamp(a,3)
    SETS=[140,156,172,188,204]
    def ldo(k):
        b=SETS[k]
        for t in range(4):
            a(f"s_add_u32 s60, s42, {t*20480+k*1024}")
            a.vmem(f"buffer_load_dwordx4 v[{b+4*t}:{b+4*t+3}], v{vA}, s[16:19], s60 offen sc1",f"O{k}")
    for k in range(5): ldo(k)
    for k in range(5):
        a.wait_vm(f"O{k}"); a.wait_vm(f"W{k}")
        b=SETS[k]
        for t in range(4):
            for j in range(5):
                d=ACC+4*(5*t+j)
                c="0" if k==0 else f"v[{d}:{d+3}]"
                a(f"v_mfma_f32_16x16x32_bf16 v[{d}:{d+3}], v[{FR+20*(k%3)+4*j}:{FR+20*(k%3)+4*j+3}], v[{b+4*t}:{b+4*t+3}], {c}")
        if k+3<5: ldw(k+3)
        if k==2:
            for j in range(5): a.vmem(f"buffer_load_dwordx2 v[{232+2*j}:{232+2*j+1}], v{vX}, s[8:11], 0 offen offset:{32*j}","xr")
    stamp(a,4)
    R=140
    reduce(a,R)
    GG=160
    a(f"v_add_u32 v1, 81920, v{vRR}")
    for j in range(5): a.lds(f"ds_read_b128 v[{GG+4*j}:{GG+4*j+3}], v1 offset:{j*1024}","gr")
    a.wait_lg_all(); a.wait_vm("xr")
    T2=TP
    for j in range(5):
        for h in range(2):
            a(f"v_lshlrev_b32 v{T2}, 16, v{232+2*j+h}"); a(f"v_and_b32 v{T2+1}, 0xffff0000, v{232+2*j+h}")
            for e in range(2):
                a(f"v_fma_f32 v{T2+e}, v{R+4*j+2*h+e}, v{GG+4*j+2*h+e}, v{T2+e}")
            a(f"v_cvt_pk_bf16_f32 v{T2+4+h}, v{T2}, v{T2+1}")
        a(f"buffer_store_dwordx2 v[{T2+4}:{T2+5}], v{vX}, s[12:15], 0 offen offset:{32*j}")
        a("s_nop 1")
    if STAMP:
        a("s_waitcnt vmcnt(0)"); stamp(a,5); stamp_out(a,6,8,144,1)
    a.label("K23_END")
    a("s_endpgm")
```

```python
import sys
from asmlib import *
import k1b as k1,k23
hdr=open('recurrent_scan__sliding_block__dense_activation_squared_relu__prompt.s.ref').read().split("; Override")[0]
out=hdr
out+="; @launch kernel=k1_kernel grid=(256,1,1) block=(512,1,1) lds=163840\n"
out+="; @launch kernel=k23_kernel grid=(256,1,1) block=(512,1,1) lds=102656\n"
out+='.amdgcn_target "amdgcn-amd-amdhsa--gfx950"\n.text\n'
for name,fn in (("k1_kernel",k1.gen_k1),("k23_kernel",k23.gen_k23)):
    a=Asm(); fn(a)
    out+=f".globl {name}\n.p2align 8\n.type {name},@function\n"+a.text()
out+='.section .rodata,"a"\n.p2align 6\n'
out+=kdesc("k1_kernel",256,256)+".p2align 6\n"+kdesc("k23_kernel",256,256)
open('recurrent_scan__sliding_block__dense_activation_squared_relu__prompt.s','w').write(out)
```

```python
from asmlib import *
from k1 import QH,KH,VT,VTP,HF,W2F,WOF,OF,QSCALE,fbits
XS=40960
WSL=[122880,139264,81920,98304]
MISC=155648; ST=MISC; CSA=MISC+2048; BBA=MISC+2560; STG=0x1C00000
WF=0; ACC=[160,176]; XF=192; XA=224; SO=232; T=236; P=240; C4=244; B4=248
vRS=252; vMR=253; vTMP=254; vCB=255
vTRB=236; vTRB2=237; vS1=238; vONE=239; vLANE=243
XD=200; vWD=210; vSA=211; vSA2=212; vSTA=213; lS1=214; lS2=215; lONE=216; SRB=160

import os
EXP=int(os.environ.get('EXP','0'))
XS_V=int(os.environ.get('XS_V','2'))
XSCHED=[{2:7,3:9},{2:6,3:8},{2:5,3:7},{2:5,3:8}][XS_V]
XLASTW=max(XSCHED)
ROT=int(os.environ.get('ROT','1'))
WPRE=int(os.environ.get('WPRE','4'))
PC0=int(os.environ.get('PC0','4'))
PFX_AT=int(os.environ.get('PFX_AT','2'))
PRIO=int(os.environ.get('PRIO','2'))
def gen_k1(a):
    a.label("k1_kernel")
    a("s_cmp_ge_u32 s2, 256"); a("s_cbranch_scc1 K1_END")
    stamp(a,0)
    a("s_load_dwordx4 s[4:7], s[0:1], 0")
    a("s_load_dwordx2 s[20:21], s[0:1], 16")
    a("s_load_dwordx4 s[24:27], s[0:1], 32")
    a("s_load_dwordx2 s[28:29], s[0:1], 48")
    a("s_load_dwordx2 s[30:31], s[0:1], 80")
    a("s_and_b32 s32, s2, 7")
    a("s_lshr_b32 s80, s2, 3"); a("s_add_u32 s33, s80, 28"); a("s_and_b32 s33, s33, 31")
    a("s_load_dwordx2 s[82:83], s[0:1], 72")
    a("s_lshr_b32 s34, s32, 1")
    a("s_and_b32 s35, s32, 1")
    a("s_lshr_b32 s36, s33, 2")
    a("s_and_b32 s37, s33, 3")
    a("s_mul_i32 s38, s34, 7"); a("s_add_u32 s38, s38, s36")
    a("s_lshl_b32 s39, s35, 5"); a("s_lshl_b32 s40, s37, 3"); a("s_add_u32 s39, s39, s40")
    L=vLANE
    a(f"v_and_b32 v{L}, 63, v0")
    a("v_lshrrev_b32 v1, 6, v0"); a("s_nop 0"); a("v_readfirstlane_b32 s78, v1")
    a("s_and_b32 s41, s78, 3")
    a("s_mul_i32 s49, s39, 40960")
    a("s_mul_i32 s50, s41, 10240")
    a("s_waitcnt lgkmcnt(0)")
    a("s_cmp_ge_u32 s36, 7"); a("s_cbranch_scc1 K1_HELP")
    a("s_cmp_ge_u32 s38, 27"); a("s_cbranch_scc1 K1_HELP")
    srd(a,12,4,5,2048*1280)
    srd(a,16,30,31,0x2000000)
    def xd_calc():
        for i in range(10):
            if i: a(f"v_add_u32 v1, {64*i}, v{L}")
            src = "v1" if i else f"v{L}"
            a(f"v_mul_u32_u24 v2, 52429, {src}"); a("v_lshrrev_b32 v2, 22, v2")
            a("v_mul_u32_u24 v3, 80, v2"); a(f"v_sub_u32 v3, {src}, v3")
            a("v_add_u32 v2, s79, v2")
            a("v_and_b32 v4, 15, v2"); a("v_xor_b32 v3, v3, v4")
            a("v_add_u32 v3, s77, v3"); a("v_subrev_u32 v4, 80, v3"); a("v_min_u32 v3, v3, v4")
            a("v_mul_u32_u24 v2, 1280, v2"); a(f"v_lshl_add_u32 v{XD+i}, v3, 4, v2")
    def dma_x(sl_sgpr, soff, tag):
        for i in range(10):
            a(f"s_add_u32 m0, s{sl_sgpr}, {i*1024}"); a("s_nop 0")
            a.vmem(f"buffer_load_dwordx4 v{XD+i}, s[12:15], s{soff} offen lds", tag)
    a("s_lshl_b32 s79, s41, 3")
    a("s_mul_i32 s81, s37, 3"); a("s_add_u32 s81, s81, s36"); a("s_cmp_ge_u32 s81, 10"); a("s_cbranch_scc0 K1_O0"); a("s_sub_u32 s81, s81, 10"); a.label("K1_O0")
    if not ROT: a("s_mov_b32 s81, 0")
    a("s_lshl_b32 s77, s81, 3")
    a("s_cmp_ge_u32 s78, 4"); a("s_cbranch_scc1 K1_LOAD")
    a(f"s_setprio {PRIO}")
    a(f"v_bfe_u32 v1, v{L}, 2, 2")
    a(f"v_lshrrev_b32 v2, 5, v{L}")
    a("v_lshl_add_u32 v2, v2, 3, v1"); a("v_lshlrev_b32 v2, 8, v2")
    a("v_xor_b32 v1, s41, v1"); a("v_lshl_add_u32 v2, v1, 6, v2")
    a(f"v_bfe_u32 v1, v{L}, 4, 1"); a("v_lshl_add_u32 v2, v1, 5, v2")
    a(f"v_and_b32 v1, 3, v{L}"); a("v_lshl_add_u32 v2, v1, 3, v2")
    a(f"v_add_u32 v{vTRB}, {WSL[2]}, v2"); a(f"v_add_u32 v{vTRB2}, {WSL[0]}, v2")
    a(f"v_and_b32 v1, 31, v{L}"); a(f"v_lshrrev_b32 v2, 5, v{L}"); a("v_and_b32 v3, 15, v1"); a("v_mul_u32_u24 v4, 1280, v1")
    for j in range(8):
        a(f"v_add_u32 v5, {2*j}, v2"); a("v_xor_b32 v5, v5, v3"); a(f"v_lshl_add_u32 v{XA+j}, v5, 4, v4")
    a(f"v_mov_b32 v{vONE}, 0x3f803f80")
    a(f"v_mov_b32 v{vS1}, 0")
    a("s_cmp_lt_u32 s38, 10"); a("s_cbranch_scc1 K1_QK")
    a("s_cmp_lt_u32 s38, 15"); a("s_cbranch_scc1 K1_V")
    for typ in ("H","QK","V"):
        a.label(f"K1_{typ}")
        gen_type(a,typ)
    gen_loader(a,xd_calc,dma_x)
    gen_help(a)
    a.label("K1_END")
    a("s_endpgm")

def gen_loader(a,xd_calc,dma_x):
    L=vLANE
    a.label("K1_LOAD"); a.vm=[]; a.lg=[]
    a("s_cmp_lt_u32 s38, 15"); a("s_cbranch_scc0 K1_W1")
    srd(a,8,6,7,640*3840); a("s_mov_b32 s42, 3840"); a("s_lshl_b32 s43, s38, 8"); a("s_branch K1_WD")
    a.label("K1_W1")
    srd(a,8,24,25,640*3072); a("s_mov_b32 s42, 3072"); a("s_sub_u32 s43, s38, 15"); a("s_lshl_b32 s43, s43, 8")
    a.label("K1_WD")
    a(f"v_lshrrev_b32 v1, 4, v{L}")
    a(f"v_bfe_u32 v2, v{L}, 2, 2")
    a("v_xor_b32 v2, v2, v1")
    a(f"v_and_b32 v3, 3, v{L}")
    a("v_lshl_or_b32 v2, v2, 2, v3")
    a("v_lshlrev_b32 v2, 4, v2")
    a("v_mul_lo_u32 v1, v1, s42")
    a(f"v_add_u32 v{vWD}, v1, v2")
    a("s_lshl_b32 s44, s41, 4"); a("s_mul_i32 s44, s44, s42"); a("s_add_u32 s44, s44, s43")
    a("s_lshl_b32 s45, s41, 12")
    a("s_lshl_b32 s46, s42, 2")
    a("s_lshl_b32 s47, s42, 6")
    if STAMP: a("s_memtime s[100:101]"); a("s_waitcnt lgkmcnt(0)"); a(f"s_mov_b32 s70, s100")
    a("s_mov_b32 s56, s81")
    def ld_w(c):
        a("s_mul_i32 s57, s47, s56"); a("s_add_u32 s57, s57, s44")
        for i in range(4):
            if i: a(f"s_add_u32 s57, s57, s46")
            r=16*c+4*i
            a.vmem(f"buffer_load_dwordx4 v[{r}:{r+3}], v{vWD}, s[8:11], s57 offen", f"W{c}")
        a("s_add_u32 s56, s56, 1"); a("s_cmp_eq_u32 s56, 10"); a("s_cselect_b32 s56, 0, s56")
    a("s_mov_b32 s58, s81")
    for i in range(10):
        a(f"s_lshl_b32 s{86+i}, s58, 7")
        a("s_add_u32 s58, s58, 1"); a("s_cmp_eq_u32 s58, 10"); a("s_cselect_b32 s58, 0, s58")
    vXG=200; vWA=201; vWC=202; vXW=203
    a(f"v_lshrrev_b32 v{SRB+1}, 3, v{L}"); a(f"v_add_u32 v{SRB+1}, s79, v{SRB+1}")
    a(f"v_and_b32 v{SRB+2}, 7, v{L}"); a(f"v_and_b32 v{SRB+3}, 15, v{SRB+1}"); a(f"v_mul_u32_u24 v{SRB+4}, 1280, v{SRB+1}")
    a(f"v_lshl_add_u32 v{vXG}, v{SRB+2}, 4, v{SRB+4}")
    a(f"v_xor_b32 v{SRB+5}, v{SRB+2}, v{SRB+3}"); a(f"v_lshl_add_u32 v{vXW}, v{SRB+5}, 4, v{SRB+4}")
    a(f"v_add_u32 v{SRB+5}, 8, v{SRB+2}"); a(f"v_xor_b32 v{SRB+5}, v{SRB+5}, v{SRB+3}"); a(f"v_lshl_add_u32 v{vXW+1}, v{SRB+5}, 4, v{SRB+4}")
    for sl in (1,2):
        for o in range(2): a(f"v_add_u32 v{vXW+2*sl+o}, {sl*XS}, v{vXW+o}")
    a(f"v_lshlrev_b32 v{vSTA}, 2, v{SRB+1}"); a(f"v_add_u32 v{vSTA}, {ST}, v{vSTA}")
    a(f"v_lshlrev_b32 v{vWA}, 4, v{L}"); a(f"v_add_u32 v{vWA}, s45, v{vWA}"); a(f"v_add_u32 v{vWC}, {WSL[2]}, v{vWA}"); a(f"v_add_u32 v{vWA}, {WSL[0]}, v{vWA}")
    a(f"v_mov_b32 v{lONE}, 0x3f803f80")
    def ld_x01(c):
        for j in range(2):
            r=SRB+8*(c%5)+4*j
            a(f"s_add_u32 s57, s{86+c}, s{49 if j==0 else 54}")
            a.vmem(f"buffer_load_dwordx4 v[{r}:{r+3}], v{vXG}, s[12:15], s57 offen", f"W{c}")
    a("s_add_u32 s54, s49, 40960")
    for c in range(WPRE): ld_w(c); ld_x01(c)
    if STAMP: a("s_memtime s[100:101]"); a("s_waitcnt lgkmcnt(0)"); a(f"s_mov_b32 s71, s100")
    if STAMP: a("s_mov_b32 s73, s70"); a("s_mov_b32 s74, s71")
    a("s_mov_b32 s71, 0x3acccccd"); a("s_mov_b32 s72, 0x3727c5ac")
    def ld_x(j):
        b=40*((j-2)%4)
        a(f"s_add_u32 s55, s49, {40960*j}")
        for i in range(10):
            a(f"s_add_u32 s57, s55, s{86+i}")
            a.vmem(f"buffer_load_dwordx4 v[{b+4*i}:{b+4*i+3}], v{vXG}, s[12:15], s57 offen", f"X{j}")
    A0=224; A1=228; A2=232; U=236
    def acc4(A,r,first):
        for k in range(4):
            u=U+2*(k&1)
            a(f"v_lshlrev_b32 v{u}, 16, v{r+k}"); a(f"v_and_b32 v{u+1}, 0xffff0000, v{r+k}")
            if first and k==0:
                a(f"v_pk_add_f32 v[{A}:{A+1}], v[{u}:{u+1}], 0 op_sel_hi:[1,0]"); a(f"v_pk_mul_f32 v[{A+2}:{A+3}], v[{u}:{u+1}], v[{u}:{u+1}]")
            else:
                a(f"v_pk_add_f32 v[{A}:{A+1}], v[{A}:{A+1}], v[{u}:{u+1}]"); a(f"v_pk_fma_f32 v[{A+2}:{A+3}], v[{u}:{u+1}], v[{u}:{u+1}], v[{A+2}:{A+3}]")
    def fin(j,A):
        a(f"v_add_f32 v{lS1}, v{A}, v{A+1}"); a(f"v_add_f32 v{lS2}, v{A+2}, v{A+3}")
        for ctrl in ("quad_perm:[1,0,3,2]","quad_perm:[2,3,0,1]","row_half_mirror"):
            a("s_nop 1")
            a(f"v_add_f32_dpp v{lS1}, v{lS1}, v{lS1} {ctrl} row_mask:0xf bank_mask:0xf")
            a(f"v_add_f32_dpp v{lS2}, v{lS2}, v{lS2} {ctrl} row_mask:0xf bank_mask:0xf")
        a(f"v_mul_f32 v{lS1}, s71, v{lS1}")
        a(f"v_mul_f32 v{lS2}, s71, v{lS2}")
        a(f"v_fma_f32 v{lS2}, -v{lS1}, v{lS1}, v{lS2}")
        a(f"v_add_f32 v{lS2}, s72, v{lS2}")
        a(f"v_rsq_f32 v{lS2}, v{lS2}")
        a("s_nop 0")
        a(f"v_mul_f32 v{lS1}, v{lS1}, v{lS2}")
        a(f"ds_write_b32 v{vSTA}, v{lS2} offset:{j*256}")
        a(f"ds_write_b32 v{vSTA}, v{lS1} offset:{j*256+128}")
        a("s_waitcnt lgkmcnt(0)")
    def stats(j):
        sl=j%3
        b=40*((j-2)%4)
        a.wait_vm(f"X{j}")
        for i in range(10):
            a(f"ds_write_b128 v{vXW+2*sl+(i&1)}, v[{b+4*i}:{b+4*i+3}] offset:{(i>>1)*256}")
        a("s_waitcnt lgkmcnt(0)")
    def get_stats():
        a("s_cmp_ge_u32 s59, 32"); a("s_cbranch_scc1 K1_GSD")
        sv=list(a.vm)
        a(f"v_mov_b32 v{SRB}, 0")
        a.label("K1_POLL")
        a(f"global_load_dword v{SRB+1}, v{SRB}, s[82:83] offset:252 sc1")
        a("s_waitcnt vmcnt(0)"); a.vm=[]
        a(f"v_readfirstlane_b32 s51, v{SRB+1}")
        a("s_cmp_ge_u32 s51, 32"); a("s_cbranch_scc1 K1_POLLD")
        a("s_sleep 2"); a("s_branch K1_POLL")
        a.label("K1_POLLD")
        a("s_lshl_b32 s51, s39, 8"); a("s_lshl_b32 s52, s41, 9"); a("s_add_u32 s51, s51, s52"); a(f"s_add_u32 s51, s51, {STG}")
        a(f"v_lshlrev_b32 v{SRB}, 4, v{L}")
        a("s_mov_b32 exec_hi, 0")
        a(f"buffer_load_dwordx4 v[{SRB+4}:{SRB+7}], v{SRB}, s[16:19], s51 offen sc1")
        a(f"s_add_u32 s52, s52, {ST}"); a(f"v_add_u32 v{SRB}, s52, v{SRB}")
        a("s_waitcnt vmcnt(0)")
        a(f"ds_write_b128 v{SRB}, v[{SRB+4}:{SRB+7}]")
        a("s_mov_b64 exec, -1")
        a("s_waitcnt lgkmcnt(0)")
        a.label("K1_GSD"); a.vm=sv
    for c in range(10):
        a.wait_vm(f"W{c}")
        if STAMP: a("s_memtime s[100:101]"); a("s_waitcnt lgkmcnt(0)"); a(f"s_mov_b32 s{60+c}, s100")
        for i in range(4):
            r=16*c+4*i
            a(f"ds_write_b128 v{vWA if (c%4)<2 else vWC}, v[{r}:{r+3}] offset:{(c%2)*16384+i*1024}")
        for j in range(2):
            r=SRB+8*(c%5)+4*j
            a(f"ds_write_b128 v{vXW+2*j+(c&1)}, v[{r}:{r+3}] offset:{(c>>1)*256}")
        a("s_waitcnt lgkmcnt(0)")
        a("s_barrier")
        if c==PC0:
            a(f"v_mov_b32 v217, 0")
            a.vmem(f"global_load_dword v218, v217, s[82:83] offset:252 sc1","P")
        if c==PC0+3:
            a.wait_vm("P"); a("v_readfirstlane_b32 s59, v218")
            a("s_lshl_b32 s51, s39, 8"); a("s_lshl_b32 s52, s41, 9"); a("s_add_u32 s51, s51, s52"); a(f"s_add_u32 s51, s51, {STG}")
            a(f"v_lshlrev_b32 v217, 4, v{L}")
            a("s_mov_b32 exec_hi, 0")
            a.vmem(f"buffer_load_dwordx4 v[220:223], v217, s[16:19], s51 offen sc1","S1")
            a("s_mov_b64 exec, -1")
        if c==9:
            a.wait_vm("S1")
            a("s_cmp_ge_u32 s59, 32"); a("s_cbranch_scc0 K1_NS")
            a(f"s_add_u32 s52, s52, {ST}"); a(f"v_add_u32 v217, s52, v217")
            a("s_mov_b32 exec_hi, 0")
            a(f"ds_write_b128 v217, v[220:223]")
            a("s_mov_b64 exec, -1")
            a("s_waitcnt lgkmcnt(0)")
            a.label("K1_NS")
        if c+WPRE<10: ld_w(c+WPRE); ld_x01(c+WPRE)
        for j,cc in XSCHED.items():
            if cc==c:
                ld_x(j)
        if c==9: get_stats()
    nxt=[max(XSCHED)+1]
    def more():
        if nxt[0]<8: ld_x(nxt[0]); nxt[0]+=1
    a("s_barrier")
    stats(2)
    a("s_barrier")
    for j in range(3,8):
        more()
        stats(j)
        a("s_barrier")
    if STAMP:
        for i in range(10): a(f"s_mov_b32 s{85+i}, s{60+i}")
        a("s_mov_b32 s95, s73"); a("s_mov_b32 s96, s74")
        stamp_out(a,13,38,48,1)
    a("s_endpgm")

def gen_type(a,typ):
    L=vLANE
    a.vm=[]; a.lg=[]
    a(f"v_and_b32 v10, 31, v{L}"); a(f"v_lshrrev_b32 v11, 5, v{L}")
    if typ=="QK":
        a("s_cmp_lt_u32 s38, 5"); a(f"s_cselect_b32 s56, 0, {KH}"); a("s_cselect_b32 s57, 0, 5")
        a(f"s_cselect_b32 s62, 0x{fbits(QSCALE):x}, 0x3f800000")
        a("s_sub_u32 s57, s38, s57"); a("s_lshl_b32 s57, s57, 7"); a("s_lshl_b32 s58, s41, 5"); a("s_add_u32 s57, s57, s58")
        a("v_mul_u32_u24 v12, 40, v10")
        for q in range(4):
            a(f"v_lshl_add_u32 v13, v11, 2, s57")
            if q: a(f"v_add_u32 v13, {8*q}, v13")
            a("v_mul_u32_u24 v14, 3277, v13"); a("v_lshrrev_b32 v14, 16, v14")
            a("v_mul_u32_u24 v14, 81880, v14"); a("v_lshl_add_u32 v14, v13, 1, v14"); a(f"v_add_u32 v{SO+q}, v14, v12")
        a("s_mul_i32 s59, s39, 1280"); a("s_add_u32 s59, s59, s56")
        a("s_movk_i32 s60, 1280")
    elif typ=="H":
        srd(a,64,26,27,1536*2)
        a("s_sub_u32 s57, s38, 15"); a("s_lshl_b32 s57, s57, 2"); a("s_add_u32 s57, s57, s41")
        a("s_lshl_b32 s58, s57, 6")
        a("v_lshlrev_b32 v12, 1, v10")
        a("buffer_load_ushort v15, v12, s[64:67], s58 offen")
        a("v_lshrrev_b32 v12, 4, v10"); a("v_mul_u32_u24 v12, 50176, v12"); a("v_and_b32 v13, 15, v10")
        a("v_lshl_add_u32 v12, v13, 4, v12"); a(f"v_lshl_add_u32 v{SO}, v11, 8, v12")
        a("s_mul_i32 s59, s39, 100352"); a("s_lshl_b32 s58, s57, 10"); a("s_add_u32 s59, s59, s58"); a(f"s_add_u32 s59, s59, {HF}")
        a("s_mov_b32 s60, 100352")
    else:
        a("s_sub_u32 s57, s38, 10"); a("s_lshl_b32 s57, s57, 7"); a("s_lshl_b32 s58, s41, 5"); a("s_add_u32 s57, s57, s58")
        a(f"v_mul_u32_u24 v12, {VTP}, v10"); a(f"v_lshl_add_u32 v{SO}, v11, 4, v12")
        a(f"s_mul_i32 s59, s57, {VTP}"); a("s_lshl_b32 s58, s39, 6"); a("s_add_u32 s59, s59, s58"); a(f"s_add_u32 s59, s59, {VT}")
        a("s_movk_i32 s60, 64")
    if typ=="V": a(f"v_lshlrev_b32 v{vTMP}, 4, v11"); a(f"v_add_u32 v{vTMP}, {ST}, v{vTMP}")
    else: a(f"v_lshlrev_b32 v{vTMP}, 2, v10"); a(f"v_add_u32 v{vTMP}, {ST}, v{vTMP}")
    a("s_lshl_b32 s51, s41, 7"); a(f"s_add_u32 s51, s51, {CSA}")
    a(f"v_lshlrev_b32 v{vCB}, 4, v11"); a(f"v_add_u32 v{vCB}, s51, v{vCB}")
    a(f"v_lshlrev_b32 v{vRS}, 2, v10"); a(f"v_add_u32 v{vRS}, s51, v{vRS}")
    stamp(a,1)
    a("s_waitcnt vmcnt(0)")
    if typ=="H":
        a("v_lshlrev_b32 v15, 16, v15"); a(f"ds_write_b32 v{vRS}, v15 offset:{BBA-CSA}")
    stamp(a,2)
    def mf(acc,s,xf,first):
        c = "0" if first else f"v[{acc}:{acc+15}]"
        wf=f"v[{WF+4*s}:{WF+4*s+3}]"; x=f"v[{xf}:{xf+3}]"
        if typ=="V": a(f"v_mfma_f32_32x32x16_bf16 v[{acc}:{acc+15}], {x}, {wf}, {c}")
        else: a(f"v_mfma_f32_32x32x16_bf16 v[{acc}:{acc+15}], {wf}, {x}, {c}")
    def xr2(c,k):
        s=4*c+(k&3)
        a(f"ds_read_b128 v[{XF+4*k}:{XF+4*k+3}], v{XA+(s%8)} offset:{(k>>2)*XS+(s>>3)*256}")
    for c in range(11):
        if c<10:
            a("s_barrier")
            if c==5: stamp(a,3)
            tb = vTRB2 if (c%4)<2 else vTRB
            for sp in range(4):
                for rd in range(2):
                    r=WF+16*c+4*sp+2*rd
                    a(f"ds_read_b64_tr_b16 v[{r}:{r+1}], v{tb} offset:{(c%2)*16384+sp*4096+rd*1024}")
        if c==0:
            for k in range(8): xr2(0,k)
        else:
            a(f"s_waitcnt lgkmcnt({8 if c<10 else 0})")
            for r in range(16): a(f"v_dot2c_f32_bf16 v{vS1}, v{vONE}, v{WF+16*(c-1)+r}")
            for k in range(8):
                kk=(k&1)*4+(k>>1)
                mf(ACC[kk>>2],4*(c-1)+(kk&3),XF+4*kk,(c==1 and (kk&3)==0))
                if c<10: xr2(c,kk)
        if c<10: a("s_waitcnt lgkmcnt(8)")
    a("s_waitcnt lgkmcnt(0)")
    a("s_barrier")
    a("s_nop 2")
    a(f"v_mov_b32 v{P}, v{vS1}"); a("s_nop 1"); a(f"v_permlane32_swap_b32 v{vS1}, v{P}"); a("s_nop 1")
    a(f"v_add_f32 v{vS1}, v{vS1}, v{P}")
    if typ=="V": a(f"v_mov_b32 v{vCB}, v{vS1}")
    else: a(f"ds_write_b32 v{vRS}, v{vS1}")
    a("s_waitcnt lgkmcnt(0)")
    stamp(a,4)
    def epi_fill(par,stoff):
        f=[]; acc=ACC[par]
        if typ!="V":
            def rd():
                a.lds(f"ds_read2_b32 v[{vRS}:{vMR}], v{vTMP} offset0:{stoff//4} offset1:{stoff//4+32}","st")
            f.append(rd)
            def rdq(q):
                def g():
                    a.lds(f"ds_read_b128 v[{C4}:{C4+3}], v{vCB} offset:{32*q}","cb")
                    if typ=="H": a.lds(f"ds_read_b128 v[{B4}:{B4+3}], v{vCB} offset:{BBA-CSA+32*q}","cb")
                return g
            for q in range(4):
                f.append(rdq(q)); f.append(None); f.append(None)
                def w(q=q):
                    a.wait_lg("cb")
                    if q==0 and typ=="QK": a(f"v_mul_f32 v{vRS}, s62, v{vRS}"); a(f"v_mul_f32 v{vMR}, s62, v{vMR}")
                f.append(w)
                for i in range(4):
                    k=4*q+i
                    def el(k=k,i=i):
                        if typ=="H":
                            a(f"v_fma_f32 v{T+i}, -v{vMR}, v{C4+i}, v{B4+i}")
                            a(f"v_fmac_f32 v{T+i}, v{acc+k}, v{vRS}")
                            a(f"v_max_f32 v{T+i}, 0, v{T+i}"); a(f"v_mul_f32 v{T+i}, v{T+i}, v{T+i}")
                        else:
                            a(f"v_mul_f32 v{T+i}, v{vMR}, v{C4+i}")
                            a(f"v_fma_f32 v{T+i}, v{acc+k}, v{vRS}, -v{T+i}")
                    f.append(el)
                def pk(q=q):
                    if typ=="QK":
                        b=P+2*(q&1)
                        a(f"v_cvt_pk_bf16_f32 v{b}, v{T}, v{T+1}"); a(f"v_cvt_pk_bf16_f32 v{b+1}, v{T+2}, v{T+3}")
                        a(f"buffer_store_dwordx2 v[{b}:{b+1}], v{SO+q}, s[16:19], s61 offen")
                    else:
                        b=P+2*(q&1)
                        a(f"v_cvt_pk_bf16_f32 v{b}, v{T}, v{T+1}"); a(f"v_cvt_pk_bf16_f32 v{b+1}, v{T+2}, v{T+3}")
                        if q&1:
                            a("s_nop 1"); a(f"v_permlane32_swap_b32 v{P}, v{P+2}"); a(f"v_permlane32_swap_b32 v{P+1}, v{P+3}")
                            a(f"buffer_store_dwordx4 v[{P}:{P+3}], v{SO}, s[16:19], s61 offen offset:{512*(q>>1)}")
                f.append(pk)
        else:
            for q in range(4):
                def rd(q=q):
                    a.lds(f"ds_read_b128 v[{C4}:{C4+3}], v{vTMP} offset:{stoff+32*q}","st")
                    a.lds(f"ds_read_b128 v[{B4}:{B4+3}], v{vTMP} offset:{stoff+128+32*q}","st")
                f.append(rd); f.append(None); f.append(None)
                def el(q=q):
                    a.wait_lg("st")
                    for i in range(4):
                        a(f"v_mul_f32 v{T+i}, v{B4+i}, v{vCB}")
                        a(f"v_fma_f32 v{T+i}, v{acc+4*q+i}, v{C4+i}, -v{T+i}")
                f.append(el)
                def pk(q=q):
                    b=P+2*(q&1)
                    a(f"v_cvt_pk_bf16_f32 v{b}, v{T}, v{T+1}"); a(f"v_cvt_pk_bf16_f32 v{b+1}, v{T+2}, v{T+3}")
                    if q&1:
                        a("s_nop 1"); a(f"v_permlane32_swap_b32 v{P}, v{P+2}"); a(f"v_permlane32_swap_b32 v{P+1}, v{P+3}")
                        a(f"buffer_store_dwordx4 v[{P}:{P+3}], v{SO}, s[16:19], s61 offen offset:{32*(q>>1)}")
                f.append(pk)
        return f
    a("s_mov_b32 s61, s59")
    a("s_nop 7"); a("s_nop 7")
    for fn in epi_fill(0,0):
        if fn: fn()
    a(f"v_add_u32 v{vTMP}, 256, v{vTMP}")
    a("s_add_u32 s61, s61, s60")
    a(f"s_mov_b32 s74, {2*XS}")
    for j in range(8): a(f"v_add_u32 v{XA+j}, s74, v{XA+j}")
    a(f"s_mov_b32 s75, {-2*XS & 0xffffffff}"); a(f"s_mov_b32 s76, {XS}")
    a("s_mov_b32 s69, 2"); a("s_mov_b32 s70, 0")
    a("s_waitcnt lgkmcnt(0)"); a.lg=[]
    a("s_barrier")
    stamp(a,5)
    LA=6
    def xread(s):
        a.lds(f"ds_read_b128 v[{XF+4*(s%8)}:{XF+4*(s%8)+3}], v{XA+(s%8)} offset:{((s%40)>>3)*256}", f"x{s%8}")
    for s in range(LA): xread(s)
    lab=f"K1_LOOP_{typ}"
    a.label(lab)
    if STAMP:
        a("s_memtime s[100:101]"); a("s_waitcnt lgkmcnt(0)")
        for i in range(3):
            a(f"s_cmp_eq_u32 s70, {i}"); a(f"s_cselect_b32 s{90+i}, s100, s{90+i}")
    for par in range(2):
        acc=ACC[par]
        ef=epi_fill(par^1, 0)
        sched=[[] for _ in range(40)]
        for i,fn in enumerate(ef):
            if EXP!=2: sched[2+(i*31)//len(ef)].append(fn)
        a("s_add_u32 s69, s69, 1"); a("s_cmp_ge_u32 s69, 3"); a("s_cselect_b32 s74, s75, s76"); a("s_cselect_b32 s69, 0, s69")
        for s in range(40):
            if s==36:
                a("s_waitcnt lgkmcnt(0)"); a.lg=[]
                if par==1:
                    a("s_cmp_eq_u32 s70, 2"); a(f"s_cbranch_scc1 {lab}_nb")
                a("s_barrier")
                if par==1: a.label(f"{lab}_nb")
                for j in range(8): a(f"v_add_u32 v{XA+j}, s74, v{XA+j}")
                xread(40); xread(41)
            a.wait_lg(f"x{s%8}")
            mf(acc,s,XF+4*(s%8),s==0)
            if s<34 or s>=36: xread(s+LA)
            for fn in sched[s]:
                if fn: fn()
        a("s_add_u32 s61, s61, s60"); a(f"v_add_u32 v{vTMP}, 256, v{vTMP}")
    a("s_add_u32 s70, s70, 1"); a("s_cmp_lt_u32 s70, 3"); a(f"s_cbranch_scc1 {lab}")
    stamp(a,9)
    a("s_waitcnt lgkmcnt(0)"); a.lg=[]
    a("s_nop 7"); a("s_nop 7")
    for fn in epi_fill(1,0):
        if fn: fn()
    if STAMP:
        a("s_waitcnt vmcnt(0)")
        stamp(a,10)
        stamp_out(a,11,32 if typ=="QK" else (130 if typ=="V" else 38),{"QK":0,"V":16,"H":32}[typ],1)
    a("s_endpgm")

def gen_help(a):
    L=vLANE
    a.label("K1_HELP")
    srd(a,16,30,31,0x2000000)
    a("s_cmp_ge_u32 s80, 4"); a("s_cbranch_scc1 K1_H1")
    srd(a,12,4,5,2048*1280)
    a("s_lshl_b32 s51, s80, 3"); a("s_add_u32 s51, s51, s32"); a("s_lshl_b32 s51, s51, 6"); a("s_lshl_b32 s52, s78, 3"); a("s_add_u32 s51, s51, s52")
    a(f"v_lshrrev_b32 v1, 3, v{L}"); a("v_add_u32 v1, s51, v1")
    a(f"v_and_b32 v2, 7, v{L}"); a("v_mul_u32_u24 v3, 1280, v1"); a("v_lshl_add_u32 v3, v2, 4, v3")
    for i in range(10): a(f"buffer_load_dwordx4 v[{8+4*i}:{11+4*i}], v3, s[12:15], 0 offen offset:{128*i}")
    a("v_mov_b32 v4, 0"); a("v_mov_b32 v5, 0"); a("v_mov_b32 v6, 0x3f803f80")
    a("v_lshrrev_b32 v7, 5, v1"); a("v_lshlrev_b32 v7, 8, v7"); a("v_and_b32 v1, 31, v1"); a("v_lshl_add_u32 v7, v1, 2, v7")
    a("s_mov_b32 s71, 0x3acccccd"); a("s_mov_b32 s72, 0x3727c5ac"); a(f"s_mov_b32 s73, {STG}")
    for i in range(10):
        a(f"s_waitcnt vmcnt({9-i})")
        for r in range(4):
            a(f"v_dot2c_f32_bf16 v4, v6, v{8+4*i+r}"); a(f"v_dot2c_f32_bf16 v5, v{8+4*i+r}, v{8+4*i+r}")
    for ctrl in ("quad_perm:[1,0,3,2]","quad_perm:[2,3,0,1]","row_half_mirror"):
        a("s_nop 2")
        a(f"v_add_f32_dpp v4, v4, v4 {ctrl} row_mask:0xf bank_mask:0xf")
        a(f"v_add_f32_dpp v5, v5, v5 {ctrl} row_mask:0xf bank_mask:0xf")
    a("v_mul_f32 v4, s71, v4"); a("v_mul_f32 v5, s71, v5"); a("v_fma_f32 v5, -v4, v4, v5"); a("v_add_f32 v5, s72, v5")
    a("v_rsq_f32 v5, v5"); a("s_nop 0"); a("v_mul_f32 v4, v4, v5")
    a("v_cmp_eq_u32 vcc, 0, v2"); a("s_and_saveexec_b64 s[74:75], vcc")
    a("buffer_store_dword v5, v7, s[16:19], s73 offen sc1")
    a("buffer_store_dword v4, v7, s[16:19], s73 offen offset:128 sc1")
    a("s_mov_b64 exec, s[74:75]")
    a("s_waitcnt vmcnt(0)")
    a("s_barrier")
    a("s_cmp_lg_u32 s78, 0"); a("s_cbranch_scc1 K1_H0")
    a("v_mov_b32 v4, 1"); a("v_mov_b32 v5, 0")
    a("s_mov_b64 exec, 1")
    a("global_atomic_add v5, v4, s[82:83] offset:252 sc1")
    a("s_mov_b64 exec, -1")
    a.label("K1_H0")
    a("s_cmp_lg_u32 s2, 0"); a("s_cbranch_scc1 K1_H1")
    a(f"v_lshlrev_b32 v1, 8, v{L}"); a("v_mov_b32 v2, 0"); a("s_mov_b32 s51, 0x1C10000")
    a("buffer_store_dword v2, v1, s[16:19], s51 offen")
    a.label("K1_H1")
    a("s_cmp_ge_u32 s32, 6"); a("s_cbranch_scc1 K1_H2")
    a("s_lshl_b32 s40, s32, 2"); a("s_add_u32 s40, s40, s33"); a("s_sub_u32 s40, s40, 28"); a("s_branch K1_H3")
    a.label("K1_H2")
    a("s_sub_u32 s40, s32, 6"); a("s_lshl_b32 s40, s40, 3"); a("s_add_u32 s40, s40, s33")
    a.label("K1_H3")
    a("s_lshl_b32 s40, s40, 3"); a("s_add_u32 s40, s40, s78")
    a(f"v_lshrrev_b32 v1, 4, v{L}"); a("v_mul_u32_u24 v1, 10240, v1"); a(f"v_and_b32 v2, 15, v{L}"); a("v_lshl_add_u32 v1, v2, 1, v1")
    a("v_add_u32 v2, 5120, v1"); a(f"v_lshlrev_b32 v3, 4, v{L}")
    for (lo,hi,nk,dst,n) in ((28,29,1536,W2F,6),(20,21,640,WOF,3)):
        srd(a,8,lo,hi,nk*1280)
        gs=list(range(n))
        for t,it in enumerate(gs):
            a(f"s_add_u32 s{44+t}, s40, {320*it}")
            a(f"s_mul_i32 s51, s{44+t}, 1639"); a("s_lshr_b32 s51, s51, 16")
            a("s_mul_i32 s52, s51, 40"); a(f"s_sub_u32 s52, s{44+t}, s52")
            a("s_mul_i32 s51, s51, 40960"); a("s_lshl_b32 s52, s52, 5"); a("s_add_u32 s51, s51, s52")
            for j in range(8):
                a(f"buffer_load_ushort v{40+8*t+j}, v{1 if j<4 else 2}, s[8:11], s51 offen offset:{(j&3)*1280}")
        a("s_waitcnt vmcnt(0)")
        for t,it in enumerate(gs):
            for j in range(4): a(f"v_lshl_or_b32 v{8+4*t+j}, v{40+8*t+2*j+1}, 16, v{40+8*t+2*j}")
            a(f"s_lshl_b32 s51, s{44+t}, 10"); a(f"s_add_u32 s51, s51, {dst}")
            a(f"buffer_store_dwordx4 v[{8+4*t}:{8+4*t+3}], v3, s[16:19], s51 offen")
        a("s_nop 1")
```

```python
from asmlib import *
from k1 import QH,KH,VT,VTP,HF,W2F,WOF,OF,GB
import k2,k3
ACC=0; FR=80; NS=4; G=200
vA=224; vW=225; vL=226; vX=227; vRW=228; vRR=229; vRR2=230; vFO=231; TT=232; TP=242; LCNT=102400
def gemm_part(a, nk, sA, sW, strideA_kg, tag):
    def ld(k):
        b=FR+36*(k%NS)
        a(f"s_add_u32 s61, s{sA}, s46")
        for t in range(4):
            if t: a(f"s_add_u32 s60, s61, {t*strideA_kg}")
            a.vmem(f"buffer_load_dwordx4 v[{b+4*t}:{b+4*t+3}], v{vA}, s[16:19], s{60 if t else 61} offen",f"{tag}{k}")
        a(f"s_add_u32 s60, s{sW}, s47")
        for j in range(5):
            if j==4:
                a.vmem(f"buffer_load_dwordx4 v[{b+16+4*j}:{b+16+4*j+3}], v{vW}, s[16:19], s60 offen",f"{tag}{k}")
            else:
                a.vmem(f"buffer_load_dwordx4 v[{b+16+4*j}:{b+16+4*j+3}], v{vA}, s[16:19], s60 offen offset:{1024*j}",f"{tag}{k}")
        a("s_add_u32 s46, s46, 1024"); a("s_add_u32 s47, s47, 40960")
        a("s_cmp_eq_u32 s46, 12288"); a("s_cselect_b32 s46, 0, s46"); a("s_cselect_b32 s47, 0, s47")
    return ld
def mm(a,k,first):
    b=FR+36*(k%NS)
    for t in range(4):
        for j in range(5):
            d=ACC+4*(5*t+j)
            c="0" if first else f"v[{d}:{d+3}]"
            a(f"v_mfma_f32_16x16x32_bf16 v[{d}:{d+3}], v[{b+16+4*j}:{b+16+4*j+3}], v[{b+4*t}:{b+4*t+3}], {c}")
def reduce(a, dst):
    a("s_nop 7")
    for t in range(4):
        for j in range(5):
            d=ACC+4*(5*t+j)
            a.lds(f"ds_write_b128 v{vRW}, v[{d}:{d+3}] offset:{(t*5+j)*1024}","rw")
    a.wait_lg_all(); a("s_barrier")
    for w in range(4):
        for j in range(5):
            r = dst+4*j if w==0 else ACC+20*w+4*j
            a.lds(f"ds_read_b128 v[{r}:{r+3}], v{vRR if w<2 else vRR2} offset:{(w&1)*20480+j*1024}","rr")
    a.wait_lg_all()
    for w in range(1,4):
        for k in range(20): a(f"v_add_f32 v{dst+k}, v{dst+k}, v{ACC+20*w+k}")
CNT=0x1C10000
def gen_k23(a):
    a.label("k23_kernel")
    a("s_cmp_ge_u32 s2, 256"); a("s_cbranch_scc1 K23_END")
    stamp(a,0); stamp(a,10)
    a("s_load_dwordx2 s[4:5], s[0:1], 0")
    a("s_load_dwordx4 s[24:27], s[0:1], 56")
    a("s_load_dwordx4 s[28:31], s[0:1], 72")
    a("v_lshrrev_b32 v1, 6, v0"); a("s_nop 0"); a("v_readfirstlane_b32 s33, v1")
    a("s_and_b32 s36, s33, 3")
    a("s_and_b32 s34, s2, 7"); a("s_lshl_b32 s34, s34, 2"); a("s_lshr_b32 s35, s2, 6"); a("s_add_u32 s34, s34, s35"); a("s_bfe_u32 s35, s2, 0x30003")
    a(f"v_mov_b32 v1, {LCNT}"); a("v_mov_b32 v2, 0"); a("ds_write_b32 v1, v2")
    a("s_cmp_ge_u32 s33, 4"); a("s_cbranch_scc1 K23_F")
    a(f"v_and_b32 v{k2.vL}, 63, v0")
    a("s_lshl_b32 s35, s35, 2"); a("s_add_u32 s35, s35, s36")
    a("s_waitcnt lgkmcnt(0)")
    k2.attn_srds(a,30,31)
    a("s_setprio 3")
    k2.attn_loop(a,34,35,"K2",sc1="sc1")
    a("s_waitcnt vmcnt(0)")
    stamp(a,12)
    a(f"v_mov_b32 v1, {LCNT}"); a("v_mov_b32 v2, 1")
    a("s_mov_b64 exec, 1")
    a("ds_add_rtn_u32 v3, v1, v2")
    a("s_waitcnt lgkmcnt(0)")
    a("v_readfirstlane_b32 s38, v3")
    a("s_mov_b64 exec, -1")
    a("s_cmp_lg_u32 s38, 3"); a("s_cbranch_scc1 K23_END")
    a("s_lshl_b32 s37, s34, 8"); a(f"s_add_u32 s37, s37, {CNT}"); a("v_mov_b32 v1, s37"); a("v_mov_b32 v2, 1")
    a("s_mov_b64 exec, 1")
    a("global_atomic_add v1, v2, s[30:31] sc1")
    a("s_barrier")
    a.label("K23_POLL")
    a("global_load_dword v3, v1, s[30:31] sc1")
    a("s_waitcnt vmcnt(0)")
    a("v_readfirstlane_b32 s38, v3")
    a("s_cmp_ge_u32 s38, 8"); a("s_cbranch_scc1 K23_PD")
    a("s_sleep 4"); a("s_branch K23_POLL")
    a.label("K23_PD")
    a("s_mov_b64 exec, -1")
    stamp(a,13)
    if STAMP:
        a("s_mov_b32 s84, s94"); a("s_mov_b32 s85, s95"); a("s_mov_b32 s86, s96"); a("s_mov_b32 s87, s97"); a("s_mov_b32 s88, s98"); a("s_mov_b32 s89, s99")
    stamp_out(a,6,8,128,5)
    a("s_barrier")
    a("s_endpgm")
    a.label("K23_F"); a.vm=[]; a.lg=[]
    a(f"v_and_b32 v{vL}, 63, v0")
    a("s_waitcnt lgkmcnt(0)")
    srd(a,16,30,31,0x2000000); srd(a,8,4,5,2048*1280); srd(a,12,26,27,2048*1280); srd(a,20,24,25,1280)
    a(f"v_lshlrev_b32 v{vA}, 4, v{vL}"); a(f"v_add_u32 v{vW}, 4096, v{vA}")
    a("s_mul_i32 s40, s34, 200704"); a("s_mul_i32 s37, s36, 12288"); a("s_add_u32 s40, s40, s37"); a(f"s_add_u32 s40, s40, {HF}")
    a("s_mul_i32 s41, s36, 491520"); a("s_mul_i32 s37, s35, 5120"); a("s_add_u32 s41, s41, s37"); a(f"s_add_u32 s41, s41, {W2F}")
    a("s_and_b32 s46, s34, 3"); a("s_mul_i32 s46, s46, 3"); a("s_add_u32 s46, s46, s35"); a("s_lshr_b32 s47, s35, 1"); a("s_add_u32 s46, s46, s47")
    a("s_cmp_ge_u32 s46, 12"); a("s_cbranch_scc0 K23_R0"); a("s_sub_u32 s46, s46, 12"); a.label("K23_R0")
    a("s_mul_i32 s47, s46, 40960"); a("s_lshl_b32 s46, s46, 10")
    ld=gemm_part(a,12,40,41,50176,"F")
    a("s_barrier")
    ld(0); ld(1); ld(2)
    a("s_mul_i32 s37, s36, 20480"); a(f"v_add_u32 v{vRW}, s37, v{vA}")
    a("s_mul_i32 s37, s36, 5120"); a(f"v_add_u32 v{vRR}, s37, v{vA}"); a(f"v_add_u32 v{vRR2}, 40960, v{vRR}")
    a("s_mul_i32 s42, s34, 81920"); a("s_mul_i32 s37, s36, 5120"); a("s_add_u32 s42, s42, s37"); a(f"s_add_u32 s42, s42, {OF}")
    a("s_mul_i32 s43, s36, 204800"); a("s_mul_i32 s37, s35, 5120"); a("s_add_u32 s43, s43, s37"); a(f"s_add_u32 s43, s43, {WOF}")
    a(f"v_and_b32 v1, 15, v{vL}"); a(f"v_lshrrev_b32 v2, 4, v{vL}")
    a("s_lshl_b32 s37, s34, 6"); a("s_lshl_b32 s38, s36, 4"); a("s_add_u32 s37, s37, s38"); a("v_add_u32 v1, s37, v1"); a("v_mul_u32_u24 v1, 1280, v1")
    a("s_mul_i32 s38, s35, 160"); a("v_lshlrev_b32 v2, 3, v2"); a("v_add_u32 v2, s38, v2"); a(f"v_add_u32 v{vX}, v1, v2")
    a(f"v_mov_b32 v{vFO}, v2")
    for k in range(4):
        ld(k+3); a.wait_vm(f"F{k}"); mm(a,k,k==0)
    a("s_mov_b32 s45, 0"); a.label("K23_FL")
    for k in range(4,8):
        if k==4:
            ld(k+3); a("s_waitcnt vmcnt(27)")
        else:
            l1=a.newlabel("FLs"); l2=a.newlabel("FLt")
            a("s_cmp_eq_u32 s45, 1"); a(f"s_cbranch_scc1 {l1}")
            ld(k+3); a("s_waitcnt vmcnt(27)"); a(f"s_branch {l2}")
            a.label(l1)
            if k==6:
                for j in range(5): a(f"buffer_load_dwordx2 v[{TT+2*j}:{TT+2*j+1}], v{vFO}, s[20:23], 0 offen offset:{32*j}")
            a(f"s_waitcnt vmcnt({ {5:18,6:14,7:5}[k] })")
            a.label(l2)
        mm(a,k,False)
    a("s_add_u32 s45, s45, 1"); a("s_cmp_lt_u32 s45, 2"); a("s_cbranch_scc1 K23_FL")
    a.vm=["b2"]*5
    stamp(a,1)
    a("s_nop 7")
    for t in range(4):
        for j in range(5):
            d=ACC+4*(5*t+j)
            a.lds(f"ds_write_b128 v{vRW}, v[{d}:{d+3}] offset:{(t*5+j)*1024}","rw")
    def ldw(k):
        a(f"s_add_u32 s60, s43, {k*40960}")
        for j in range(5):
            r=FR+20*(k%3)+4*j
            if j==4: a.vmem(f"buffer_load_dwordx4 v[{r}:{r+3}], v{vW}, s[16:19], s60 offen",f"W{k}")
            else: a.vmem(f"buffer_load_dwordx4 v[{r}:{r+3}], v{vA}, s[16:19], s60 offen offset:{1024*j}",f"W{k}")
    a.wait_lg_all(); a("s_barrier")
    for k in range(3): ldw(k)
    stamp(a,2)
    for w in range(4):
        for j in range(5):
            r = G+4*j if w==0 else ACC+20*w+4*j
            a.lds(f"ds_read_b128 v[{r}:{r+3}], v{vRR if w<2 else vRR2} offset:{(w&1)*20480+j*1024}","rr")
    a.wait_lg_all()
    for w in range(1,4):
        for k in range(20): a(f"v_add_f32 v{G+k}, v{G+k}, v{ACC+20*w+k}")
    a.wait_vm("b2")
    a("s_mov_b32 s44, 0xbfb8aa3b")
    for j in range(5):
        for h in range(2):
            a(f"v_lshlrev_b32 v{TP}, 16, v{TT+2*j+h}"); a(f"v_and_b32 v{TP+1}, 0xffff0000, v{TT+2*j+h}")
            for e in range(2):
                r=G+4*j+2*h+e
                a(f"v_add_f32 v{r}, v{r}, v{TP+e}")
                a(f"v_mul_f32 v{TP+2+e}, s44, v{r}"); a(f"v_exp_f32 v{TP+2+e}, v{TP+2+e}"); a("s_nop 0")
                a(f"v_add_f32 v{TP+2+e}, 1.0, v{TP+2+e}"); a(f"v_rcp_f32 v{TP+2+e}, v{TP+2+e}"); a("s_nop 0")
                a(f"v_mul_f32 v{r}, v{r}, v{TP+2+e}")
    a(f"v_add_u32 v1, 81920, v{vRR}")
    for j in range(5): a.lds(f"ds_write_b128 v1, v[{G+4*j}:{G+4*j+3}] offset:{j*1024}","gp")
    a.wait_lg_all()
    a("s_barrier")
    stamp(a,3)
    SETS=[140,156,172,188,204]
    def ldo(k):
        b=SETS[k]
        for t in range(4):
            a(f"s_add_u32 s60, s42, {t*20480+k*1024}")
            a.vmem(f"buffer_load_dwordx4 v[{b+4*t}:{b+4*t+3}], v{vA}, s[16:19], s60 offen sc1",f"O{k}")
    for k in range(5): ldo(k)
    for k in range(5):
        a.wait_vm(f"O{k}"); a.wait_vm(f"W{k}")
        b=SETS[k]
        for t in range(4):
            for j in range(5):
                d=ACC+4*(5*t+j)
                c="0" if k==0 else f"v[{d}:{d+3}]"
                a(f"v_mfma_f32_16x16x32_bf16 v[{d}:{d+3}], v[{FR+20*(k%3)+4*j}:{FR+20*(k%3)+4*j+3}], v[{b+4*t}:{b+4*t+3}], {c}")
        if k+3<5: ldw(k+3)
        if k==2:
            for j in range(5): a.vmem(f"buffer_load_dwordx2 v[{232+2*j}:{232+2*j+1}], v{vX}, s[8:11], 0 offen offset:{32*j}","xr")
    stamp(a,4)
    R=140
    reduce(a,R)
    GG=160
    a(f"v_add_u32 v1, 81920, v{vRR}")
    for j in range(5): a.lds(f"ds_read_b128 v[{GG+4*j}:{GG+4*j+3}], v1 offset:{j*1024}","gr")
    a.wait_lg_all(); a.wait_vm("xr")
    T2=TP
    for j in range(5):
        for h in range(2):
            a(f"v_lshlrev_b32 v{T2}, 16, v{232+2*j+h}"); a(f"v_and_b32 v{T2+1}, 0xffff0000, v{232+2*j+h}")
            for e in range(2):
                a(f"v_fma_f32 v{T2+e}, v{R+4*j+2*h+e}, v{GG+4*j+2*h+e}, v{T2+e}")
            a(f"v_cvt_pk_bf16_f32 v{T2+4+h}, v{T2}, v{T2+1}")
        a(f"buffer_store_dwordx2 v[{T2+4}:{T2+5}], v{vX}, s[12:15], 0 offen offset:{32*j}")
        a("s_nop 1")
    if STAMP:
        a("s_waitcnt vmcnt(0)"); stamp(a,5); stamp_out(a,6,8,144,1)
    a.label("K23_END")
    a("s_endpgm")
```

```python
from asmlib import *
from k1 import QH,KH,VT,VTP,HF,W2F,WOF,OF,QSCALE,fbits
XS=40960
WSL=[122880,139264,81920,98304]
MISC=155648; ST=MISC; CSA=MISC+2048; BBA=MISC+2560; STG=0x1C00000
WF=0; ACC=[160,176]; XF=192; XA=224; SO=232; T=236; P=240; C4=244; B4=248
vRS=252; vMR=253; vTMP=254; vCB=255
vTRB=236; vTRB2=237; vS1=238; vONE=239; vLANE=243
XD=200; vWD=210; vSA=211; vSA2=212; vSTA=213; lS1=214; lS2=215; lONE=216; SRB=160

import os
EXP=int(os.environ.get('EXP','0'))
XS_V=int(os.environ.get('XS_V','2'))
XSCHED=[{2:7,3:9},{2:6,3:8},{2:5,3:7},{2:5,3:8}][XS_V]
XLASTW=max(XSCHED)
ROT=int(os.environ.get('ROT','1'))
WPRE=int(os.environ.get('WPRE','4'))
PC0=int(os.environ.get('PC0','4'))
PFX_AT=int(os.environ.get('PFX_AT','2'))
PRIO=int(os.environ.get('PRIO','2'))
def gen_k1(a):
    a.label("k1_kernel")
    a("s_cmp_ge_u32 s2, 256"); a("s_cbranch_scc1 K1_END")
    stamp(a,0)
    a("s_load_dwordx4 s[4:7], s[0:1], 0")
    a("s_load_dwordx2 s[20:21], s[0:1], 16")
    a("s_load_dwordx4 s[24:27], s[0:1], 32")
    a("s_load_dwordx2 s[28:29], s[0:1], 48")
    a("s_load_dwordx2 s[30:31], s[0:1], 80")
    a("s_and_b32 s32, s2, 7")
    a("s_lshr_b32 s80, s2, 3"); a("s_add_u32 s33, s80, 28"); a("s_and_b32 s33, s33, 31")
    a("s_load_dwordx2 s[82:83], s[0:1], 72")
    a("s_lshr_b32 s34, s32, 1")
    a("s_and_b32 s35, s32, 1")
    a("s_lshr_b32 s36, s33, 2")
    a("s_and_b32 s37, s33, 3")
    a("s_mul_i32 s38, s34, 7"); a("s_add_u32 s38, s38, s36")
    a("s_lshl_b32 s39, s35, 5"); a("s_lshl_b32 s40, s37, 3"); a("s_add_u32 s39, s39, s40")
    L=vLANE
    a(f"v_and_b32 v{L}, 63, v0")
    a("v_lshrrev_b32 v1, 6, v0"); a("s_nop 0"); a("v_readfirstlane_b32 s78, v1")
    a("s_and_b32 s41, s78, 3")
    a("s_mul_i32 s49, s39, 40960")
    a("s_mul_i32 s50, s41, 10240")
    a("s_waitcnt lgkmcnt(0)")
    a("s_cmp_ge_u32 s36, 7"); a("s_cbranch_scc1 K1_HELP")
    a("s_cmp_ge_u32 s38, 27"); a("s_cbranch_scc1 K1_HELP")
    srd(a,12,4,5,2048*1280)
    srd(a,16,30,31,0x2000000)
    def xd_calc():
        for i in range(10):
            if i: a(f"v_add_u32 v1, {64*i}, v{L}")
            src = "v1" if i else f"v{L}"
            a(f"v_mul_u32_u24 v2, 52429, {src}"); a("v_lshrrev_b32 v2, 22, v2")
            a("v_mul_u32_u24 v3, 80, v2"); a(f"v_sub_u32 v3, {src}, v3")
            a("v_add_u32 v2, s79, v2")
            a("v_and_b32 v4, 15, v2"); a("v_xor_b32 v3, v3, v4")
            a("v_add_u32 v3, s77, v3"); a("v_subrev_u32 v4, 80, v3"); a("v_min_u32 v3, v3, v4")
            a("v_mul_u32_u24 v2, 1280, v2"); a(f"v_lshl_add_u32 v{XD+i}, v3, 4, v2")
    def dma_x(sl_sgpr, soff, tag):
        for i in range(10):
            a(f"s_add_u32 m0, s{sl_sgpr}, {i*1024}"); a("s_nop 0")
            a.vmem(f"buffer_load_dwordx4 v{XD+i}, s[12:15], s{soff} offen lds", tag)
    a("s_lshl_b32 s79, s41, 3")
    a("s_mul_i32 s81, s37, 3"); a("s_add_u32 s81, s81, s36"); a("s_cmp_ge_u32 s81, 10"); a("s_cbranch_scc0 K1_O0"); a("s_sub_u32 s81, s81, 10"); a.label("K1_O0")
    if not ROT: a("s_mov_b32 s81, 0")
    a("s_lshl_b32 s77, s81, 3")
    a("s_cmp_ge_u32 s78, 4"); a("s_cbranch_scc1 K1_LOAD")
    a(f"s_setprio {PRIO}")
    a(f"v_bfe_u32 v1, v{L}, 2, 2")
    a(f"v_lshrrev_b32 v2, 5, v{L}")
    a("v_lshl_add_u32 v2, v2, 3, v1"); a("v_lshlrev_b32 v2, 8, v2")
    a("v_xor_b32 v1, s41, v1"); a("v_lshl_add_u32 v2, v1, 6, v2")
    a(f"v_bfe_u32 v1, v{L}, 4, 1"); a("v_lshl_add_u32 v2, v1, 5, v2")
    a(f"v_and_b32 v1, 3, v{L}"); a("v_lshl_add_u32 v2, v1, 3, v2")
    a(f"v_add_u32 v{vTRB}, {WSL[2]}, v2"); a(f"v_add_u32 v{vTRB2}, {WSL[0]}, v2")
    a(f"v_and_b32 v1, 31, v{L}"); a(f"v_lshrrev_b32 v2, 5, v{L}"); a("v_and_b32 v3, 15, v1"); a("v_mul_u32_u24 v4, 1280, v1")
    for j in range(8):
        a(f"v_add_u32 v5, {2*j}, v2"); a("v_xor_b32 v5, v5, v3"); a(f"v_lshl_add_u32 v{XA+j}, v5, 4, v4")
    a(f"v_mov_b32 v{vONE}, 0x3f803f80")
    a(f"v_mov_b32 v{vS1}, 0")
    a("s_cmp_lt_u32 s38, 10"); a("s_cbranch_scc1 K1_QK")
    a("s_cmp_lt_u32 s38, 15"); a("s_cbranch_scc1 K1_V")
    for typ in ("H","QK","V"):
        a.label(f"K1_{typ}")
        gen_type(a,typ)
    gen_loader(a,xd_calc,dma_x)
    gen_help(a)
    a.label("K1_END")
    a("s_endpgm")

def gen_loader(a,xd_calc,dma_x):
    L=vLANE
    a.label("K1_LOAD"); a.vm=[]; a.lg=[]
    a("s_cmp_lt_u32 s38, 15"); a("s_cbranch_scc0 K1_W1")
    srd(a,8,6,7,640*3840); a("s_mov_b32 s42, 3840"); a("s_lshl_b32 s43, s38, 8"); a("s_branch K1_WD")
    a.label("K1_W1")
    srd(a,8,24,25,640*3072); a("s_mov_b32 s42, 3072"); a("s_sub_u32 s43, s38, 15"); a("s_lshl_b32 s43, s43, 8")
    a.label("K1_WD")
    a(f"v_lshrrev_b32 v1, 4, v{L}")
    a(f"v_bfe_u32 v2, v{L}, 2, 2")
    a("v_xor_b32 v2, v2, v1")
    a(f"v_and_b32 v3, 3, v{L}")
    a("v_lshl_or_b32 v2, v2, 2, v3")
    a("v_lshlrev_b32 v2, 4, v2")
    a("v_mul_lo_u32 v1, v1, s42")
    a(f"v_add_u32 v{vWD}, v1, v2")
    a("s_lshl_b32 s44, s41, 4"); a("s_mul_i32 s44, s44, s42"); a("s_add_u32 s44, s44, s43")
    a("s_lshl_b32 s45, s41, 12")
    a("s_lshl_b32 s46, s42, 2")
    a("s_lshl_b32 s47, s42, 6")
    if STAMP: a("s_memtime s[100:101]"); a("s_waitcnt lgkmcnt(0)"); a(f"s_mov_b32 s70, s100")
    a("s_mov_b32 s56, s81")
    def ld_w(c):
        a("s_mul_i32 s57, s47, s56"); a("s_add_u32 s57, s57, s44")
        for i in range(4):
            if i: a(f"s_add_u32 s57, s57, s46")
            r=16*c+4*i
            a.vmem(f"buffer_load_dwordx4 v[{r}:{r+3}], v{vWD}, s[8:11], s57 offen", f"W{c}")
        a("s_add_u32 s56, s56, 1"); a("s_cmp_eq_u32 s56, 10"); a("s_cselect_b32 s56, 0, s56")
    a("s_mov_b32 s58, s81")
    for i in range(10):
        a(f"s_lshl_b32 s{86+i}, s58, 7")
        a("s_add_u32 s58, s58, 1"); a("s_cmp_eq_u32 s58, 10"); a("s_cselect_b32 s58, 0, s58")
    vXG=200; vWA=201; vWC=202; vXW=203
    a(f"v_lshrrev_b32 v{SRB+1}, 3, v{L}"); a(f"v_add_u32 v{SRB+1}, s79, v{SRB+1}")
    a(f"v_and_b32 v{SRB+2}, 7, v{L}"); a(f"v_and_b32 v{SRB+3}, 15, v{SRB+1}"); a(f"v_mul_u32_u24 v{SRB+4}, 1280, v{SRB+1}")
    a(f"v_lshl_add_u32 v{vXG}, v{SRB+2}, 4, v{SRB+4}")
    a(f"v_xor_b32 v{SRB+5}, v{SRB+2}, v{SRB+3}"); a(f"v_lshl_add_u32 v{vXW}, v{SRB+5}, 4, v{SRB+4}")
    a(f"v_add_u32 v{SRB+5}, 8, v{SRB+2}"); a(f"v_xor_b32 v{SRB+5}, v{SRB+5}, v{SRB+3}"); a(f"v_lshl_add_u32 v{vXW+1}, v{SRB+5}, 4, v{SRB+4}")
    for sl in (1,2):
        for o in range(2): a(f"v_add_u32 v{vXW+2*sl+o}, {sl*XS}, v{vXW+o}")
    a(f"v_lshlrev_b32 v{vSTA}, 2, v{SRB+1}"); a(f"v_add_u32 v{vSTA}, {ST}, v{vSTA}")
    a(f"v_lshlrev_b32 v{vWA}, 4, v{L}"); a(f"v_add_u32 v{vWA}, s45, v{vWA}"); a(f"v_add_u32 v{vWC}, {WSL[2]}, v{vWA}"); a(f"v_add_u32 v{vWA}, {WSL[0]}, v{vWA}")
    a(f"v_mov_b32 v{lONE}, 0x3f803f80")
    def ld_x01(c):
        for j in range(2):
            r=SRB+8*(c%5)+4*j
            a(f"s_add_u32 s57, s{86+c}, s{49 if j==0 else 54}")
            a.vmem(f"buffer_load_dwordx4 v[{r}:{r+3}], v{vXG}, s[12:15], s57 offen", f"W{c}")
    a("s_add_u32 s54, s49, 40960")
    for c in range(WPRE): ld_w(c); ld_x01(c)
    if STAMP: a("s_memtime s[100:101]"); a("s_waitcnt lgkmcnt(0)"); a(f"s_mov_b32 s71, s100")
    if STAMP: a("s_mov_b32 s73, s70"); a("s_mov_b32 s74, s71")
    a("s_mov_b32 s71, 0x3acccccd"); a("s_mov_b32 s72, 0x3727c5ac")
    def ld_x(j):
        b=40*((j-2)%4)
        a(f"s_add_u32 s55, s49, {40960*j}")
        for i in range(10):
            a(f"s_add_u32 s57, s55, s{86+i}")
            a.vmem(f"buffer_load_dwordx4 v[{b+4*i}:{b+4*i+3}], v{vXG}, s[12:15], s57 offen", f"X{j}")
    A0=224; A1=228; A2=232; U=236
    def acc4(A,r,first):
        for k in range(4):
            u=U+2*(k&1)
            a(f"v_lshlrev_b32 v{u}, 16, v{r+k}"); a(f"v_and_b32 v{u+1}, 0xffff0000, v{r+k}")
            if first and k==0:
                a(f"v_pk_add_f32 v[{A}:{A+1}], v[{u}:{u+1}], 0 op_sel_hi:[1,0]"); a(f"v_pk_mul_f32 v[{A+2}:{A+3}], v[{u}:{u+1}], v[{u}:{u+1}]")
            else:
                a(f"v_pk_add_f32 v[{A}:{A+1}], v[{A}:{A+1}], v[{u}:{u+1}]"); a(f"v_pk_fma_f32 v[{A+2}:{A+3}], v[{u}:{u+1}], v[{u}:{u+1}], v[{A+2}:{A+3}]")
    def fin(j,A):
        a(f"v_add_f32 v{lS1}, v{A}, v{A+1}"); a(f"v_add_f32 v{lS2}, v{A+2}, v{A+3}")
        for ctrl in ("quad_perm:[1,0,3,2]","quad_perm:[2,3,0,1]","row_half_mirror"):
            a("s_nop 1")
            a(f"v_add_f32_dpp v{lS1}, v{lS1}, v{lS1} {ctrl} row_mask:0xf bank_mask:0xf")
            a(f"v_add_f32_dpp v{lS2}, v{lS2}, v{lS2} {ctrl} row_mask:0xf bank_mask:0xf")
        a(f"v_mul_f32 v{lS1}, s71, v{lS1}")
        a(f"v_mul_f32 v{lS2}, s71, v{lS2}")
        a(f"v_fma_f32 v{lS2}, -v{lS1}, v{lS1}, v{lS2}")
        a(f"v_add_f32 v{lS2}, s72, v{lS2}")
        a(f"v_rsq_f32 v{lS2}, v{lS2}")
        a("s_nop 0")
        a(f"v_mul_f32 v{lS1}, v{lS1}, v{lS2}")
        a(f"ds_write_b32 v{vSTA}, v{lS2} offset:{j*256}")
        a(f"ds_write_b32 v{vSTA}, v{lS1} offset:{j*256+128}")
        a("s_waitcnt lgkmcnt(0)")
    def stats(j):
        sl=j%3
        b=40*((j-2)%4)
        a.wait_vm(f"X{j}")
        for i in range(10):
            a(f"ds_write_b128 v{vXW+2*sl+(i&1)}, v[{b+4*i}:{b+4*i+3}] offset:{(i>>1)*256}")
        a("s_waitcnt lgkmcnt(0)")
    def get_stats():
        a("s_cmp_ge_u32 s59, 32"); a("s_cbranch_scc1 K1_GSD")
        sv=list(a.vm)
        a(f"v_mov_b32 v{SRB}, 0")
        a.label("K1_POLL")
        a(f"global_load_dword v{SRB+1}, v{SRB}, s[82:83] offset:252 sc1")
        a("s_waitcnt vmcnt(0)"); a.vm=[]
        a(f"v_readfirstlane_b32 s51, v{SRB+1}")
        a("s_cmp_ge_u32 s51, 32"); a("s_cbranch_scc1 K1_POLLD")
        a("s_sleep 2"); a("s_branch K1_POLL")
        a.label("K1_POLLD")
        a("s_lshl_b32 s51, s39, 8"); a("s_lshl_b32 s52, s41, 9"); a("s_add_u32 s51, s51, s52"); a(f"s_add_u32 s51, s51, {STG}")
        a(f"v_lshlrev_b32 v{SRB}, 4, v{L}")
        a("s_mov_b32 exec_hi, 0")
        a(f"buffer_load_dwordx4 v[{SRB+4}:{SRB+7}], v{SRB}, s[16:19], s51 offen sc1")
        a(f"s_add_u32 s52, s52, {ST}"); a(f"v_add_u32 v{SRB}, s52, v{SRB}")
        a("s_waitcnt vmcnt(0)")
        a(f"ds_write_b128 v{SRB}, v[{SRB+4}:{SRB+7}]")
        a("s_mov_b64 exec, -1")
        a("s_waitcnt lgkmcnt(0)")
        a.label("K1_GSD"); a.vm=sv
    for c in range(10):
        a.wait_vm(f"W{c}")
        if STAMP: a("s_memtime s[100:101]"); a("s_waitcnt lgkmcnt(0)"); a(f"s_mov_b32 s{60+c}, s100")
        for i in range(4):
            r=16*c+4*i
            a(f"ds_write_b128 v{vWA if (c%4)<2 else vWC}, v[{r}:{r+3}] offset:{(c%2)*16384+i*1024}")
        for j in range(2):
            r=SRB+8*(c%5)+4*j
            a(f"ds_write_b128 v{vXW+2*j+(c&1)}, v[{r}:{r+3}] offset:{(c>>1)*256}")
        a("s_waitcnt lgkmcnt(0)")
        a("s_barrier")
        if c==PC0:
            a(f"v_mov_b32 v217, 0")
            a.vmem(f"global_load_dword v218, v217, s[82:83] offset:252 sc1","P")
        if c==PC0+3:
            a.wait_vm("P"); a("v_readfirstlane_b32 s59, v218")
            a("s_lshl_b32 s51, s39, 8"); a("s_lshl_b32 s52, s41, 9"); a("s_add_u32 s51, s51, s52"); a(f"s_add_u32 s51, s51, {STG}")
            a(f"v_lshlrev_b32 v217, 4, v{L}")
            a("s_mov_b32 exec_hi, 0")
            a.vmem(f"buffer_load_dwordx4 v[220:223], v217, s[16:19], s51 offen sc1","S1")
            a("s_mov_b64 exec, -1")
        if c==9:
            a.wait_vm("S1")
            a("s_cmp_ge_u32 s59, 32"); a("s_cbranch_scc0 K1_NS")
            a(f"s_add_u32 s52, s52, {ST}"); a(f"v_add_u32 v217, s52, v217")
            a("s_mov_b32 exec_hi, 0")
            a(f"ds_write_b128 v217, v[220:223]")
            a("s_mov_b64 exec, -1")
            a("s_waitcnt lgkmcnt(0)")
            a.label("K1_NS")
        if c+WPRE<10: ld_w(c+WPRE); ld_x01(c+WPRE)
        for j,cc in XSCHED.items():
            if cc==c:
                ld_x(j)
        if c==9: get_stats()
    nxt=[max(XSCHED)+1]
    def more():
        if nxt[0]<8: ld_x(nxt[0]); nxt[0]+=1
    a("s_barrier")
    stats(2)
    a("s_barrier")
    for j in range(3,8):
        more()
        stats(j)
        a("s_barrier")
    if STAMP:
        for i in range(10): a(f"s_mov_b32 s{85+i}, s{60+i}")
        a("s_mov_b32 s95, s73"); a("s_mov_b32 s96, s74")
        stamp_out(a,13,38,48,1)
    a("s_endpgm")

def gen_type(a,typ):
    L=vLANE
    a.vm=[]; a.lg=[]
    a(f"v_and_b32 v10, 31, v{L}"); a(f"v_lshrrev_b32 v11, 5, v{L}")
    if typ=="QK":
        a("s_cmp_lt_u32 s38, 5"); a(f"s_cselect_b32 s56, 0, {KH}"); a("s_cselect_b32 s57, 0, 5")
        a(f"s_cselect_b32 s62, 0x{fbits(QSCALE):x}, 0x3f800000")
        a("s_sub_u32 s57, s38, s57"); a("s_lshl_b32 s57, s57, 7"); a("s_lshl_b32 s58, s41, 5"); a("s_add_u32 s57, s57, s58")
        a("v_mul_u32_u24 v12, 40, v10")
        for q in range(4):
            a(f"v_lshl_add_u32 v13, v11, 2, s57")
            if q: a(f"v_add_u32 v13, {8*q}, v13")
            a("v_mul_u32_u24 v14, 3277, v13"); a("v_lshrrev_b32 v14, 16, v14")
            a("v_mul_u32_u24 v14, 81880, v14"); a("v_lshl_add_u32 v14, v13, 1, v14"); a(f"v_add_u32 v{SO+q}, v14, v12")
        a("s_mul_i32 s59, s39, 1280"); a("s_add_u32 s59, s59, s56")
        a("s_movk_i32 s60, 1280")
    elif typ=="H":
        srd(a,64,26,27,1536*2)
        a("s_sub_u32 s57, s38, 15"); a("s_lshl_b32 s57, s57, 2"); a("s_add_u32 s57, s57, s41")
        a("s_lshl_b32 s58, s57, 6")
        a("v_lshlrev_b32 v12, 1, v10")
        a("buffer_load_ushort v15, v12, s[64:67], s58 offen")
        a("v_lshrrev_b32 v12, 4, v10"); a("v_mul_u32_u24 v12, 50176, v12"); a("v_and_b32 v13, 15, v10")
        a("v_lshl_add_u32 v12, v13, 4, v12"); a(f"v_lshl_add_u32 v{SO}, v11, 8, v12")
        a("s_mul_i32 s59, s39, 100352"); a("s_lshl_b32 s58, s57, 10"); a("s_add_u32 s59, s59, s58"); a(f"s_add_u32 s59, s59, {HF}")
        a("s_mov_b32 s60, 100352")
    else:
        a("s_sub_u32 s57, s38, 10"); a("s_lshl_b32 s57, s57, 7"); a("s_lshl_b32 s58, s41, 5"); a("s_add_u32 s57, s57, s58")
        a("v_add_u32 v13, s57, v10")
        a("v_mul_u32_u24 v14, 3277, v13"); a("v_lshrrev_b32 v14, 16, v14")
        a("v_mul_u32_u24 v12, 20, v14"); a("v_sub_u32 v13, v13, v12")
        a("v_mul_u32_u24 v14, 81920, v14"); a("v_lshl_add_u32 v14, v13, 6, v14"); a(f"v_lshl_add_u32 v{SO}, v11, 4, v14")
        a(f"s_mul_i32 s59, s39, 1280"); a(f"s_add_u32 s59, s59, {VT}")
        a("s_movk_i32 s60, 1280")
    if typ=="V": a(f"v_lshlrev_b32 v{vTMP}, 4, v11"); a(f"v_add_u32 v{vTMP}, {ST}, v{vTMP}")
    else: a(f"v_lshlrev_b32 v{vTMP}, 2, v10"); a(f"v_add_u32 v{vTMP}, {ST}, v{vTMP}")
    a("s_lshl_b32 s51, s41, 7"); a(f"s_add_u32 s51, s51, {CSA}")
    a(f"v_lshlrev_b32 v{vCB}, 4, v11"); a(f"v_add_u32 v{vCB}, s51, v{vCB}")
    a(f"v_lshlrev_b32 v{vRS}, 2, v10"); a(f"v_add_u32 v{vRS}, s51, v{vRS}")
    stamp(a,1)
    a("s_waitcnt vmcnt(0)")
    if typ=="H":
        a("v_lshlrev_b32 v15, 16, v15"); a(f"ds_write_b32 v{vRS}, v15 offset:{BBA-CSA}")
    stamp(a,2)
    def mf(acc,s,xf,first):
        c = "0" if first else f"v[{acc}:{acc+15}]"
        wf=f"v[{WF+4*s}:{WF+4*s+3}]"; x=f"v[{xf}:{xf+3}]"
        if typ=="V": a(f"v_mfma_f32_32x32x16_bf16 v[{acc}:{acc+15}], {x}, {wf}, {c}")
        else: a(f"v_mfma_f32_32x32x16_bf16 v[{acc}:{acc+15}], {wf}, {x}, {c}")
    def xr2(c,k):
        s=4*c+(k&3)
        a(f"ds_read_b128 v[{XF+4*k}:{XF+4*k+3}], v{XA+(s%8)} offset:{(k>>2)*XS+(s>>3)*256}")
    for c in range(11):
        if c<10:
            a("s_barrier")
            if c==5: stamp(a,3)
            tb = vTRB2 if (c%4)<2 else vTRB
            for sp in range(4):
                for rd in range(2):
                    r=WF+16*c+4*sp+2*rd
                    a(f"ds_read_b64_tr_b16 v[{r}:{r+1}], v{tb} offset:{(c%2)*16384+sp*4096+rd*1024}")
        if c==0:
            for k in range(8): xr2(0,k)
        else:
            a(f"s_waitcnt lgkmcnt({8 if c<10 else 0})")
            for r in range(16): a(f"v_dot2c_f32_bf16 v{vS1}, v{vONE}, v{WF+16*(c-1)+r}")
            for k in range(8):
                kk=(k&1)*4+(k>>1)
                mf(ACC[kk>>2],4*(c-1)+(kk&3),XF+4*kk,(c==1 and (kk&3)==0))
                if c<10: xr2(c,kk)
        if c<10: a("s_waitcnt lgkmcnt(8)")
    a("s_waitcnt lgkmcnt(0)")
    a("s_barrier")
    a("s_nop 2")
    a(f"v_mov_b32 v{P}, v{vS1}"); a("s_nop 1"); a(f"v_permlane32_swap_b32 v{vS1}, v{P}"); a("s_nop 1")
    a(f"v_add_f32 v{vS1}, v{vS1}, v{P}")
    if typ=="V": a(f"v_mov_b32 v{vCB}, v{vS1}")
    else: a(f"ds_write_b32 v{vRS}, v{vS1}")
    a("s_waitcnt lgkmcnt(0)")
    stamp(a,4)
    def epi_fill(par,stoff):
        f=[]; acc=ACC[par]
        if typ!="V":
            def rd():
                a.lds(f"ds_read2_b32 v[{vRS}:{vMR}], v{vTMP} offset0:{stoff//4} offset1:{stoff//4+32}","st")
            f.append(rd)
            def rdq(q):
                def g():
                    a.lds(f"ds_read_b128 v[{C4}:{C4+3}], v{vCB} offset:{32*q}","cb")
                    if typ=="H": a.lds(f"ds_read_b128 v[{B4}:{B4+3}], v{vCB} offset:{BBA-CSA+32*q}","cb")
                return g
            for q in range(4):
                f.append(rdq(q)); f.append(None); f.append(None)
                def w(q=q):
                    a.wait_lg("cb")
                    if q==0 and typ=="QK": a(f"v_mul_f32 v{vRS}, s62, v{vRS}"); a(f"v_mul_f32 v{vMR}, s62, v{vMR}")
                f.append(w)
                for i in range(4):
                    k=4*q+i
                    def el(k=k,i=i):
                        if typ=="H":
                            a(f"v_fma_f32 v{T+i}, -v{vMR}, v{C4+i}, v{B4+i}")
                            a(f"v_fmac_f32 v{T+i}, v{acc+k}, v{vRS}")
                            a(f"v_max_f32 v{T+i}, 0, v{T+i}"); a(f"v_mul_f32 v{T+i}, v{T+i}, v{T+i}")
                        else:
                            a(f"v_mul_f32 v{T+i}, v{vMR}, v{C4+i}")
                            a(f"v_fma_f32 v{T+i}, v{acc+k}, v{vRS}, -v{T+i}")
                    f.append(el)
                def pk(q=q):
                    if typ=="QK":
                        b=P+2*(q&1)
                        a(f"v_cvt_pk_bf16_f32 v{b}, v{T}, v{T+1}"); a(f"v_cvt_pk_bf16_f32 v{b+1}, v{T+2}, v{T+3}")
                        a(f"buffer_store_dwordx2 v[{b}:{b+1}], v{SO+q}, s[16:19], s61 offen")
                    else:
                        b=P+2*(q&1)
                        a(f"v_cvt_pk_bf16_f32 v{b}, v{T}, v{T+1}"); a(f"v_cvt_pk_bf16_f32 v{b+1}, v{T+2}, v{T+3}")
                        if q&1:
                            a("s_nop 1"); a(f"v_permlane32_swap_b32 v{P}, v{P+2}"); a(f"v_permlane32_swap_b32 v{P+1}, v{P+3}")
                            a(f"buffer_store_dwordx4 v[{P}:{P+3}], v{SO}, s[16:19], s61 offen offset:{512*(q>>1)}")
                f.append(pk)
        else:
            for q in range(4):
                def rd(q=q):
                    a.lds(f"ds_read_b128 v[{C4}:{C4+3}], v{vTMP} offset:{stoff+32*q}","st")
                    a.lds(f"ds_read_b128 v[{B4}:{B4+3}], v{vTMP} offset:{stoff+128+32*q}","st")
                f.append(rd); f.append(None); f.append(None)
                def el(q=q):
                    a.wait_lg("st")
                    for i in range(4):
                        a(f"v_mul_f32 v{T+i}, v{B4+i}, v{vCB}")
                        a(f"v_fma_f32 v{T+i}, v{acc+4*q+i}, v{C4+i}, -v{T+i}")
                f.append(el)
                def pk(q=q):
                    b=P+2*(q&1)
                    a(f"v_cvt_pk_bf16_f32 v{b}, v{T}, v{T+1}"); a(f"v_cvt_pk_bf16_f32 v{b+1}, v{T+2}, v{T+3}")
                    if q&1:
                        a("s_nop 1"); a(f"v_permlane32_swap_b32 v{P}, v{P+2}"); a(f"v_permlane32_swap_b32 v{P+1}, v{P+3}")
                        a(f"buffer_store_dwordx4 v[{P}:{P+3}], v{SO}, s[16:19], s61 offen offset:{32*(q>>1)}")
                f.append(pk)
        return f
    a("s_mov_b32 s61, s59")
    a("s_nop 7"); a("s_nop 7")
    for fn in epi_fill(0,0):
        if fn: fn()
    a(f"v_add_u32 v{vTMP}, 256, v{vTMP}")
    a("s_add_u32 s61, s61, s60")
    a(f"s_mov_b32 s74, {2*XS}")
    for j in range(8): a(f"v_add_u32 v{XA+j}, s74, v{XA+j}")
    a(f"s_mov_b32 s75, {-2*XS & 0xffffffff}"); a(f"s_mov_b32 s76, {XS}")
    a("s_mov_b32 s69, 2"); a("s_mov_b32 s70, 0")
    a("s_waitcnt lgkmcnt(0)"); a.lg=[]
    a("s_barrier")
    stamp(a,5)
    LA=6
    def xread(s):
        a.lds(f"ds_read_b128 v[{XF+4*(s%8)}:{XF+4*(s%8)+3}], v{XA+(s%8)} offset:{((s%40)>>3)*256}", f"x{s%8}")
    for s in range(LA): xread(s)
    lab=f"K1_LOOP_{typ}"
    a.label(lab)
    if STAMP:
        a("s_memtime s[100:101]"); a("s_waitcnt lgkmcnt(0)")
        for i in range(3):
            a(f"s_cmp_eq_u32 s70, {i}"); a(f"s_cselect_b32 s{90+i}, s100, s{90+i}")
    for par in range(2):
        acc=ACC[par]
        ef=epi_fill(par^1, 0)
        sched=[[] for _ in range(40)]
        for i,fn in enumerate(ef):
            if EXP!=2: sched[2+(i*31)//len(ef)].append(fn)
        a("s_add_u32 s69, s69, 1"); a("s_cmp_ge_u32 s69, 3"); a("s_cselect_b32 s74, s75, s76"); a("s_cselect_b32 s69, 0, s69")
        for s in range(40):
            if s==36:
                a("s_waitcnt lgkmcnt(0)"); a.lg=[]
                if par==1:
                    a("s_cmp_eq_u32 s70, 2"); a(f"s_cbranch_scc1 {lab}_nb")
                a("s_barrier")
                if par==1: a.label(f"{lab}_nb")
                for j in range(8): a(f"v_add_u32 v{XA+j}, s74, v{XA+j}")
                xread(40); xread(41)
            a.wait_lg(f"x{s%8}")
            mf(acc,s,XF+4*(s%8),s==0)
            if s<34 or s>=36: xread(s+LA)
            for fn in sched[s]:
                if fn: fn()
        a("s_add_u32 s61, s61, s60"); a(f"v_add_u32 v{vTMP}, 256, v{vTMP}")
    a("s_add_u32 s70, s70, 1"); a("s_cmp_lt_u32 s70, 3"); a(f"s_cbranch_scc1 {lab}")
    stamp(a,9)
    a("s_waitcnt lgkmcnt(0)"); a.lg=[]
    a("s_nop 7"); a("s_nop 7")
    for fn in epi_fill(1,0):
        if fn: fn()
    if STAMP:
        a("s_waitcnt vmcnt(0)")
        stamp(a,10)
        stamp_out(a,11,32 if typ=="QK" else (130 if typ=="V" else 38),{"QK":0,"V":16,"H":32}[typ],1)
    a("s_endpgm")

def gen_help(a):
    L=vLANE
    a.label("K1_HELP")
    srd(a,16,30,31,0x2000000)
    a("s_cmp_ge_u32 s80, 4"); a("s_cbranch_scc1 K1_H1")
    srd(a,12,4,5,2048*1280)
    a("s_lshl_b32 s51, s80, 3"); a("s_add_u32 s51, s51, s32"); a("s_lshl_b32 s51, s51, 6"); a("s_lshl_b32 s52, s78, 3"); a("s_add_u32 s51, s51, s52")
    a(f"v_lshrrev_b32 v1, 3, v{L}"); a("v_add_u32 v1, s51, v1")
    a(f"v_and_b32 v2, 7, v{L}"); a("v_mul_u32_u24 v3, 1280, v1"); a("v_lshl_add_u32 v3, v2, 4, v3")
    for i in range(10): a(f"buffer_load_dwordx4 v[{8+4*i}:{11+4*i}], v3, s[12:15], 0 offen offset:{128*i}")
    a("v_mov_b32 v4, 0"); a("v_mov_b32 v5, 0"); a("v_mov_b32 v6, 0x3f803f80")
    a("v_lshrrev_b32 v7, 5, v1"); a("v_lshlrev_b32 v7, 8, v7"); a("v_and_b32 v1, 31, v1"); a("v_lshl_add_u32 v7, v1, 2, v7")
    a("s_mov_b32 s71, 0x3acccccd"); a("s_mov_b32 s72, 0x3727c5ac"); a(f"s_mov_b32 s73, {STG}")
    for i in range(10):
        a(f"s_waitcnt vmcnt({9-i})")
        for r in range(4):
            a(f"v_dot2c_f32_bf16 v4, v6, v{8+4*i+r}"); a(f"v_dot2c_f32_bf16 v5, v{8+4*i+r}, v{8+4*i+r}")
    for ctrl in ("quad_perm:[1,0,3,2]","quad_perm:[2,3,0,1]","row_half_mirror"):
        a("s_nop 2")
        a(f"v_add_f32_dpp v4, v4, v4 {ctrl} row_mask:0xf bank_mask:0xf")
        a(f"v_add_f32_dpp v5, v5, v5 {ctrl} row_mask:0xf bank_mask:0xf")
    a("v_mul_f32 v4, s71, v4"); a("v_mul_f32 v5, s71, v5"); a("v_fma_f32 v5, -v4, v4, v5"); a("v_add_f32 v5, s72, v5")
    a("v_rsq_f32 v5, v5"); a("s_nop 0"); a("v_mul_f32 v4, v4, v5")
    a("v_cmp_eq_u32 vcc, 0, v2"); a("s_and_saveexec_b64 s[74:75], vcc")
    a("buffer_store_dword v5, v7, s[16:19], s73 offen sc1")
    a("buffer_store_dword v4, v7, s[16:19], s73 offen offset:128 sc1")
    a("s_mov_b64 exec, s[74:75]")
    a("s_waitcnt vmcnt(0)")
    a("s_barrier")
    a("s_cmp_lg_u32 s78, 0"); a("s_cbranch_scc1 K1_H0")
    a("v_mov_b32 v4, 1"); a("v_mov_b32 v5, 0")
    a("s_mov_b64 exec, 1")
    a("global_atomic_add v5, v4, s[82:83] offset:252 sc1")
    a("s_mov_b64 exec, -1")
    a.label("K1_H0")
    a("s_cmp_lg_u32 s2, 0"); a("s_cbranch_scc1 K1_H1")
    a(f"v_lshlrev_b32 v1, 8, v{L}"); a("v_mov_b32 v2, 0"); a("s_mov_b32 s51, 0x1C10000")
    a("buffer_store_dword v2, v1, s[16:19], s51 offen")
    a.label("K1_H1")
    a("s_cmp_ge_u32 s32, 6"); a("s_cbranch_scc1 K1_H2")
    a("s_lshl_b32 s40, s32, 2"); a("s_add_u32 s40, s40, s33"); a("s_sub_u32 s40, s40, 28"); a("s_branch K1_H3")
    a.label("K1_H2")
    a("s_sub_u32 s40, s32, 6"); a("s_lshl_b32 s40, s40, 3"); a("s_add_u32 s40, s40, s33")
    a.label("K1_H3")
    a("s_lshl_b32 s40, s40, 3"); a("s_add_u32 s40, s40, s78")
    a(f"v_lshrrev_b32 v1, 4, v{L}"); a("v_mul_u32_u24 v1, 10240, v1"); a(f"v_and_b32 v2, 15, v{L}"); a("v_lshl_add_u32 v1, v2, 1, v1")
    a("v_add_u32 v2, 5120, v1"); a(f"v_lshlrev_b32 v3, 4, v{L}")
    for (lo,hi,nk,dst,n) in ((28,29,1536,W2F,6),(20,21,640,WOF,3)):
        srd(a,8,lo,hi,nk*1280)
        gs=list(range(n))
        for t,it in enumerate(gs):
            a(f"s_add_u32 s{44+t}, s40, {320*it}")
            a(f"s_mul_i32 s51, s{44+t}, 1639"); a("s_lshr_b32 s51, s51, 16")
            a("s_mul_i32 s52, s51, 40"); a(f"s_sub_u32 s52, s{44+t}, s52")
            a("s_mul_i32 s51, s51, 40960"); a("s_lshl_b32 s52, s52, 5"); a("s_add_u32 s51, s51, s52")
            for j in range(8):
                a(f"buffer_load_ushort v{40+8*t+j}, v{1 if j<4 else 2}, s[8:11], s51 offen offset:{(j&3)*1280}")
        a("s_waitcnt vmcnt(0)")
        for t,it in enumerate(gs):
            for j in range(4): a(f"v_lshl_or_b32 v{8+4*t+j}, v{40+8*t+2*j+1}, 16, v{40+8*t+2*j}")
            a(f"s_lshl_b32 s51, s{44+t}, 10"); a(f"s_add_u32 s51, s51, {dst}")
            a(f"buffer_store_dwordx4 v[{8+4*t}:{8+4*t+3}], v3, s[16:19], s51 offen")
        a("s_nop 1")
```

```python
import os
from asmlib import *
from k1 import QH,KH,VT,VTP,HF,W2F,WOF,OF,GB
KF=0; VF=72; S=144; Q=216; O=232
vKO=240; vVO=241; vVO1=242; vQO=243; vOO=244; vOO1=245; vNEG=246; vM=247; vT=248; vT2=249; vBP=250; vL=251

def attn_body(a, s_m, s_h, pfx, sc1=""):
    L=vL
    a(f"v_and_b32 v151, 15, v{L}"); a(f"v_lshrrev_b32 v152, 4, v{L}")
    a("v_lshrrev_b32 v153, 2, v151"); a("v_and_b32 v154, 3, v151"); a("v_lshl_add_u32 v153, v153, 3, v154")
    a(f"s_lshl_b32 s72, s{s_h}, 11"); a(f"s_lshl_b32 s73, s{s_m}, 6"); a("s_add_u32 s72, s72, s73")
    a("s_mul_i32 s74, s72, 40")
    a("v_mul_u32_u24 v153, 40, v153"); a("v_lshl_add_u32 v153, v152, 4, v153"); a(f"v_add_u32 v{vKO}, s74, v153")
    a("v_mul_u32_u24 v153, 40, v151"); a("v_lshl_add_u32 v153, v152, 4, v153"); a(f"v_add_u32 v{vQO}, s74, v153")
    a(f"s_mul_i32 s75, s{s_h}, 20"); a("v_add_u32 v153, s75, v151"); a(f"v_mul_u32_u24 v153, {VTP}, v153")
    a("v_lshl_add_u32 v153, v152, 4, v153"); a("s_lshl_b32 s76, s73, 1"); a(f"v_add_u32 v{vVO}, s76, v153")
    a(f"v_add_u32 v{vVO1}, {16*VTP}, v{vVO}")
    def ldK(g):
        sl=g%9
        a(f"s_movk_i32 s77, {1280*g}")
        for ab in range(2):
            a.vmem(f"buffer_load_dwordx4 v[{KF+8*sl+4*ab}:{KF+8*sl+4*ab+3}], v{vKO}, s[8:11], s77 offen offset:{160*ab}",f"K{g}")
    def ldV(g):
        sl=g%9
        a.vmem(f"buffer_load_dwordx4 v[{VF+8*sl}:{VF+8*sl+3}], v{vVO}, s[12:15], 0 offen offset:{64*g}",f"V{g}")
        a("s_mov_b64 exec, s[78:79]")
        a.vmem(f"buffer_load_dwordx4 v[{VF+8*sl+4}:{VF+8*sl+7}], v{vVO1}, s[12:15], 0 offen offset:{64*g}",f"V{g}")
        a("s_mov_b64 exec, -1")
    a("v_cmp_gt_u32 s[78:79], 4, v151")
    for qb in range(4):
        a.vmem(f"buffer_load_dwordx4 v[{Q+4*qb}:{Q+4*qb+3}], v{vQO}, s[16:19], 0 offen offset:{640*qb}","Q")
    for g in range(9): ldK(g)
    a("v_cmp_eq_u32 vcc, 4, v151"); a("v_mov_b32 v153, 0x3f803f80"); a("s_nop 0"); a("v_cndmask_b32 v153, 0, v153, vcc")
    for sl in range(9):
        for r in range(4): a(f"v_mov_b32 v{VF+8*sl+4+r}, v153")
    for g in range(9): ldV(g)
    a("v_lshlrev_b32 v153, 3, v152")
    for par in range(2):
        for k in range(8):
            a(f"v_add_u32 v154, {k-16*par}, v153")
            a(f"v_cmp_le_i32 s[{40+2*(8*par+k)}:{41+2*(8*par+k)}], v154, v151")
    a(f"v_mov_b32 v{vNEG}, 0xf149f2ca")
    a("v_lshl_add_u32 v153, v152, 2, s75")
    a("v_lshrrev_b32 v154, 5, v153"); a("v_lshlrev_b32 v154, 10, v154"); a("v_lshl_add_u32 v154, v151, 4, v154")
    a("v_bfe_u32 v155, v153, 3, 2"); a("v_lshl_add_u32 v154, v155, 8, v154"); a("v_and_b32 v155, 4, v153"); a(f"v_lshl_add_u32 v{vOO}, v155, 1, v154")
    a("s_add_u32 s80, s75, 16"); a("s_lshr_b32 s81, s80, 5"); a("s_lshl_b32 s81, s81, 10"); a("s_bfe_u32 s82, s80, 0x20003"); a("s_lshl_b32 s82, s82, 8")
    a("s_add_u32 s81, s81, s82"); a("s_and_b32 s82, s80, 4"); a("s_lshl_b32 s82, s82, 1"); a("s_add_u32 s81, s81, s82")
    a(f"v_lshl_add_u32 v{vOO1}, v151, 4, s81")
    a(f"v_add_u32 v{vBP}, 16, v151"); a(f"v_lshlrev_b32 v{vBP}, 2, v{vBP}")
    a(f"s_mul_i32 s83, s{s_m}, 81920"); a(f"s_add_u32 s83, s83, {OF}")
    a("v_cmp_gt_u32 s[84:85], 3, v152"); a("v_cmp_gt_u32 s[86:87], 2, v152"); a("v_cmp_eq_u32 s[88:89], 0, v152")
    a.wait_vm("Q")
    for qb in range(4):
        for r in range(4): a(f"v_cndmask_b32 v{Q+4*qb+r}, 0, v{Q+4*qb+r}, s[{84 if r<2 else 86}:{85 if r<2 else 87}]")
    a(f"s_lshl_b32 s90, s{s_m}, 1"); a("s_sub_i32 s90, 8, s90"); a("s_max_i32 s90, s90, 0")
    def zeroV(g):
        lab=a.newlabel(pfx+"zv"); sl=g%9
        a(f"s_cmp_gt_u32 s90, {g}"); a(f"s_cbranch_scc0 {lab}")
        for r in range(4): a(f"v_mov_b32 v{VF+8*sl+r}, 0");
        a("s_mov_b64 exec, s[78:79]")
        for r in range(4): a(f"v_mov_b32 v{VF+8*sl+4+r}, 0")
        a("s_mov_b64 exec, -1")
        a.label(lab)
    for qb in range(4):
        g0=qb>>1; par=qb&1
        for gr in range(9):
            g=g0+gr; sl=g%9
            a.wait_vm(f"K{g}")
            for ab in range(2):
                a(f"v_mfma_f32_16x16x32_bf16 v[{S+8*gr+4*ab}:{S+8*gr+4*ab+3}], v[{KF+8*sl+4*ab}:{KF+8*sl+4*ab+3}], v[{Q+4*qb}:{Q+4*qb+3}], 0")
        if qb==1: ldK(9)
        a("s_nop 7")
        for k in range(8):
            m=f"s[{40+2*(8*par+k)}:{41+2*(8*par+k)}]"
            a(f"v_cndmask_b32 v{S+k}, v{S+k}, v{vNEG}, {m}")
            a(f"v_cndmask_b32 v{S+64+k}, v{vNEG}, v{S+64+k}, {m}")
        for gr in range(8):
            g=g0+gr
            if g<8:
                lab=a.newlabel(pfx+"inv")
                a(f"s_cmp_gt_u32 s90, {g}"); a(f"s_cbranch_scc0 {lab}")
                for k in range(8): a(f"v_mov_b32 v{S+8*gr+k}, v{vNEG}")
                a.label(lab)
        a(f"v_max3_f32 v{vM}, v{S}, v{S+1}, v{S+2}")
        for k in range(3,71,2): a(f"v_max3_f32 v{vM}, v{vM}, v{S+k}, v{S+k+1}")
        a(f"v_max_f32 v{vM}, v{vM}, v{S+71}")
        a(f"v_mov_b32 v{vT}, v{vM}"); a("s_nop 1"); a(f"v_permlane32_swap_b32 v{vM}, v{vT}"); a("s_nop 1"); a(f"v_max_f32 v{vM}, v{vM}, v{vT}")
        a(f"v_mov_b32 v{vT}, v{vM}"); a("s_nop 1"); a(f"v_permlane16_swap_b32 v{vM}, v{vT}"); a("s_nop 1"); a(f"v_max_f32 v{vM}, v{vM}, v{vT}")
        for gr in range(9):
            g=g0+gr; sl=g%9; b=S+8*gr
            for k in range(8): a(f"v_sub_f32 v{b+k}, v{b+k}, v{vM}")
            for k in range(8): a(f"v_exp_f32 v{b+k}, v{b+k}")
            a("s_nop 0")
            for k in range(4): a(f"v_cvt_pk_bf16_f32 v{b+k}, v{b+2*k}, v{b+2*k+1}")
            a.wait_vm(f"V{g}")
            if qb in (0,) and g<8: zeroV(g)
            a("s_nop 1")
            for dt in range(2):
                c = "0" if gr==0 else f"v[{O+4*dt}:{O+4*dt+3}]"
                a(f"v_mfma_f32_16x16x32_bf16 v[{O+4*dt}:{O+4*dt+3}], v[{VF+8*sl+4*dt}:{VF+8*sl+4*dt+3}], v[{b}:{b+3}], {c}")
        if qb==1: ldV(9)
        a("s_nop 7")
        a(f"ds_bpermute_b32 v{vT}, v{vBP}, v{O+4}")
        a("s_waitcnt lgkmcnt(0)")
        a(f"v_rcp_f32 v{vT}, v{vT}"); a("s_nop 0")
        for k in range(8): a(f"v_mul_f32 v{O+k}, v{O+k}, v{vT}")
        for k in range(4): a(f"v_cvt_pk_bf16_f32 v{O+k}, v{O+2*k}, v{O+2*k+1}")
        a(f"s_add_u32 s91, s83, {20480*qb}")
        a.vmem(f"buffer_store_dwordx2 v[{O}:{O+1}], v{vOO}, s[16:19], s91 offen {sc1}","st")
        a("s_mov_b64 exec, s[88:89]")
        a.vmem(f"buffer_store_dwordx2 v[{O+2}:{O+3}], v{vOO1}, s[16:19], s91 offen {sc1}","st")
        a("s_mov_b64 exec, -1")
        a("s_nop 1")

def attn_loop(a, s_m, s_h, pfx, sc1=""):
    L=vL
    a(f"v_and_b32 v151, 15, v{L}"); a(f"v_lshrrev_b32 v152, 4, v{L}")
    a("v_lshrrev_b32 v153, 2, v151"); a("v_and_b32 v154, 3, v151"); a("v_lshl_add_u32 v153, v153, 3, v154")
    a(f"s_lshl_b32 s72, s{s_h}, 11"); a(f"s_lshl_b32 s73, s{s_m}, 6"); a("s_add_u32 s72, s72, s73")
    a("s_mul_i32 s74, s72, 40")
    a("v_mul_u32_u24 v153, 40, v153"); a("v_lshl_add_u32 v153, v152, 4, v153"); a(f"v_add_u32 v{vKO}, s74, v153")
    a("v_mul_u32_u24 v153, 40, v151"); a("v_lshl_add_u32 v153, v152, 4, v153"); a(f"v_add_u32 v{vQO}, s74, v153")
    a(f"s_mul_i32 s75, s{s_h}, 20")
    a(f"s_mul_i32 s76, s{s_h}, 81920"); a(f"s_mul_i32 s77, s{s_m}, 2560"); a("s_add_u32 s76, s76, s77")
    a("v_lshlrev_b32 v153, 6, v151"); a("v_lshl_add_u32 v153, v152, 4, v153"); a(f"v_add_u32 v{vVO}, s76, v153")
    def ldK(g):
        sl=g%9
        a(f"s_movk_i32 s77, {1280*g}")
        for ab in range(2):
            a.vmem(f"buffer_load_dwordx4 v[{KF+8*sl+4*ab}:{KF+8*sl+4*ab+3}], v{vKO}, s[8:11], s77 offen offset:{160*ab}",f"K{g}")
    def ldV(g):
        sl=g%9
        a(f"s_movk_i32 s77, {1280*g}")
        a.vmem(f"buffer_load_dwordx4 v[{VF+8*sl}:{VF+8*sl+3}], v{vVO}, s[12:15], s77 offen",f"V{g}")
        a("s_mov_b64 exec, s[78:79]")
        a.vmem(f"buffer_load_dwordx4 v[{VF+8*sl+4}:{VF+8*sl+7}], v{vVO}, s[12:15], s77 offen offset:1024",f"V{g}")
        a("s_mov_b64 exec, -1")
    a("v_cmp_gt_u32 s[78:79], 4, v151")
    for qb in range(4):
        a.vmem(f"buffer_load_dwordx4 v[{Q+4*qb}:{Q+4*qb+3}], v{vQO}, s[16:19], 0 offen offset:{640*qb}","Q")
    for g in range(9): ldK(g)
    a("v_cmp_eq_u32 vcc, 4, v151"); a("v_mov_b32 v153, 0x3f803f80"); a("s_nop 0"); a("v_cndmask_b32 v153, 0, v153, vcc")
    for sl in range(9):
        for r in range(4): a(f"v_mov_b32 v{VF+8*sl+4+r}, v153")
    for g in range(9): ldV(g)
    a("s_waitcnt lgkmcnt(0)"); a("s_barrier")
    a("v_lshlrev_b32 v253, 3, v152"); a("v_mov_b32 v252, v151")
    a(f"v_mov_b32 v{vNEG}, 0xf149f2ca")
    a("v_lshl_add_u32 v153, v152, 2, s75")
    a("v_lshrrev_b32 v154, 5, v153"); a("v_lshlrev_b32 v154, 10, v154"); a("v_lshl_add_u32 v154, v151, 4, v154")
    a("v_bfe_u32 v155, v153, 3, 2"); a("v_lshl_add_u32 v154, v155, 8, v154"); a("v_and_b32 v155, 4, v153"); a(f"v_lshl_add_u32 v{vOO}, v155, 1, v154")
    a("s_add_u32 s80, s75, 16"); a("s_lshr_b32 s81, s80, 5"); a("s_lshl_b32 s81, s81, 10"); a("s_bfe_u32 s82, s80, 0x20003"); a("s_lshl_b32 s82, s82, 8")
    a("s_add_u32 s81, s81, s82"); a("s_and_b32 s82, s80, 4"); a("s_lshl_b32 s82, s82, 1"); a("s_add_u32 s81, s81, s82")
    a(f"v_lshl_add_u32 v{vOO1}, v151, 4, s81")
    a(f"v_add_u32 v{vBP}, 16, v151"); a(f"v_lshlrev_b32 v{vBP}, 2, v{vBP}")
    a(f"s_mul_i32 s83, s{s_m}, 81920"); a(f"s_add_u32 s83, s83, {OF}")
    a("v_cmp_gt_u32 s[84:85], 3, v152"); a("v_cmp_gt_u32 s[86:87], 2, v152"); a("v_cmp_eq_u32 s[88:89], 0, v152")
    a.wait_vm("Q")
    for qb in range(4):
        for r in range(4): a(f"v_cndmask_b32 v{Q+4*qb+r}, 0, v{Q+4*qb+r}, s[{84 if r<2 else 86}:{85 if r<2 else 87}]")
    a(f"s_lshl_b32 s90, s{s_m}, 1"); a("s_sub_i32 s90, 8, s90"); a("s_max_i32 s90, s90, 0")
    def zeroV(g):
        lab=a.newlabel(pfx+"zv"); sl=g%9
        a(f"s_cmp_gt_u32 s90, {g}"); a(f"s_cbranch_scc0 {lab}")
        for r in range(4): a(f"v_mov_b32 v{VF+8*sl+r}, 0");
        a("s_mov_b64 exec, s[78:79]")
        for r in range(4): a(f"v_mov_b32 v{VF+8*sl+4+r}, 0")
        a("s_mov_b64 exec, -1")
        a.label(lab)
    a("s_waitcnt vmcnt(0)"); a.vm=[]
    for g in range(8): zeroV(g)
    stamp(a,11)
    a("s_mov_b32 s92, 0"); a("s_mov_b32 s91, s83")
    lp=pfx+"_QB"
    a.label(lp)
    if STAMP:
        a("s_memtime s[100:101]"); a("s_waitcnt lgkmcnt(0)")
        a("s_cmp_eq_u32 s92, 1"); a("s_cselect_b32 s98, s100, s98"); a("s_cmp_eq_u32 s92, 2"); a("s_cselect_b32 s99, s100, s99")
    for sl in (1,2,3,4,5,6,7,8,0):
        if sl==0: a("s_waitcnt vmcnt(4)")
        for ab in range(2):
            a(f"v_mfma_f32_16x16x32_bf16 v[{S+8*sl+4*ab}:{S+8*sl+4*ab+3}], v[{KF+8*sl+4*ab}:{KF+8*sl+4*ab+3}], v[{Q}:{Q+3}], 0")
    a("s_cmp_lg_u32 s92, 1"); a(f"s_cbranch_scc1 {lp}_a")
    ldK(9)
    a.label(lp+"_a")
    a("s_and_b32 s93, s92, 1"); a("s_lshl_b32 s93, s93, 4")
    a("v_subrev_u32 v254, s93, v253")
    for k in range(8):
        a(f"v_cmp_le_i32 s[{40+2*k}:{41+2*k}], v254, v252")
        if k<7: a("v_add_u32 v254, 1, v254")
    for r in range(3): a(f"v_mov_b32 v{Q+4*r}, v{Q+4*r+4}"); a(f"v_mov_b32 v{Q+4*r+1}, v{Q+4*r+5}"); a(f"v_mov_b32 v{Q+4*r+2}, v{Q+4*r+6}"); a(f"v_mov_b32 v{Q+4*r+3}, v{Q+4*r+7}")
    a("s_nop 3")
    a("s_cmp_ge_u32 s92, 2"); a(f"s_cbranch_scc1 {lp}_m2")
    for k in range(8):
        m=f"s[{40+2*k}:{41+2*k}]"
        a(f"v_cndmask_b32 v{S+k}, v{S+k}, v{vNEG}, {m}")
        a(f"v_cndmask_b32 v{S+64+k}, v{vNEG}, v{S+64+k}, {m}")
    a("s_mov_b32 s93, 0"); a(f"s_branch {lp}_m3")
    a.label(lp+"_m2")
    for k in range(8):
        m=f"s[{40+2*k}:{41+2*k}]"
        a(f"v_cndmask_b32 v{S+8+k}, v{S+8+k}, v{vNEG}, {m}")
        a(f"v_cndmask_b32 v{S+k}, v{vNEG}, v{S+k}, {m}")
    a("s_mov_b32 s93, 9")
    a.label(lp+"_m3")
    a(f"s_cmp_eq_u32 s90, 0"); a(f"s_cbranch_scc1 {lp}_nv")
    for sl in range(8):
        lab=a.newlabel(pfx+"inv")
        if sl==0: a("s_cmp_gt_u32 s90, s93")
        else: a(f"s_cmp_gt_u32 s90, {sl}")
        a(f"s_cbranch_scc0 {lab}")
        for k in range(8): a(f"v_mov_b32 v{S+8*sl+k}, v{vNEG}")
        a.label(lab)
    a.label(lp+"_nv")
    a(f"v_max3_f32 v{vM}, v{S}, v{S+1}, v{S+2}")
    for k in range(3,71,2): a(f"v_max3_f32 v{vM}, v{vM}, v{S+k}, v{S+k+1}")
    a(f"v_max_f32 v{vM}, v{vM}, v{S+71}")
    a(f"v_mov_b32 v{vT}, v{vM}"); a("s_nop 1"); a(f"v_permlane32_swap_b32 v{vM}, v{vT}"); a("s_nop 1"); a(f"v_max_f32 v{vM}, v{vM}, v{vT}")
    a(f"v_mov_b32 v{vT}, v{vM}"); a("s_nop 1"); a(f"v_permlane16_swap_b32 v{vM}, v{vT}"); a("s_nop 1"); a(f"v_max_f32 v{vM}, v{vM}, v{vT}")
    for sl in (1,2,3,4,5,6,7,8,0):
        b=S+8*sl
        if sl==0: a("s_waitcnt vmcnt(2)")
        if os.environ.get("PK","0")=="1":
            if sl==1: a(f"v_mov_b32 v254, v{vM}"); a(f"v_mov_b32 v255, v{vM}")
            for k in range(0,8,2): a(f"v_pk_add_f32 v[{b+k}:{b+k+1}], v[{b+k}:{b+k+1}], v[254:255] neg_lo:[0,1] neg_hi:[0,1]")
        else:
            for k in range(8): a(f"v_sub_f32 v{b+k}, v{b+k}, v{vM}")
        for k in range(8): a(f"v_exp_f32 v{b+k}, v{b+k}")
        a("s_nop 0")
        for k in range(4): a(f"v_cvt_pk_bf16_f32 v{b+k}, v{b+2*k}, v{b+2*k+1}")
        a("s_nop 1")
        for dt in range(2):
            c = "0" if sl==1 else f"v[{O+4*dt}:{O+4*dt+3}]"
            a(f"v_mfma_f32_16x16x32_bf16 v[{O+4*dt}:{O+4*dt+3}], v[{VF+8*sl+4*dt}:{VF+8*sl+4*dt+3}], v[{b}:{b+3}], {c}")
    a("s_cmp_lg_u32 s92, 1"); a(f"s_cbranch_scc1 {lp}_b")
    ldV(9)
    a.label(lp+"_b")
    a("s_nop 7")
    a(f"ds_bpermute_b32 v{vT}, v{vBP}, v{O+4}")
    a("s_waitcnt lgkmcnt(0)")
    a(f"v_rcp_f32 v{vT}, v{vT}"); a("s_nop 0")
    for k in range(8): a(f"v_mul_f32 v{O+k}, v{O+k}, v{vT}")
    for k in range(4): a(f"v_cvt_pk_bf16_f32 v{O+k}, v{O+2*k}, v{O+2*k+1}")
    a(f"buffer_store_dwordx2 v[{O}:{O+1}], v{vOO}, s[16:19], s91 offen {sc1}")
    a("s_mov_b64 exec, s[88:89]")
    a(f"buffer_store_dwordx2 v[{O+2}:{O+3}], v{vOO1}, s[16:19], s91 offen {sc1}")
    a("s_mov_b64 exec, -1")
    a("s_add_u32 s91, s91, 20480")
    a("s_add_u32 s92, s92, 1"); a("s_cmp_lt_u32 s92, 4")
    a(f"s_cbranch_scc1 {lp}")
    a.vm=[]

def attn_srds(a, wslo, wshi):
    srd(a,8,wslo,wshi,2621440+10240,KH-10240)
    srd(a,12,wslo,wshi,2621440+10240,VT-10240)
    srd(a,16,wslo,wshi,0x2000000)

def gen_k2(a):
    a.label("k2_kernel")
    a("s_cmp_ge_u32 s2, 256"); a("s_cbranch_scc1 K2_END")
    a("s_load_dwordx2 s[30:31], s[0:1], 80")
    a(f"v_and_b32 v{vL}, 63, v0"); a("v_lshrrev_b32 v1, 6, v0"); a("s_nop 0"); a("v_readfirstlane_b32 s36, v1")
    a("s_and_b32 s34, s2, 7"); a("s_lshl_b32 s34, s34, 2"); a("s_lshr_b32 s35, s2, 6"); a("s_add_u32 s34, s34, s35"); a("s_bfe_u32 s35, s2, 0x30003"); a("s_lshl_b32 s35, s35, 2"); a("s_add_u32 s35, s35, s36")
    a("s_waitcnt lgkmcnt(0)")
    attn_srds(a,30,31)
    attn_body(a,34,35,"K2")
    a.label("K2_END")
    a("s_endpgm")
```

```python
from asmlib import *
from k1 import QH,KH,VT,VTP,HF,W2F,WOF,OF,GB
import k2,k3
ACC=0; FR=80; NS=4; G=200
vA=224; vW=225; vL=226; vX=227; vRW=228; vRR=229; vRR2=230; vFO=231; TT=232; TP=242; LCNT=102400
def gemm_part(a, nk, sA, sW, strideA_kg, tag):
    def ld(k):
        b=FR+36*(k%NS)
        a(f"s_add_u32 s61, s{sA}, s46")
        for t in range(4):
            if t: a(f"s_add_u32 s60, s61, {t*strideA_kg}")
            a.vmem(f"buffer_load_dwordx4 v[{b+4*t}:{b+4*t+3}], v{vA}, s[16:19], s{60 if t else 61} offen",f"{tag}{k}")
        a(f"s_add_u32 s60, s{sW}, s47")
        for j in range(5):
            if j==4:
                a.vmem(f"buffer_load_dwordx4 v[{b+16+4*j}:{b+16+4*j+3}], v{vW}, s[16:19], s60 offen",f"{tag}{k}")
            else:
                a.vmem(f"buffer_load_dwordx4 v[{b+16+4*j}:{b+16+4*j+3}], v{vA}, s[16:19], s60 offen offset:{1024*j}",f"{tag}{k}")
        a("s_add_u32 s46, s46, 1024"); a("s_add_u32 s47, s47, 40960")
        a("s_cmp_eq_u32 s46, 12288"); a("s_cselect_b32 s46, 0, s46"); a("s_cselect_b32 s47, 0, s47")
    return ld
def mm(a,k,first):
    b=FR+36*(k%NS)
    for t in range(4):
        for j in range(5):
            d=ACC+4*(5*t+j)
            c="0" if first else f"v[{d}:{d+3}]"
            a(f"v_mfma_f32_16x16x32_bf16 v[{d}:{d+3}], v[{b+16+4*j}:{b+16+4*j+3}], v[{b+4*t}:{b+4*t+3}], {c}")
def reduce(a, dst):
    a("s_nop 7")
    for t in range(4):
        for j in range(5):
            d=ACC+4*(5*t+j)
            a.lds(f"ds_write_b128 v{vRW}, v[{d}:{d+3}] offset:{(t*5+j)*1024}","rw")
    a.wait_lg_all(); a("s_barrier")
    for w in range(4):
        for j in range(5):
            r = dst+4*j if w==0 else ACC+20*w+4*j
            a.lds(f"ds_read_b128 v[{r}:{r+3}], v{vRR if w<2 else vRR2} offset:{(w&1)*20480+j*1024}","rr")
    a.wait_lg_all()
    for w in range(1,4):
        for k in range(20): a(f"v_add_f32 v{dst+k}, v{dst+k}, v{ACC+20*w+k}")
CNT=0x1C10000
def fsync(a,off):
    l=a.newlabel("FS"); d=a.newlabel("FSD")
    a(f"v_mov_b32 v{TP+6}, {LCNT+off}"); a(f"v_mov_b32 v{TP+7}, 1")
    a("s_mov_b64 exec, 1")
    a(f"ds_add_u32 v{TP+6}, v{TP+7}")
    a.label(l)
    a(f"ds_read_b32 v{TP+7}, v{TP+6}")
    a("s_waitcnt lgkmcnt(0)")
    a(f"v_readfirstlane_b32 s62, v{TP+7}")
    a("s_cmp_ge_u32 s62, 4"); a(f"s_cbranch_scc1 {d}")
    a("s_sleep 1"); a(f"s_branch {l}")
    a.label(d)
    a("s_mov_b64 exec, -1")
def gen_k23(a):
    a.label("k23_kernel")
    a("s_cmp_ge_u32 s2, 256"); a("s_cbranch_scc1 K23_END")
    stamp(a,0); stamp(a,10)
    a("s_load_dwordx2 s[4:5], s[0:1], 0")
    a("s_load_dwordx4 s[24:27], s[0:1], 56")
    a("s_load_dwordx4 s[28:31], s[0:1], 72")
    a("v_lshrrev_b32 v1, 6, v0"); a("s_nop 0"); a("v_readfirstlane_b32 s33, v1")
    a("s_and_b32 s36, s33, 3")
    a("s_and_b32 s34, s2, 7"); a("s_lshl_b32 s34, s34, 2"); a("s_lshr_b32 s35, s2, 6"); a("s_add_u32 s34, s34, s35"); a("s_bfe_u32 s35, s2, 0x30003")
    a(f"v_mov_b32 v1, {LCNT}"); a("v_mov_b32 v2, 0"); a("v_mov_b32 v3, 0"); a("ds_write_b64 v1, v[2:3]"); a("ds_write_b32 v1, v2 offset:8")
    a("s_cmp_ge_u32 s33, 4"); a("s_cbranch_scc1 K23_F")
    a(f"v_and_b32 v{k2.vL}, 63, v0")
    a("s_lshl_b32 s35, s35, 2"); a("s_add_u32 s35, s35, s36")
    a("s_waitcnt lgkmcnt(0)")
    k2.attn_srds(a,30,31)
    import os
    a(f"s_setprio {os.environ.get('APRIO','3')}")
    k2.attn_loop(a,34,35,"K2",sc1="sc1")
    a("s_waitcnt vmcnt(0)")
    stamp(a,12)
    a(f"v_mov_b32 v1, {LCNT}"); a("v_mov_b32 v2, 1")
    a("s_mov_b64 exec, 1")
    a("ds_add_rtn_u32 v3, v1, v2")
    a("s_waitcnt lgkmcnt(0)")
    a("v_readfirstlane_b32 s38, v3")
    a("s_mov_b64 exec, -1")
    a("s_cmp_lg_u32 s38, 3"); a("s_cbranch_scc1 K23_END")
    a("s_lshl_b32 s37, s34, 8"); a(f"s_add_u32 s37, s37, {CNT}"); a("v_mov_b32 v1, s37"); a("v_mov_b32 v2, 1")
    a("s_mov_b64 exec, 1")
    a("global_atomic_add v1, v2, s[30:31] sc1")
    import os
    if os.environ.get("PP","0")=="1":
        for r in range(4):
            a(f"global_load_dword v{3+r}, v1, s[30:31] sc1"); a("s_sleep 4")
        a.label("K23_POLL")
        for r in range(4):
            a("s_waitcnt vmcnt(3)")
            a(f"v_readfirstlane_b32 s38, v{3+r}")
            a("s_cmp_ge_u32 s38, 8"); a("s_cbranch_scc1 K23_PD")
            a(f"global_load_dword v{3+r}, v1, s[30:31] sc1"); a("s_sleep 4")
        a("s_branch K23_POLL")
    else:
        a.label("K23_POLL")
        a("global_load_dword v3, v1, s[30:31] sc1")
        a("s_waitcnt vmcnt(0)")
        a("v_readfirstlane_b32 s38, v3")
        a("s_cmp_ge_u32 s38, 8"); a("s_cbranch_scc1 K23_PD")
        a(f"s_sleep {os.environ.get('SLP','4')}"); a("s_branch K23_POLL")
    a.label("K23_PD")
    a("s_mov_b64 exec, -1")
    stamp(a,13)
    if STAMP:
        a("s_mov_b32 s84, s94"); a("s_mov_b32 s85, s95"); a("s_mov_b32 s86, s96"); a("s_mov_b32 s87, s97"); a("s_mov_b32 s88, s98"); a("s_mov_b32 s89, s99")
    stamp_out(a,6,8,128,8)
    a("s_barrier")
    a("s_waitcnt vmcnt(0)")
    a("s_endpgm")
    a.label("K23_F"); a.vm=[]; a.lg=[]
    a(f"v_and_b32 v{vL}, 63, v0")
    a("s_waitcnt lgkmcnt(0)")
    srd(a,16,30,31,0x2000000); srd(a,8,4,5,2048*1280); srd(a,12,26,27,2048*1280); srd(a,20,24,25,1280)
    a(f"v_lshlrev_b32 v{vA}, 4, v{vL}"); a(f"v_add_u32 v{vW}, 4096, v{vA}")
    a("s_mul_i32 s40, s34, 200704"); a("s_mul_i32 s37, s36, 12288"); a("s_add_u32 s40, s40, s37"); a(f"s_add_u32 s40, s40, {HF}")
    a("s_mul_i32 s41, s36, 491520"); a("s_mul_i32 s37, s35, 5120"); a("s_add_u32 s41, s41, s37"); a(f"s_add_u32 s41, s41, {W2F}")
    a("s_and_b32 s46, s34, 3"); a("s_mul_i32 s46, s46, 3"); a("s_add_u32 s46, s46, s35"); a("s_lshr_b32 s47, s35, 1"); a("s_add_u32 s46, s46, s47")
    a("s_cmp_ge_u32 s46, 12"); a("s_cbranch_scc0 K23_R0"); a("s_sub_u32 s46, s46, 12"); a.label("K23_R0")
    a("s_mul_i32 s47, s46, 40960"); a("s_lshl_b32 s46, s46, 10")
    ld=gemm_part(a,12,40,41,50176,"F")
    a("s_barrier")
    import os
    if os.environ.get("NOF"): a("s_branch K23_SKIPF")
    ld(0); ld(1); ld(2)
    a("s_mul_i32 s37, s36, 20480"); a(f"v_add_u32 v{vRW}, s37, v{vA}")
    a("s_mul_i32 s37, s36, 5120"); a(f"v_add_u32 v{vRR}, s37, v{vA}"); a(f"v_add_u32 v{vRR2}, 40960, v{vRR}")
    a("s_mul_i32 s42, s34, 81920"); a("s_mul_i32 s37, s36, 20480"); a("s_add_u32 s42, s42, s37"); a(f"s_add_u32 s42, s42, {OF}")
    a("s_mul_i32 s43, s36, 204800"); a("s_mul_i32 s37, s35, 5120"); a("s_add_u32 s43, s43, s37"); a(f"s_add_u32 s43, s43, {WOF}")
    a(f"v_and_b32 v1, 15, v{vL}"); a(f"v_lshrrev_b32 v2, 4, v{vL}")
    a("s_lshl_b32 s37, s34, 6"); a("s_lshl_b32 s38, s36, 4"); a("s_add_u32 s37, s37, s38"); a("v_add_u32 v1, s37, v1"); a("v_mul_u32_u24 v1, 1280, v1")
    a("s_mul_i32 s38, s35, 160"); a("v_lshlrev_b32 v2, 3, v2"); a("v_add_u32 v2, s38, v2"); a(f"v_add_u32 v{vX}, v1, v2")
    a(f"v_mov_b32 v{vFO}, v2")
    for k in range(4):
        ld(k+3); a.wait_vm(f"F{k}"); mm(a,k,k==0)
    a("s_mov_b32 s45, 0"); a.label("K23_FL")
    for k in range(4,8):
        if k==4:
            ld(k+3); a("s_waitcnt vmcnt(27)")
        else:
            l1=a.newlabel("FLs"); l2=a.newlabel("FLt")
            a("s_cmp_eq_u32 s45, 1"); a(f"s_cbranch_scc1 {l1}")
            ld(k+3); a("s_waitcnt vmcnt(27)"); a(f"s_branch {l2}")
            a.label(l1)
            if k==6:
                for j in range(5): a(f"buffer_load_dwordx2 v[{TT+2*j}:{TT+2*j+1}], v{vFO}, s[20:23], 0 offen offset:{32*j}")
            a(f"s_waitcnt vmcnt({ {5:18,6:14,7:5}[k] })")
            a.label(l2)
        mm(a,k,False)
    a("s_add_u32 s45, s45, 1"); a("s_cmp_lt_u32 s45, 2"); a("s_cbranch_scc1 K23_FL")
    a.vm=["b2"]*5
    a.label("K23_SKIPF")
    stamp(a,1)
    a("s_nop 7")
    for t in range(4):
        for j in range(5):
            d=ACC+4*(5*t+j)
            a.lds(f"ds_write_b128 v{vRW}, v[{d}:{d+3}] offset:{(t*5+j)*1024}","rw")
    a.wait_lg_all(); fsync(a,4)
    stamp(a,2)
    for w in range(4):
        for j in range(5):
            r = G+4*j if w==0 else ACC+20*w+4*j
            a.lds(f"ds_read_b128 v[{r}:{r+3}], v{vRR if w<2 else vRR2} offset:{(w&1)*20480+j*1024}","rr")
    a.wait_lg_all()
    fsync(a,8)
    a("s_mul_i32 s47, s36, 25600")
    for kk in range(5):
        a(f"s_add_u32 s60, s43, {kk*40960}")
        for j in range(5):
            a(f"s_add_u32 m0, s47, {kk*5120+j*1024}")
            if j: a("s_add_u32 s60, s60, 1024")
            else: a("s_nop 0")
            a.vmem(f"buffer_load_dwordx4 v{vA}, s[16:19], s60 offen lds","WO")
    for w in range(1,4):
        for k in range(20): a(f"v_add_f32 v{G+k}, v{G+k}, v{ACC+20*w+k}")
    a.wait_vm("b2")
    a("s_mov_b32 s44, 0xbfb8aa3b")
    for j in range(5):
        for h in range(2):
            a(f"v_lshlrev_b32 v{TP}, 16, v{TT+2*j+h}"); a(f"v_and_b32 v{TP+1}, 0xffff0000, v{TT+2*j+h}")
            for e in range(2):
                r=G+4*j+2*h+e
                a(f"v_add_f32 v{r}, v{r}, v{TP+e}")
                a(f"v_mul_f32 v{TP+2+e}, s44, v{r}"); a(f"v_exp_f32 v{TP+2+e}, v{TP+2+e}"); a("s_nop 0")
                a(f"v_add_f32 v{TP+2+e}, 1.0, v{TP+2+e}"); a(f"v_rcp_f32 v{TP+2+e}, v{TP+2+e}"); a("s_nop 0")
                a(f"v_mul_f32 v{r}, v{r}, v{TP+2+e}")
    for j in range(5): a.vmem(f"buffer_load_dwordx2 v[{TT+2*j}:{TT+2*j+1}], v{vX}, s[8:11], 0 offen offset:{32*j}","xr")
    a(f"v_add_u32 v{vW}, 51200, v{vA}")
    a.wait_vm_all()
    a("s_barrier")
    stamp(a,3)
    OFR=80; WR_=160; NR=10
    for kg in range(20):
        a(f"s_add_u32 s60, s42, {kg*1024}")
        a.vmem(f"buffer_load_dwordx4 v[{OFR+4*kg}:{OFR+4*kg+3}], v{vA}, s[16:19], s60 offen sc1",f"O{kg}")
    def rdw(i):
        kg,j=divmod(i,5); off=kg*5120+j*1024
        b=WR_+4*(i%NR)
        a.lds(f"ds_read_b128 v[{b}:{b+3}], v{vA if off<51200 else vW} offset:{off if off<51200 else off-51200}",f"w{i}")
    for i in range(NR-2): rdw(i)
    for i in range(100):
        kg,j=divmod(i,5)
        if j==0: a.wait_vm(f"O{kg}")
        a.wait_lg(f"w{i}")
        d=4*j; b=WR_+4*(i%NR)
        c="0" if kg==0 else f"v[{d}:{d+3}]"
        a(f"v_mfma_f32_16x16x32_bf16 v[{d}:{d+3}], v[{b}:{b+3}], v[{OFR+4*kg}:{OFR+4*kg+3}], {c}")
        if i+NR-2<100: rdw(i+NR-2)
    stamp(a,4)
    a("s_nop 7")
    T2=TP
    for j in range(5):
        for h in range(2):
            a(f"v_lshlrev_b32 v{T2}, 16, v{TT+2*j+h}"); a(f"v_and_b32 v{T2+1}, 0xffff0000, v{TT+2*j+h}")
            for e in range(2):
                a(f"v_fma_f32 v{T2+e}, v{4*j+2*h+e}, v{G+4*j+2*h+e}, v{T2+e}")
            a(f"v_cvt_pk_bf16_f32 v{T2+4+h}, v{T2}, v{T2+1}")
        a(f"buffer_store_dwordx2 v[{T2+4}:{T2+5}], v{vX}, s[12:15], 0 offen offset:{32*j}")
        a("s_nop 1")
    if STAMP:
        a("s_waitcnt vmcnt(0)"); stamp(a,5); stamp_out(a,6,8,144,1)
    a.label("K23_END")
    a("s_endpgm")
```

```python
from asmlib import *
from k1 import QH,KH,VT,VTP,HF,W2F,WOF,OF,QSCALE,fbits
XS=40960
WSL=[122880,139264,81920,98304]
MISC=155648; ST=MISC; CSA=MISC+2048; BBA=MISC+2560; STG=0x1C00000
WF=0; ACC=[160,176]; XF=192; XA=224; SO=232; T=236; P=240; C4=244; B4=248
vRS=252; vMR=253; vTMP=254; vCB=255
vTRB=236; vTRB2=237; vS1=238; vONE=239; vLANE=243
XD=200; vWD=210; vSA=211; vSA2=212; vSTA=213; lS1=214; lS2=215; lONE=216; SRB=160

import os
EXP=int(os.environ.get('EXP','0'))
XS_V=int(os.environ.get('XS_V','2'))
XSCHED=[{2:7,3:9},{2:6,3:8},{2:5,3:7},{2:5,3:8}][XS_V]
XLASTW=max(XSCHED)
ROT=int(os.environ.get('ROT','1'))
WPRE=int(os.environ.get('WPRE','4'))
PC0=int(os.environ.get('PC0','4'))
W0=int(os.environ.get('W0','4'))
PFX_AT=int(os.environ.get('PFX_AT','2'))
PRIO=int(os.environ.get('PRIO','2'))
def gen_k1(a):
    a.label("k1_kernel")
    a("s_cmp_ge_u32 s2, 256"); a("s_cbranch_scc1 K1_END")
    stamp(a,0)
    a("s_load_dwordx4 s[4:7], s[0:1], 0")
    a("s_load_dwordx2 s[20:21], s[0:1], 16")
    a("s_load_dwordx4 s[24:27], s[0:1], 32")
    a("s_load_dwordx2 s[28:29], s[0:1], 48")
    a("s_load_dwordx2 s[30:31], s[0:1], 80")
    a("s_and_b32 s32, s2, 7")
    a("s_lshr_b32 s80, s2, 3"); a("s_add_u32 s33, s80, 28"); a("s_and_b32 s33, s33, 31")
    a("s_load_dwordx2 s[82:83], s[0:1], 72")
    a("s_lshr_b32 s34, s32, 1")
    a("s_and_b32 s35, s32, 1")
    a("s_lshr_b32 s36, s33, 2")
    a("s_and_b32 s37, s33, 3")
    a("s_mul_i32 s38, s34, 7"); a("s_add_u32 s38, s38, s36")
    a("s_lshl_b32 s39, s35, 5"); a("s_lshl_b32 s40, s37, 3"); a("s_add_u32 s39, s39, s40")
    L=vLANE
    a(f"v_and_b32 v{L}, 63, v0")
    a("v_lshrrev_b32 v1, 6, v0"); a("s_nop 0"); a("v_readfirstlane_b32 s78, v1")
    a("s_and_b32 s41, s78, 3")
    a("s_mul_i32 s49, s39, 40960")
    a("s_mul_i32 s50, s41, 10240")
    a("s_waitcnt lgkmcnt(0)")
    a("s_cmp_ge_u32 s36, 7"); a("s_cbranch_scc1 K1_HELP")
    a("s_cmp_ge_u32 s38, 27"); a("s_cbranch_scc1 K1_HELP")
    srd(a,12,4,5,2048*1280)
    srd(a,16,30,31,0x2000000)
    def xd_calc():
        for i in range(10):
            if i: a(f"v_add_u32 v1, {64*i}, v{L}")
            src = "v1" if i else f"v{L}"
            a(f"v_mul_u32_u24 v2, 52429, {src}"); a("v_lshrrev_b32 v2, 22, v2")
            a("v_mul_u32_u24 v3, 80, v2"); a(f"v_sub_u32 v3, {src}, v3")
            a("v_add_u32 v2, s79, v2")
            a("v_and_b32 v4, 15, v2"); a("v_xor_b32 v3, v3, v4")
            a("v_add_u32 v3, s77, v3"); a("v_subrev_u32 v4, 80, v3"); a("v_min_u32 v3, v3, v4")
            a("v_mul_u32_u24 v2, 1280, v2"); a(f"v_lshl_add_u32 v{XD+i}, v3, 4, v2")
    def dma_x(sl_sgpr, soff, tag):
        for i in range(10):
            a(f"s_add_u32 m0, s{sl_sgpr}, {i*1024}"); a("s_nop 0")
            a.vmem(f"buffer_load_dwordx4 v{XD+i}, s[12:15], s{soff} offen lds", tag)
    a("s_lshl_b32 s79, s41, 3")
    a("s_mul_i32 s81, s37, 3"); a("s_add_u32 s81, s81, s36"); a("s_cmp_ge_u32 s81, 10"); a("s_cbranch_scc0 K1_O0"); a("s_sub_u32 s81, s81, 10"); a.label("K1_O0")
    if not ROT: a("s_mov_b32 s81, 0")
    a("s_lshl_b32 s77, s81, 3")
    a("s_cmp_ge_u32 s78, 4"); a("s_cbranch_scc1 K1_LOAD")
    a(f"s_setprio {PRIO}")
    a(f"v_bfe_u32 v1, v{L}, 2, 2")
    a(f"v_lshrrev_b32 v2, 5, v{L}")
    a("v_lshl_add_u32 v2, v2, 3, v1"); a("v_lshlrev_b32 v2, 8, v2")
    a("v_xor_b32 v1, s41, v1"); a("v_lshl_add_u32 v2, v1, 6, v2")
    a(f"v_bfe_u32 v1, v{L}, 4, 1"); a("v_lshl_add_u32 v2, v1, 5, v2")
    a(f"v_and_b32 v1, 3, v{L}"); a("v_lshl_add_u32 v2, v1, 3, v2")
    a(f"v_add_u32 v{vTRB}, {WSL[2]}, v2"); a(f"v_add_u32 v{vTRB2}, {WSL[0]}, v2")
    a(f"v_and_b32 v1, 31, v{L}"); a(f"v_lshrrev_b32 v2, 5, v{L}"); a("v_and_b32 v3, 15, v1"); a("v_mul_u32_u24 v4, 1280, v1")
    for j in range(8):
        a(f"v_add_u32 v5, {2*j}, v2"); a("v_xor_b32 v5, v5, v3"); a(f"v_lshl_add_u32 v{XA+j}, v5, 4, v4")
    a(f"v_mov_b32 v{vONE}, 0x3f803f80")
    a(f"v_mov_b32 v{vS1}, 0")
    a("s_cmp_lt_u32 s38, 10"); a("s_cbranch_scc1 K1_QK")
    a("s_cmp_lt_u32 s38, 15"); a("s_cbranch_scc1 K1_V")
    for typ in ("H","QK","V"):
        a.label(f"K1_{typ}")
        gen_type(a,typ)
    gen_loader(a,xd_calc,dma_x)
    gen_help(a)
    a.label("K1_END")
    a("s_endpgm")

def gen_loader(a,xd_calc,dma_x):
    L=vLANE
    a.label("K1_LOAD"); a.vm=[]; a.lg=[]
    a("s_cmp_lt_u32 s38, 15"); a("s_cbranch_scc0 K1_W1")
    srd(a,8,6,7,640*3840); a("s_mov_b32 s42, 3840"); a("s_lshl_b32 s43, s38, 8"); a("s_branch K1_WD")
    a.label("K1_W1")
    srd(a,8,24,25,640*3072); a("s_mov_b32 s42, 3072"); a("s_sub_u32 s43, s38, 15"); a("s_lshl_b32 s43, s43, 8")
    a.label("K1_WD")
    a(f"v_lshrrev_b32 v1, 4, v{L}")
    a(f"v_bfe_u32 v2, v{L}, 2, 2")
    a("v_xor_b32 v2, v2, v1")
    a(f"v_and_b32 v3, 3, v{L}")
    a("v_lshl_or_b32 v2, v2, 2, v3")
    a("v_lshlrev_b32 v2, 4, v2")
    a("v_mul_lo_u32 v1, v1, s42")
    a(f"v_add_u32 v{vWD}, v1, v2")
    a("s_lshl_b32 s44, s41, 4"); a("s_mul_i32 s44, s44, s42"); a("s_add_u32 s44, s44, s43")
    a("s_lshl_b32 s45, s41, 12")
    a("s_lshl_b32 s46, s42, 2")
    a("s_lshl_b32 s47, s42, 6")
    if STAMP: a("s_memtime s[100:101]"); a("s_waitcnt lgkmcnt(0)"); a(f"s_mov_b32 s70, s100")
    a("s_mov_b32 s56, s81")
    def ld_w(c):
        a("s_mul_i32 s57, s47, s56"); a("s_add_u32 s57, s57, s44")
        for i in range(4):
            if i: a(f"s_add_u32 s57, s57, s46")
            r=16*c+4*i
            a.vmem(f"buffer_load_dwordx4 v[{r}:{r+3}], v{vWD}, s[8:11], s57 offen", f"W{c}")
        a("s_add_u32 s56, s56, 1"); a("s_cmp_eq_u32 s56, 10"); a("s_cselect_b32 s56, 0, s56")
    a("s_mov_b32 s58, s81")
    for i in range(10):
        a(f"s_lshl_b32 s{86+i}, s58, 7")
        a("s_add_u32 s58, s58, 1"); a("s_cmp_eq_u32 s58, 10"); a("s_cselect_b32 s58, 0, s58")
    vXG=200; vWA=201; vWC=202; vXW=203
    a(f"v_lshrrev_b32 v{SRB+1}, 3, v{L}"); a(f"v_add_u32 v{SRB+1}, s79, v{SRB+1}")
    a(f"v_and_b32 v{SRB+2}, 7, v{L}"); a(f"v_and_b32 v{SRB+3}, 15, v{SRB+1}"); a(f"v_mul_u32_u24 v{SRB+4}, 1280, v{SRB+1}")
    a(f"v_lshl_add_u32 v{vXG}, v{SRB+2}, 4, v{SRB+4}")
    a(f"v_xor_b32 v{SRB+5}, v{SRB+2}, v{SRB+3}"); a(f"v_lshl_add_u32 v{vXW}, v{SRB+5}, 4, v{SRB+4}")
    a(f"v_add_u32 v{SRB+5}, 8, v{SRB+2}"); a(f"v_xor_b32 v{SRB+5}, v{SRB+5}, v{SRB+3}"); a(f"v_lshl_add_u32 v{vXW+1}, v{SRB+5}, 4, v{SRB+4}")
    for sl in (1,2):
        for o in range(2): a(f"v_add_u32 v{vXW+2*sl+o}, {sl*XS}, v{vXW+o}")
    a(f"v_lshlrev_b32 v{vSTA}, 2, v{SRB+1}"); a(f"v_add_u32 v{vSTA}, {ST}, v{vSTA}")
    a(f"v_lshlrev_b32 v{vWA}, 4, v{L}"); a(f"v_add_u32 v{vWA}, s45, v{vWA}"); a(f"v_add_u32 v{vWC}, {WSL[2]}, v{vWA}"); a(f"v_add_u32 v{vWA}, {WSL[0]}, v{vWA}")
    a(f"v_mov_b32 v{lONE}, 0x3f803f80")
    def ld_x01(c):
        for j in range(2):
            r=SRB+8*(c%5)+4*j
            a(f"s_add_u32 s57, s{86+c}, s{49 if j==0 else 54}")
            a.vmem(f"buffer_load_dwordx4 v[{r}:{r+3}], v{vXG}, s[12:15], s57 offen", f"W{c}")
    a("s_add_u32 s54, s49, 40960")
    for c in range(W0): ld_w(c); ld_x01(c)
    if STAMP: a("s_memtime s[100:101]"); a("s_waitcnt lgkmcnt(0)"); a(f"s_mov_b32 s71, s100")
    if STAMP: a("s_mov_b32 s73, s70"); a("s_mov_b32 s74, s71")
    a("s_mov_b32 s71, 0x3acccccd"); a("s_mov_b32 s72, 0x3727c5ac")
    def ld_x(j):
        b=40*((j-2)%4)
        a(f"s_add_u32 s55, s49, {40960*j}")
        for i in range(10):
            a(f"s_add_u32 s57, s55, s{86+i}")
            a.vmem(f"buffer_load_dwordx4 v[{b+4*i}:{b+4*i+3}], v{vXG}, s[12:15], s57 offen", f"X{j}")
    A0=224; A1=228; A2=232; U=236
    def acc4(A,r,first):
        for k in range(4):
            u=U+2*(k&1)
            a(f"v_lshlrev_b32 v{u}, 16, v{r+k}"); a(f"v_and_b32 v{u+1}, 0xffff0000, v{r+k}")
            if first and k==0:
                a(f"v_pk_add_f32 v[{A}:{A+1}], v[{u}:{u+1}], 0 op_sel_hi:[1,0]"); a(f"v_pk_mul_f32 v[{A+2}:{A+3}], v[{u}:{u+1}], v[{u}:{u+1}]")
            else:
                a(f"v_pk_add_f32 v[{A}:{A+1}], v[{A}:{A+1}], v[{u}:{u+1}]"); a(f"v_pk_fma_f32 v[{A+2}:{A+3}], v[{u}:{u+1}], v[{u}:{u+1}], v[{A+2}:{A+3}]")
    def fin(j,A):
        a(f"v_add_f32 v{lS1}, v{A}, v{A+1}"); a(f"v_add_f32 v{lS2}, v{A+2}, v{A+3}")
        for ctrl in ("quad_perm:[1,0,3,2]","quad_perm:[2,3,0,1]","row_half_mirror"):
            a("s_nop 1")
            a(f"v_add_f32_dpp v{lS1}, v{lS1}, v{lS1} {ctrl} row_mask:0xf bank_mask:0xf")
            a(f"v_add_f32_dpp v{lS2}, v{lS2}, v{lS2} {ctrl} row_mask:0xf bank_mask:0xf")
        a(f"v_mul_f32 v{lS1}, s71, v{lS1}")
        a(f"v_mul_f32 v{lS2}, s71, v{lS2}")
        a(f"v_fma_f32 v{lS2}, -v{lS1}, v{lS1}, v{lS2}")
        a(f"v_add_f32 v{lS2}, s72, v{lS2}")
        a(f"v_rsq_f32 v{lS2}, v{lS2}")
        a("s_nop 0")
        a(f"v_mul_f32 v{lS1}, v{lS1}, v{lS2}")
        a(f"ds_write_b32 v{vSTA}, v{lS2} offset:{j*256}")
        a(f"ds_write_b32 v{vSTA}, v{lS1} offset:{j*256+128}")
        a("s_waitcnt lgkmcnt(0)")
    def stats(j):
        sl=j%3
        b=40*((j-2)%4)
        a.wait_vm(f"X{j}")
        for i in range(10):
            a(f"ds_write_b128 v{vXW+2*sl+(i&1)}, v[{b+4*i}:{b+4*i+3}] offset:{(i>>1)*256}")
        a("s_waitcnt lgkmcnt(0)")
    def get_stats():
        a("s_cmp_ge_u32 s59, 32"); a("s_cbranch_scc1 K1_GSD")
        sv=list(a.vm)
        a(f"v_mov_b32 v{SRB}, 0")
        a.label("K1_POLL")
        a(f"global_load_dword v{SRB+1}, v{SRB}, s[82:83] offset:252 sc1")
        a("s_waitcnt vmcnt(0)"); a.vm=[]
        a(f"v_readfirstlane_b32 s51, v{SRB+1}")
        a("s_cmp_ge_u32 s51, 32"); a("s_cbranch_scc1 K1_POLLD")
        a("s_sleep 2"); a("s_branch K1_POLL")
        a.label("K1_POLLD")
        a("s_lshl_b32 s51, s39, 8"); a("s_lshl_b32 s52, s41, 9"); a("s_add_u32 s51, s51, s52"); a(f"s_add_u32 s51, s51, {STG}")
        a(f"v_lshlrev_b32 v{SRB}, 4, v{L}")
        a("s_mov_b32 exec_hi, 0")
        a(f"buffer_load_dwordx4 v[{SRB+4}:{SRB+7}], v{SRB}, s[16:19], s51 offen sc1")
        a(f"s_add_u32 s52, s52, {ST}"); a(f"v_add_u32 v{SRB}, s52, v{SRB}")
        a("s_waitcnt vmcnt(0)")
        a(f"ds_write_b128 v{SRB}, v[{SRB+4}:{SRB+7}]")
        a("s_mov_b64 exec, -1")
        a("s_waitcnt lgkmcnt(0)")
        a.label("K1_GSD"); a.vm=sv
    for c in range(10):
        a.wait_vm(f"W{c}")
        if STAMP: a("s_memtime s[100:101]"); a("s_waitcnt lgkmcnt(0)"); a(f"s_mov_b32 s{60+c}, s100")
        for i in range(4):
            r=16*c+4*i
            a(f"ds_write_b128 v{vWA if (c%4)<2 else vWC}, v[{r}:{r+3}] offset:{(c%2)*16384+i*1024}")
        for j in range(2):
            r=SRB+8*(c%5)+4*j
            a(f"ds_write_b128 v{vXW+2*j+(c&1)}, v[{r}:{r+3}] offset:{(c>>1)*256}")
        a("s_waitcnt lgkmcnt(0)")
        a("s_barrier")
        if c==PC0:
            a(f"v_mov_b32 v217, 0")
            a.vmem(f"global_load_dword v218, v217, s[82:83] offset:252 sc1","P")
        if c==PC0+3:
            a.wait_vm("P"); a("v_readfirstlane_b32 s59, v218")
            a("s_lshl_b32 s51, s39, 8"); a("s_lshl_b32 s52, s41, 9"); a("s_add_u32 s51, s51, s52"); a(f"s_add_u32 s51, s51, {STG}")
            a(f"v_lshlrev_b32 v217, 4, v{L}")
            a("s_mov_b32 exec_hi, 0")
            a.vmem(f"buffer_load_dwordx4 v[220:223], v217, s[16:19], s51 offen sc1","S1")
            a("s_mov_b64 exec, -1")
        if c==9:
            a.wait_vm("S1")
            a("s_cmp_ge_u32 s59, 32"); a("s_cbranch_scc0 K1_NS")
            a(f"s_add_u32 s52, s52, {ST}"); a(f"v_add_u32 v217, s52, v217")
            a("s_mov_b32 exec_hi, 0")
            a(f"ds_write_b128 v217, v[220:223]")
            a("s_mov_b64 exec, -1")
            a("s_waitcnt lgkmcnt(0)")
            a.label("K1_NS")
        if c==0:
            for cc in range(W0,WPRE): ld_w(cc); ld_x01(cc)
        if c+WPRE<10: ld_w(c+WPRE); ld_x01(c+WPRE)
        for j,cc in XSCHED.items():
            if cc==c:
                ld_x(j)
        if c==9: get_stats()
    nxt=[max(XSCHED)+1]
    def more():
        if nxt[0]<8: ld_x(nxt[0]); nxt[0]+=1
    a("s_barrier")
    stats(2)
    a("s_barrier")
    for j in range(3,8):
        more()
        stats(j)
        a("s_barrier")
    if STAMP:
        for i in range(10): a(f"s_mov_b32 s{85+i}, s{60+i}")
        a("s_mov_b32 s95, s73"); a("s_mov_b32 s96, s74")
        stamp_out(a,13,38,48,1)
    a("s_endpgm")

def gen_type(a,typ):
    L=vLANE
    a.vm=[]; a.lg=[]
    a(f"v_and_b32 v10, 31, v{L}"); a(f"v_lshrrev_b32 v11, 5, v{L}")
    if typ=="QK":
        a("s_cmp_lt_u32 s38, 5"); a(f"s_cselect_b32 s56, 0, {KH}"); a("s_cselect_b32 s57, 0, 5")
        a(f"s_cselect_b32 s62, 0x{fbits(QSCALE):x}, 0x3f800000")
        a("s_sub_u32 s57, s38, s57"); a("s_lshl_b32 s57, s57, 7"); a("s_lshl_b32 s58, s41, 5"); a("s_add_u32 s57, s57, s58")
        a("v_mul_u32_u24 v12, 40, v10")
        for q in range(4):
            a(f"v_lshl_add_u32 v13, v11, 2, s57")
            if q: a(f"v_add_u32 v13, {8*q}, v13")
            a("v_mul_u32_u24 v14, 3277, v13"); a("v_lshrrev_b32 v14, 16, v14")
            a("v_mul_u32_u24 v14, 81880, v14"); a("v_lshl_add_u32 v14, v13, 1, v14"); a(f"v_add_u32 v{SO+q}, v14, v12")
        a("s_mul_i32 s59, s39, 1280"); a("s_add_u32 s59, s59, s56")
        a("s_movk_i32 s60, 1280")
    elif typ=="H":
        srd(a,64,26,27,1536*2)
        a("s_sub_u32 s57, s38, 15"); a("s_lshl_b32 s57, s57, 2"); a("s_add_u32 s57, s57, s41")
        a("s_lshl_b32 s58, s57, 6")
        a("v_lshlrev_b32 v12, 1, v10")
        a("buffer_load_ushort v15, v12, s[64:67], s58 offen")
        a("v_lshrrev_b32 v12, 4, v10"); a("v_mul_u32_u24 v12, 50176, v12"); a("v_and_b32 v13, 15, v10")
        a("v_lshl_add_u32 v12, v13, 4, v12"); a(f"v_lshl_add_u32 v{SO}, v11, 8, v12")
        a("s_mul_i32 s59, s39, 100352"); a("s_lshl_b32 s58, s57, 10"); a("s_add_u32 s59, s59, s58"); a(f"s_add_u32 s59, s59, {HF}")
        a("s_mov_b32 s60, 100352")
    else:
        a("s_sub_u32 s57, s38, 10"); a("s_lshl_b32 s57, s57, 7"); a("s_lshl_b32 s58, s41, 5"); a("s_add_u32 s57, s57, s58")
        a("v_add_u32 v13, s57, v10")
        a("v_mul_u32_u24 v14, 3277, v13"); a("v_lshrrev_b32 v14, 16, v14")
        a("v_mul_u32_u24 v12, 20, v14"); a("v_sub_u32 v13, v13, v12")
        a("v_mul_u32_u24 v14, 81920, v14"); a("v_lshl_add_u32 v14, v13, 6, v14"); a(f"v_lshl_add_u32 v{SO}, v11, 4, v14")
        a(f"s_mul_i32 s59, s39, 1280"); a(f"s_add_u32 s59, s59, {VT}")
        a("s_movk_i32 s60, 1280")
    if typ=="V": a(f"v_lshlrev_b32 v{vTMP}, 4, v11"); a(f"v_add_u32 v{vTMP}, {ST}, v{vTMP}")
    else: a(f"v_lshlrev_b32 v{vTMP}, 2, v10"); a(f"v_add_u32 v{vTMP}, {ST}, v{vTMP}")
    a("s_lshl_b32 s51, s41, 7"); a(f"s_add_u32 s51, s51, {CSA}")
    a(f"v_lshlrev_b32 v{vCB}, 4, v11"); a(f"v_add_u32 v{vCB}, s51, v{vCB}")
    a(f"v_lshlrev_b32 v{vRS}, 2, v10"); a(f"v_add_u32 v{vRS}, s51, v{vRS}")
    stamp(a,1)
    a("s_waitcnt vmcnt(0)")
    if typ=="H":
        a("v_lshlrev_b32 v15, 16, v15"); a(f"ds_write_b32 v{vRS}, v15 offset:{BBA-CSA}")
    stamp(a,2)
    def mf(acc,s,xf,first):
        c = "0" if first else f"v[{acc}:{acc+15}]"
        wf=f"v[{WF+4*s}:{WF+4*s+3}]"; x=f"v[{xf}:{xf+3}]"
        if typ=="V": a(f"v_mfma_f32_32x32x16_bf16 v[{acc}:{acc+15}], {x}, {wf}, {c}")
        else: a(f"v_mfma_f32_32x32x16_bf16 v[{acc}:{acc+15}], {wf}, {x}, {c}")
    def xr2(c,k):
        s=4*c+(k&3)
        a(f"ds_read_b128 v[{XF+4*k}:{XF+4*k+3}], v{XA+(s%8)} offset:{(k>>2)*XS+(s>>3)*256}")
    for c in range(11):
        if c<10:
            a("s_barrier")
            if c==5: stamp(a,3)
            tb = vTRB2 if (c%4)<2 else vTRB
            for sp in range(4):
                for rd in range(2):
                    r=WF+16*c+4*sp+2*rd
                    a(f"ds_read_b64_tr_b16 v[{r}:{r+1}], v{tb} offset:{(c%2)*16384+sp*4096+rd*1024}")
        if c==0:
            for k in range(8): xr2(0,k)
        else:
            a(f"s_waitcnt lgkmcnt({8 if c<10 else 0})")
            for r in range(16): a(f"v_dot2c_f32_bf16 v{vS1}, v{vONE}, v{WF+16*(c-1)+r}")
            for k in range(8):
                kk=(k&1)*4+(k>>1)
                mf(ACC[kk>>2],4*(c-1)+(kk&3),XF+4*kk,(c==1 and (kk&3)==0))
                if c<10: xr2(c,kk)
        if c<10: a("s_waitcnt lgkmcnt(8)")
    a("s_waitcnt lgkmcnt(0)")
    a("s_barrier")
    a("s_nop 2")
    a(f"v_mov_b32 v{P}, v{vS1}"); a("s_nop 1"); a(f"v_permlane32_swap_b32 v{vS1}, v{P}"); a("s_nop 1")
    a(f"v_add_f32 v{vS1}, v{vS1}, v{P}")
    if typ=="V": a(f"v_mov_b32 v{vCB}, v{vS1}")
    else: a(f"ds_write_b32 v{vRS}, v{vS1}")
    a("s_waitcnt lgkmcnt(0)")
    stamp(a,4)
    def epi_fill(par,stoff):
        f=[]; acc=ACC[par]
        if typ!="V":
            def rd():
                a.lds(f"ds_read2_b32 v[{vRS}:{vMR}], v{vTMP} offset0:{stoff//4} offset1:{stoff//4+32}","st")
            f.append(rd)
            def rdq(q):
                def g():
                    a.lds(f"ds_read_b128 v[{C4}:{C4+3}], v{vCB} offset:{32*q}","cb")
                    if typ=="H": a.lds(f"ds_read_b128 v[{B4}:{B4+3}], v{vCB} offset:{BBA-CSA+32*q}","cb")
                return g
            for q in range(4):
                f.append(rdq(q)); f.append(None); f.append(None)
                def w(q=q):
                    a.wait_lg("cb")
                    if q==0 and typ=="QK": a(f"v_mul_f32 v{vRS}, s62, v{vRS}"); a(f"v_mul_f32 v{vMR}, s62, v{vMR}")
                f.append(w)
                for i in range(4):
                    k=4*q+i
                    def el(k=k,i=i):
                        if typ=="H":
                            a(f"v_fma_f32 v{T+i}, -v{vMR}, v{C4+i}, v{B4+i}")
                            a(f"v_fmac_f32 v{T+i}, v{acc+k}, v{vRS}")
                            a(f"v_max_f32 v{T+i}, 0, v{T+i}"); a(f"v_mul_f32 v{T+i}, v{T+i}, v{T+i}")
                        else:
                            a(f"v_mul_f32 v{T+i}, v{vMR}, v{C4+i}")
                            a(f"v_fma_f32 v{T+i}, v{acc+k}, v{vRS}, -v{T+i}")
                    f.append(el)
                def pk(q=q):
                    if typ=="QK":
                        b=P+2*(q&1)
                        a(f"v_cvt_pk_bf16_f32 v{b}, v{T}, v{T+1}"); a(f"v_cvt_pk_bf16_f32 v{b+1}, v{T+2}, v{T+3}")
                        a(f"buffer_store_dwordx2 v[{b}:{b+1}], v{SO+q}, s[16:19], s61 offen")
                    else:
                        b=P+2*(q&1)
                        a(f"v_cvt_pk_bf16_f32 v{b}, v{T}, v{T+1}"); a(f"v_cvt_pk_bf16_f32 v{b+1}, v{T+2}, v{T+3}")
                        if q&1:
                            a("s_nop 1"); a(f"v_permlane32_swap_b32 v{P}, v{P+2}"); a(f"v_permlane32_swap_b32 v{P+1}, v{P+3}")
                            a(f"buffer_store_dwordx4 v[{P}:{P+3}], v{SO}, s[16:19], s61 offen offset:{512*(q>>1)}")
                f.append(pk)
        else:
            for q in range(4):
                def rd(q=q):
                    a.lds(f"ds_read_b128 v[{C4}:{C4+3}], v{vTMP} offset:{stoff+32*q}","st")
                    a.lds(f"ds_read_b128 v[{B4}:{B4+3}], v{vTMP} offset:{stoff+128+32*q}","st")
                f.append(rd); f.append(None); f.append(None)
                def el(q=q):
                    a.wait_lg("st")
                    for i in range(4):
                        a(f"v_mul_f32 v{T+i}, v{B4+i}, v{vCB}")
                        a(f"v_fma_f32 v{T+i}, v{acc+4*q+i}, v{C4+i}, -v{T+i}")
                f.append(el)
                def pk(q=q):
                    b=P+2*(q&1)
                    a(f"v_cvt_pk_bf16_f32 v{b}, v{T}, v{T+1}"); a(f"v_cvt_pk_bf16_f32 v{b+1}, v{T+2}, v{T+3}")
                    if q&1:
                        a("s_nop 1"); a(f"v_permlane32_swap_b32 v{P}, v{P+2}"); a(f"v_permlane32_swap_b32 v{P+1}, v{P+3}")
                        a(f"buffer_store_dwordx4 v[{P}:{P+3}], v{SO}, s[16:19], s61 offen offset:{32*(q>>1)}")
                f.append(pk)
        return f
    a("s_mov_b32 s61, s59")
    a("s_nop 7"); a("s_nop 7")
    for fn in epi_fill(0,0):
        if fn: fn()
    a(f"v_add_u32 v{vTMP}, 256, v{vTMP}")
    a("s_add_u32 s61, s61, s60")
    a(f"s_mov_b32 s74, {2*XS}")
    for j in range(8): a(f"v_add_u32 v{XA+j}, s74, v{XA+j}")
    a(f"s_mov_b32 s75, {-2*XS & 0xffffffff}"); a(f"s_mov_b32 s76, {XS}")
    a("s_mov_b32 s69, 2"); a("s_mov_b32 s70, 0")
    a("s_waitcnt lgkmcnt(0)"); a.lg=[]
    a("s_barrier")
    stamp(a,5)
    LA=6
    def xread(s):
        a.lds(f"ds_read_b128 v[{XF+4*(s%8)}:{XF+4*(s%8)+3}], v{XA+(s%8)} offset:{((s%40)>>3)*256}", f"x{s%8}")
    for s in range(LA): xread(s)
    lab=f"K1_LOOP_{typ}"
    a.label(lab)
    if STAMP:
        a("s_memtime s[100:101]"); a("s_waitcnt lgkmcnt(0)")
        for i in range(3):
            a(f"s_cmp_eq_u32 s70, {i}"); a(f"s_cselect_b32 s{90+i}, s100, s{90+i}")
    for par in range(2):
        acc=ACC[par]
        ef=epi_fill(par^1, 0)
        sched=[[] for _ in range(40)]
        for i,fn in enumerate(ef):
            if EXP!=2: sched[2+(i*31)//len(ef)].append(fn)
        a("s_add_u32 s69, s69, 1"); a("s_cmp_ge_u32 s69, 3"); a("s_cselect_b32 s74, s75, s76"); a("s_cselect_b32 s69, 0, s69")
        for s in range(40):
            if s==36:
                a("s_waitcnt lgkmcnt(0)"); a.lg=[]
                if par==1:
                    a("s_cmp_eq_u32 s70, 2"); a(f"s_cbranch_scc1 {lab}_nb")
                a("s_barrier")
                if par==1: a.label(f"{lab}_nb")
                for j in range(8): a(f"v_add_u32 v{XA+j}, s74, v{XA+j}")
                xread(40); xread(41)
            a.wait_lg(f"x{s%8}")
            mf(acc,s,XF+4*(s%8),s==0)
            if s<34 or s>=36: xread(s+LA)
            for fn in sched[s]:
                if fn: fn()
        a("s_add_u32 s61, s61, s60"); a(f"v_add_u32 v{vTMP}, 256, v{vTMP}")
    a("s_add_u32 s70, s70, 1"); a("s_cmp_lt_u32 s70, 3"); a(f"s_cbranch_scc1 {lab}")
    stamp(a,9)
    a("s_waitcnt lgkmcnt(0)"); a.lg=[]
    a("s_nop 7"); a("s_nop 7")
    for fn in epi_fill(1,0):
        if fn: fn()
    if STAMP:
        a("s_waitcnt vmcnt(0)")
        stamp(a,10)
        stamp_out(a,11,32 if typ=="QK" else (130 if typ=="V" else 38),{"QK":0,"V":16,"H":32}[typ],1)
    a("s_endpgm")

def gen_help(a):
    L=vLANE
    a.label("K1_HELP")
    srd(a,16,30,31,0x2000000)
    a("s_cmp_ge_u32 s80, 4"); a("s_cbranch_scc1 K1_H1")
    srd(a,12,4,5,2048*1280)
    a("s_lshl_b32 s51, s80, 3"); a("s_add_u32 s51, s51, s32"); a("s_lshl_b32 s51, s51, 6"); a("s_lshl_b32 s52, s78, 3"); a("s_add_u32 s51, s51, s52")
    a(f"v_lshrrev_b32 v1, 3, v{L}"); a("v_add_u32 v1, s51, v1")
    a(f"v_and_b32 v2, 7, v{L}"); a("v_mul_u32_u24 v3, 1280, v1"); a("v_lshl_add_u32 v3, v2, 4, v3")
    for i in range(10): a(f"buffer_load_dwordx4 v[{8+4*i}:{11+4*i}], v3, s[12:15], 0 offen offset:{128*i}")
    a("v_mov_b32 v4, 0"); a("v_mov_b32 v5, 0"); a("v_mov_b32 v6, 0x3f803f80")
    a("v_lshrrev_b32 v7, 5, v1"); a("v_lshlrev_b32 v7, 8, v7"); a("v_and_b32 v1, 31, v1"); a("v_lshl_add_u32 v7, v1, 2, v7")
    a("s_mov_b32 s71, 0x3acccccd"); a("s_mov_b32 s72, 0x3727c5ac"); a(f"s_mov_b32 s73, {STG}")
    for i in range(10):
        a(f"s_waitcnt vmcnt({9-i})")
        for r in range(4):
            a(f"v_dot2c_f32_bf16 v4, v6, v{8+4*i+r}"); a(f"v_dot2c_f32_bf16 v5, v{8+4*i+r}, v{8+4*i+r}")
    for ctrl in ("quad_perm:[1,0,3,2]","quad_perm:[2,3,0,1]","row_half_mirror"):
        a("s_nop 2")
        a(f"v_add_f32_dpp v4, v4, v4 {ctrl} row_mask:0xf bank_mask:0xf")
        a(f"v_add_f32_dpp v5, v5, v5 {ctrl} row_mask:0xf bank_mask:0xf")
    a("v_mul_f32 v4, s71, v4"); a("v_mul_f32 v5, s71, v5"); a("v_fma_f32 v5, -v4, v4, v5"); a("v_add_f32 v5, s72, v5")
    a("v_rsq_f32 v5, v5"); a("s_nop 0"); a("v_mul_f32 v4, v4, v5")
    a("v_cmp_eq_u32 vcc, 0, v2"); a("s_and_saveexec_b64 s[74:75], vcc")
    a("buffer_store_dword v5, v7, s[16:19], s73 offen sc1")
    a("buffer_store_dword v4, v7, s[16:19], s73 offen offset:128 sc1")
    a("s_mov_b64 exec, s[74:75]")
    a("s_waitcnt vmcnt(0)")
    a("s_barrier")
    a("s_cmp_lg_u32 s78, 0"); a("s_cbranch_scc1 K1_H0")
    a("v_mov_b32 v4, 1"); a("v_mov_b32 v5, 0")
    a("s_mov_b64 exec, 1")
    a("global_atomic_add v5, v4, s[82:83] offset:252 sc1")
    a("s_mov_b64 exec, -1")
    a.label("K1_H0")
    a("s_cmp_lg_u32 s2, 0"); a("s_cbranch_scc1 K1_H1")
    a(f"v_lshlrev_b32 v1, 8, v{L}"); a("v_mov_b32 v4, 0"); a("v_mov_b32 v5, 0"); a("v_mov_b32 v6, 0"); a("v_mov_b32 v7, 0"); a("s_mov_b32 s51, 0x1C10000")
    a("buffer_store_dwordx4 v[4:7], v1, s[16:19], s51 offen")
    a.label("K1_H1")
    a("s_cmp_ge_u32 s32, 6"); a("s_cbranch_scc1 K1_H2")
    a("s_lshl_b32 s40, s32, 2"); a("s_add_u32 s40, s40, s33"); a("s_sub_u32 s40, s40, 28"); a("s_branch K1_H3")
    a.label("K1_H2")
    a("s_sub_u32 s40, s32, 6"); a("s_lshl_b32 s40, s40, 3"); a("s_add_u32 s40, s40, s33")
    a.label("K1_H3")
    a("s_lshl_b32 s40, s40, 3"); a("s_add_u32 s40, s40, s78")
    a(f"v_lshrrev_b32 v1, 4, v{L}"); a("v_mul_u32_u24 v1, 10240, v1"); a(f"v_and_b32 v2, 15, v{L}"); a("v_lshl_add_u32 v1, v2, 1, v1")
    a("v_add_u32 v2, 5120, v1"); a(f"v_lshlrev_b32 v3, 4, v{L}")
    for (lo,hi,nk,dst,n) in ((28,29,1536,W2F,6),(20,21,640,WOF,3)):
        srd(a,8,lo,hi,nk*1280)
        gs=list(range(n))
        for t,it in enumerate(gs):
            a(f"s_add_u32 s{44+t}, s40, {320*it}")
            a(f"s_mul_i32 s51, s{44+t}, 1639"); a("s_lshr_b32 s51, s51, 16")
            a("s_mul_i32 s52, s51, 40"); a(f"s_sub_u32 s52, s{44+t}, s52")
            a("s_mul_i32 s51, s51, 40960"); a("s_lshl_b32 s52, s52, 5"); a("s_add_u32 s51, s51, s52")
            for j in range(8):
                a(f"buffer_load_ushort v{40+8*t+j}, v{1 if j<4 else 2}, s[8:11], s51 offen offset:{(j&3)*1280}")
        a("s_waitcnt vmcnt(0)")
        for t,it in enumerate(gs):
            for j in range(4): a(f"v_lshl_or_b32 v{8+4*t+j}, v{40+8*t+2*j+1}, 16, v{40+8*t+2*j}")
            a(f"s_lshl_b32 s51, s{44+t}, 10"); a(f"s_add_u32 s51, s51, {dst}")
            a(f"buffer_store_dwordx4 v[{8+4*t}:{8+4*t+3}], v3, s[16:19], s51 offen")
        a("s_nop 1")
```

```python
import os
from asmlib import *
from k1 import QH,KH,VT,VTP,HF,W2F,WOF,OF,GB
KF=0; VF=72; S=144; Q=216; O=232
vKO=240; vVO=241; vVO1=242; vQO=243; vOO=244; vOO1=245; vNEG=246; vM=247; vT=248; vT2=249; vBP=250; vL=251

def attn_body(a, s_m, s_h, pfx, sc1=""):
    L=vL
    a(f"v_and_b32 v151, 15, v{L}"); a(f"v_lshrrev_b32 v152, 4, v{L}")
    a("v_lshrrev_b32 v153, 2, v151"); a("v_and_b32 v154, 3, v151"); a("v_lshl_add_u32 v153, v153, 3, v154")
    a(f"s_lshl_b32 s72, s{s_h}, 11"); a(f"s_lshl_b32 s73, s{s_m}, 6"); a("s_add_u32 s72, s72, s73")
    a("s_mul_i32 s74, s72, 40")
    a("v_mul_u32_u24 v153, 40, v153"); a("v_lshl_add_u32 v153, v152, 4, v153"); a(f"v_add_u32 v{vKO}, s74, v153")
    a("v_mul_u32_u24 v153, 40, v151"); a("v_lshl_add_u32 v153, v152, 4, v153"); a(f"v_add_u32 v{vQO}, s74, v153")
    a(f"s_mul_i32 s75, s{s_h}, 20"); a("v_add_u32 v153, s75, v151"); a(f"v_mul_u32_u24 v153, {VTP}, v153")
    a("v_lshl_add_u32 v153, v152, 4, v153"); a("s_lshl_b32 s76, s73, 1"); a(f"v_add_u32 v{vVO}, s76, v153")
    a(f"v_add_u32 v{vVO1}, {16*VTP}, v{vVO}")
    def ldK(g):
        sl=g%9
        a(f"s_movk_i32 s77, {1280*g}")
        for ab in range(2):
            a.vmem(f"buffer_load_dwordx4 v[{KF+8*sl+4*ab}:{KF+8*sl+4*ab+3}], v{vKO}, s[8:11], s77 offen offset:{160*ab}",f"K{g}")
    def ldV(g):
        sl=g%9
        a.vmem(f"buffer_load_dwordx4 v[{VF+8*sl}:{VF+8*sl+3}], v{vVO}, s[12:15], 0 offen offset:{64*g}",f"V{g}")
        a("s_mov_b64 exec, s[78:79]")
        a.vmem(f"buffer_load_dwordx4 v[{VF+8*sl+4}:{VF+8*sl+7}], v{vVO1}, s[12:15], 0 offen offset:{64*g}",f"V{g}")
        a("s_mov_b64 exec, -1")
    a("v_cmp_gt_u32 s[78:79], 4, v151")
    for qb in range(4):
        a.vmem(f"buffer_load_dwordx4 v[{Q+4*qb}:{Q+4*qb+3}], v{vQO}, s[16:19], 0 offen offset:{640*qb}","Q")
    for g in range(9): ldK(g)
    a("v_cmp_eq_u32 vcc, 4, v151"); a("v_mov_b32 v153, 0x3f803f80"); a("s_nop 0"); a("v_cndmask_b32 v153, 0, v153, vcc")
    for sl in range(9):
        for r in range(4): a(f"v_mov_b32 v{VF+8*sl+4+r}, v153")
    for g in range(9): ldV(g)
    a("v_lshlrev_b32 v153, 3, v152")
    for par in range(2):
        for k in range(8):
            a(f"v_add_u32 v154, {k-16*par}, v153")
            a(f"v_cmp_le_i32 s[{40+2*(8*par+k)}:{41+2*(8*par+k)}], v154, v151")
    a(f"v_mov_b32 v{vNEG}, 0xf149f2ca")
    a("v_lshl_add_u32 v153, v152, 2, s75")
    a("v_lshrrev_b32 v154, 5, v153"); a("v_lshlrev_b32 v154, 10, v154"); a("v_lshl_add_u32 v154, v151, 4, v154")
    a("v_bfe_u32 v155, v153, 3, 2"); a("v_lshl_add_u32 v154, v155, 8, v154"); a("v_and_b32 v155, 4, v153"); a(f"v_lshl_add_u32 v{vOO}, v155, 1, v154")
    a("s_add_u32 s80, s75, 16"); a("s_lshr_b32 s81, s80, 5"); a("s_lshl_b32 s81, s81, 10"); a("s_bfe_u32 s82, s80, 0x20003"); a("s_lshl_b32 s82, s82, 8")
    a("s_add_u32 s81, s81, s82"); a("s_and_b32 s82, s80, 4"); a("s_lshl_b32 s82, s82, 1"); a("s_add_u32 s81, s81, s82")
    a(f"v_lshl_add_u32 v{vOO1}, v151, 4, s81")
    a(f"v_add_u32 v{vBP}, 16, v151"); a(f"v_lshlrev_b32 v{vBP}, 2, v{vBP}")
    a(f"s_mul_i32 s83, s{s_m}, 81920"); a(f"s_add_u32 s83, s83, {OF}")
    a("v_cmp_gt_u32 s[84:85], 3, v152"); a("v_cmp_gt_u32 s[86:87], 2, v152"); a("v_cmp_eq_u32 s[88:89], 0, v152")
    a.wait_vm("Q")
    for qb in range(4):
        for r in range(4): a(f"v_cndmask_b32 v{Q+4*qb+r}, 0, v{Q+4*qb+r}, s[{84 if r<2 else 86}:{85 if r<2 else 87}]")
    a(f"s_lshl_b32 s90, s{s_m}, 1"); a("s_sub_i32 s90, 8, s90"); a("s_max_i32 s90, s90, 0")
    def zeroV(g):
        lab=a.newlabel(pfx+"zv"); sl=g%9
        a(f"s_cmp_gt_u32 s90, {g}"); a(f"s_cbranch_scc0 {lab}")
        for r in range(4): a(f"v_mov_b32 v{VF+8*sl+r}, 0");
        a("s_mov_b64 exec, s[78:79]")
        for r in range(4): a(f"v_mov_b32 v{VF+8*sl+4+r}, 0")
        a("s_mov_b64 exec, -1")
        a.label(lab)
    for qb in range(4):
        g0=qb>>1; par=qb&1
        for gr in range(9):
            g=g0+gr; sl=g%9
            a.wait_vm(f"K{g}")
            for ab in range(2):
                a(f"v_mfma_f32_16x16x32_bf16 v[{S+8*gr+4*ab}:{S+8*gr+4*ab+3}], v[{KF+8*sl+4*ab}:{KF+8*sl+4*ab+3}], v[{Q+4*qb}:{Q+4*qb+3}], 0")
        if qb==1: ldK(9)
        a("s_nop 7")
        for k in range(8):
            m=f"s[{40+2*(8*par+k)}:{41+2*(8*par+k)}]"
            a(f"v_cndmask_b32 v{S+k}, v{S+k}, v{vNEG}, {m}")
            a(f"v_cndmask_b32 v{S+64+k}, v{vNEG}, v{S+64+k}, {m}")
        for gr in range(8):
            g=g0+gr
            if g<8:
                lab=a.newlabel(pfx+"inv")
                a(f"s_cmp_gt_u32 s90, {g}"); a(f"s_cbranch_scc0 {lab}")
                for k in range(8): a(f"v_mov_b32 v{S+8*gr+k}, v{vNEG}")
                a.label(lab)
        a(f"v_max3_f32 v{vM}, v{S}, v{S+1}, v{S+2}")
        for k in range(3,71,2): a(f"v_max3_f32 v{vM}, v{vM}, v{S+k}, v{S+k+1}")
        a(f"v_max_f32 v{vM}, v{vM}, v{S+71}")
        a(f"v_mov_b32 v{vT}, v{vM}"); a("s_nop 1"); a(f"v_permlane32_swap_b32 v{vM}, v{vT}"); a("s_nop 1"); a(f"v_max_f32 v{vM}, v{vM}, v{vT}")
        a(f"v_mov_b32 v{vT}, v{vM}"); a("s_nop 1"); a(f"v_permlane16_swap_b32 v{vM}, v{vT}"); a("s_nop 1"); a(f"v_max_f32 v{vM}, v{vM}, v{vT}")
        for gr in range(9):
            g=g0+gr; sl=g%9; b=S+8*gr
            for k in range(8): a(f"v_sub_f32 v{b+k}, v{b+k}, v{vM}")
            for k in range(8): a(f"v_exp_f32 v{b+k}, v{b+k}")
            a("s_nop 0")
            for k in range(4): a(f"v_cvt_pk_bf16_f32 v{b+k}, v{b+2*k}, v{b+2*k+1}")
            a.wait_vm(f"V{g}")
            if qb in (0,) and g<8: zeroV(g)
            a("s_nop 1")
            for dt in range(2):
                c = "0" if gr==0 else f"v[{O+4*dt}:{O+4*dt+3}]"
                a(f"v_mfma_f32_16x16x32_bf16 v[{O+4*dt}:{O+4*dt+3}], v[{VF+8*sl+4*dt}:{VF+8*sl+4*dt+3}], v[{b}:{b+3}], {c}")
        if qb==1: ldV(9)
        a("s_nop 7")
        a(f"ds_bpermute_b32 v{vT}, v{vBP}, v{O+4}")
        a("s_waitcnt lgkmcnt(0)")
        a(f"v_rcp_f32 v{vT}, v{vT}"); a("s_nop 0")
        for k in range(8): a(f"v_mul_f32 v{O+k}, v{O+k}, v{vT}")
        for k in range(4): a(f"v_cvt_pk_bf16_f32 v{O+k}, v{O+2*k}, v{O+2*k+1}")
        a(f"s_add_u32 s91, s83, {20480*qb}")
        a.vmem(f"buffer_store_dwordx2 v[{O}:{O+1}], v{vOO}, s[16:19], s91 offen {sc1}","st")
        a("s_mov_b64 exec, s[88:89]")
        a.vmem(f"buffer_store_dwordx2 v[{O+2}:{O+3}], v{vOO1}, s[16:19], s91 offen {sc1}","st")
        a("s_mov_b64 exec, -1")
        a("s_nop 1")

def attn_loop(a, s_m, s_h, pfx, sc1="", signal=None):
    L=vL
    a(f"v_and_b32 v151, 15, v{L}"); a(f"v_lshrrev_b32 v152, 4, v{L}")
    a("v_lshrrev_b32 v153, 2, v151"); a("v_and_b32 v154, 3, v151"); a("v_lshl_add_u32 v153, v153, 3, v154")
    a(f"s_lshl_b32 s72, s{s_h}, 11"); a(f"s_lshl_b32 s73, s{s_m}, 6"); a("s_add_u32 s72, s72, s73")
    a("s_mul_i32 s74, s72, 40")
    a("v_mul_u32_u24 v153, 40, v153"); a("v_lshl_add_u32 v153, v152, 4, v153"); a(f"v_add_u32 v{vKO}, s74, v153")
    a("v_mul_u32_u24 v153, 40, v151"); a("v_lshl_add_u32 v153, v152, 4, v153"); a(f"v_add_u32 v{vQO}, s74, v153")
    a(f"s_mul_i32 s75, s{s_h}, 20")
    a(f"s_mul_i32 s76, s{s_h}, 81920"); a(f"s_mul_i32 s77, s{s_m}, 2560"); a("s_add_u32 s76, s76, s77")
    a("v_lshlrev_b32 v153, 6, v151"); a("v_lshl_add_u32 v153, v152, 4, v153"); a(f"v_add_u32 v{vVO}, s76, v153")
    def ldK(g):
        sl=g%9
        a(f"s_movk_i32 s77, {1280*g}")
        for ab in range(2):
            a.vmem(f"buffer_load_dwordx4 v[{KF+8*sl+4*ab}:{KF+8*sl+4*ab+3}], v{vKO}, s[8:11], s77 offen offset:{160*ab}",f"K{g}")
    def ldV(g):
        sl=g%9
        a(f"s_movk_i32 s77, {1280*g}")
        a.vmem(f"buffer_load_dwordx4 v[{VF+8*sl}:{VF+8*sl+3}], v{vVO}, s[12:15], s77 offen",f"V{g}")
        a("s_mov_b64 exec, s[78:79]")
        a.vmem(f"buffer_load_dwordx4 v[{VF+8*sl+4}:{VF+8*sl+7}], v{vVO}, s[12:15], s77 offen offset:1024",f"V{g}")
        a("s_mov_b64 exec, -1")
    a("v_cmp_gt_u32 s[78:79], 4, v151")
    for qb in range(4):
        a.vmem(f"buffer_load_dwordx4 v[{Q+4*qb}:{Q+4*qb+3}], v{vQO}, s[16:19], 0 offen offset:{640*qb}","Q")
    for g in range(9): ldK(g)
    a("v_cmp_eq_u32 vcc, 4, v151"); a("v_mov_b32 v153, 0x3f803f80"); a("s_nop 0"); a("v_cndmask_b32 v153, 0, v153, vcc")
    for sl in range(9):
        for r in range(4): a(f"v_mov_b32 v{VF+8*sl+4+r}, v153")
    for g in range(9): ldV(g)
    a("s_waitcnt lgkmcnt(0)"); a("s_barrier")
    a("v_lshlrev_b32 v253, 3, v152"); a("v_mov_b32 v252, v151")
    a(f"v_mov_b32 v{vNEG}, 0xf149f2ca")
    a("v_lshl_add_u32 v153, v152, 2, s75")
    a("v_lshrrev_b32 v154, 5, v153"); a("v_lshlrev_b32 v154, 10, v154"); a("v_lshl_add_u32 v154, v151, 4, v154")
    a("v_bfe_u32 v155, v153, 3, 2"); a("v_lshl_add_u32 v154, v155, 8, v154"); a("v_and_b32 v155, 4, v153"); a(f"v_lshl_add_u32 v{vOO}, v155, 1, v154")
    a("s_add_u32 s80, s75, 16"); a("s_lshr_b32 s81, s80, 5"); a("s_lshl_b32 s81, s81, 10"); a("s_bfe_u32 s82, s80, 0x20003"); a("s_lshl_b32 s82, s82, 8")
    a("s_add_u32 s81, s81, s82"); a("s_and_b32 s82, s80, 4"); a("s_lshl_b32 s82, s82, 1"); a("s_add_u32 s81, s81, s82")
    a(f"v_lshl_add_u32 v{vOO1}, v151, 4, s81")
    a(f"v_add_u32 v{vBP}, 16, v151"); a(f"v_lshlrev_b32 v{vBP}, 2, v{vBP}")
    a(f"s_mul_i32 s83, s{s_m}, 81920"); a(f"s_add_u32 s83, s83, {OF}")
    a("v_cmp_gt_u32 s[84:85], 3, v152"); a("v_cmp_gt_u32 s[86:87], 2, v152"); a("v_cmp_eq_u32 s[88:89], 0, v152")
    a.wait_vm("Q")
    for qb in range(4):
        for r in range(4): a(f"v_cndmask_b32 v{Q+4*qb+r}, 0, v{Q+4*qb+r}, s[{84 if r<2 else 86}:{85 if r<2 else 87}]")
    a(f"s_lshl_b32 s90, s{s_m}, 1"); a("s_sub_i32 s90, 8, s90"); a("s_max_i32 s90, s90, 0")
    def zeroV(g):
        lab=a.newlabel(pfx+"zv"); sl=g%9
        a(f"s_cmp_gt_u32 s90, {g}"); a(f"s_cbranch_scc0 {lab}")
        for r in range(4): a(f"v_mov_b32 v{VF+8*sl+r}, 0");
        a("s_mov_b64 exec, s[78:79]")
        for r in range(4): a(f"v_mov_b32 v{VF+8*sl+4+r}, 0")
        a("s_mov_b64 exec, -1")
        a.label(lab)
    a("s_waitcnt vmcnt(0)"); a.vm=[]
    for g in range(8): zeroV(g)
    stamp(a,11)
    a("s_mov_b32 s92, 0"); a("s_mov_b32 s91, s83")
    lp=pfx+"_QB"
    a.label(lp)
    if STAMP:
        a("s_memtime s[100:101]"); a("s_waitcnt lgkmcnt(0)")
        a("s_cmp_eq_u32 s92, 1"); a("s_cselect_b32 s98, s100, s98"); a("s_cmp_eq_u32 s92, 2"); a("s_cselect_b32 s99, s100, s99")
    for sl in (1,2,3,4,5,6,7,8,0):
        if sl==0: a("s_waitcnt vmcnt(4)")
        for ab in range(2):
            a(f"v_mfma_f32_16x16x32_bf16 v[{S+8*sl+4*ab}:{S+8*sl+4*ab+3}], v[{KF+8*sl+4*ab}:{KF+8*sl+4*ab+3}], v[{Q}:{Q+3}], 0")
    a("s_cmp_lg_u32 s92, 1"); a(f"s_cbranch_scc1 {lp}_a")
    ldK(9)
    a.label(lp+"_a")
    a("s_and_b32 s93, s92, 1"); a("s_lshl_b32 s93, s93, 4")
    a("v_subrev_u32 v254, s93, v253")
    for k in range(8):
        a(f"v_cmp_le_i32 s[{40+2*k}:{41+2*k}], v254, v252")
        if k<7: a("v_add_u32 v254, 1, v254")
    for r in range(3): a(f"v_mov_b32 v{Q+4*r}, v{Q+4*r+4}"); a(f"v_mov_b32 v{Q+4*r+1}, v{Q+4*r+5}"); a(f"v_mov_b32 v{Q+4*r+2}, v{Q+4*r+6}"); a(f"v_mov_b32 v{Q+4*r+3}, v{Q+4*r+7}")
    a("s_nop 3")
    a("s_cmp_ge_u32 s92, 2"); a(f"s_cbranch_scc1 {lp}_m2")
    for k in range(8):
        m=f"s[{40+2*k}:{41+2*k}]"
        a(f"v_cndmask_b32 v{S+k}, v{S+k}, v{vNEG}, {m}")
        a(f"v_cndmask_b32 v{S+64+k}, v{vNEG}, v{S+64+k}, {m}")
    a("s_mov_b32 s93, 0"); a(f"s_branch {lp}_m3")
    a.label(lp+"_m2")
    for k in range(8):
        m=f"s[{40+2*k}:{41+2*k}]"
        a(f"v_cndmask_b32 v{S+8+k}, v{S+8+k}, v{vNEG}, {m}")
        a(f"v_cndmask_b32 v{S+k}, v{vNEG}, v{S+k}, {m}")
    a("s_mov_b32 s93, 9")
    a.label(lp+"_m3")
    a(f"s_cmp_eq_u32 s90, 0"); a(f"s_cbranch_scc1 {lp}_nv")
    for sl in range(8):
        lab=a.newlabel(pfx+"inv")
        if sl==0: a("s_cmp_gt_u32 s90, s93")
        else: a(f"s_cmp_gt_u32 s90, {sl}")
        a(f"s_cbranch_scc0 {lab}")
        for k in range(8): a(f"v_mov_b32 v{S+8*sl+k}, v{vNEG}")
        a.label(lab)
    a.label(lp+"_nv")
    a(f"v_max3_f32 v{vM}, v{S}, v{S+1}, v{S+2}")
    for k in range(3,71,2): a(f"v_max3_f32 v{vM}, v{vM}, v{S+k}, v{S+k+1}")
    a(f"v_max_f32 v{vM}, v{vM}, v{S+71}")
    a(f"v_mov_b32 v{vT}, v{vM}"); a("s_nop 1"); a(f"v_permlane32_swap_b32 v{vM}, v{vT}"); a("s_nop 1"); a(f"v_max_f32 v{vM}, v{vM}, v{vT}")
    a(f"v_mov_b32 v{vT}, v{vM}"); a("s_nop 1"); a(f"v_permlane16_swap_b32 v{vM}, v{vT}"); a("s_nop 1"); a(f"v_max_f32 v{vM}, v{vM}, v{vT}")
    for sl in (1,2,3,4,5,6,7,8,0):
        b=S+8*sl
        if sl==0:
            a("s_waitcnt vmcnt(0)")
            a("s_cmp_eq_u32 s92, 0"); a(f"s_cbranch_scc1 {lp}_sg")
            a("s_sub_u32 s94, s92, 1")
            signal()
            a.label(lp+"_sg")
        if os.environ.get("PK","0")=="1":
            if sl==1: a(f"v_mov_b32 v254, v{vM}"); a(f"v_mov_b32 v255, v{vM}")
            for k in range(0,8,2): a(f"v_pk_add_f32 v[{b+k}:{b+k+1}], v[{b+k}:{b+k+1}], v[254:255] neg_lo:[0,1] neg_hi:[0,1]")
        else:
            for k in range(8): a(f"v_sub_f32 v{b+k}, v{b+k}, v{vM}")
        for k in range(8): a(f"v_exp_f32 v{b+k}, v{b+k}")
        a("s_nop 0")
        for k in range(4): a(f"v_cvt_pk_bf16_f32 v{b+k}, v{b+2*k}, v{b+2*k+1}")
        a("s_nop 1")
        for dt in range(2):
            c = "0" if sl==1 else f"v[{O+4*dt}:{O+4*dt+3}]"
            a(f"v_mfma_f32_16x16x32_bf16 v[{O+4*dt}:{O+4*dt+3}], v[{VF+8*sl+4*dt}:{VF+8*sl+4*dt+3}], v[{b}:{b+3}], {c}")
    a("s_cmp_lg_u32 s92, 1"); a(f"s_cbranch_scc1 {lp}_b")
    ldV(9)
    a.label(lp+"_b")
    a("s_nop 7")
    a(f"ds_bpermute_b32 v{vT}, v{vBP}, v{O+4}")
    a("s_waitcnt lgkmcnt(0)")
    a(f"v_rcp_f32 v{vT}, v{vT}"); a("s_nop 0")
    for k in range(8): a(f"v_mul_f32 v{O+k}, v{O+k}, v{vT}")
    for k in range(4): a(f"v_cvt_pk_bf16_f32 v{O+k}, v{O+2*k}, v{O+2*k+1}")
    a(f"buffer_store_dwordx2 v[{O}:{O+1}], v{vOO}, s[16:19], s91 offen {sc1}")
    a("s_mov_b64 exec, s[88:89]")
    a(f"buffer_store_dwordx2 v[{O+2}:{O+3}], v{vOO1}, s[16:19], s91 offen {sc1}")
    a("s_mov_b64 exec, -1")
    a("s_add_u32 s91, s91, 20480")
    a("s_add_u32 s92, s92, 1"); a("s_cmp_lt_u32 s92, 4")
    a(f"s_cbranch_scc1 {lp}")
    a("s_waitcnt vmcnt(0)"); a("s_mov_b32 s94, 3")
    signal()
    a.vm=[]

def attn_srds(a, wslo, wshi):
    srd(a,8,wslo,wshi,2621440+10240,KH-10240)
    srd(a,12,wslo,wshi,2621440+10240,VT-10240)
    srd(a,16,wslo,wshi,0x2000000)

def gen_k2(a):
    a.label("k2_kernel")
    a("s_cmp_ge_u32 s2, 256"); a("s_cbranch_scc1 K2_END")
    a("s_load_dwordx2 s[30:31], s[0:1], 80")
    a(f"v_and_b32 v{vL}, 63, v0"); a("v_lshrrev_b32 v1, 6, v0"); a("s_nop 0"); a("v_readfirstlane_b32 s36, v1")
    a("s_and_b32 s34, s2, 7"); a("s_lshl_b32 s34, s34, 2"); a("s_lshr_b32 s35, s2, 6"); a("s_add_u32 s34, s34, s35"); a("s_bfe_u32 s35, s2, 0x30003"); a("s_lshl_b32 s35, s35, 2"); a("s_add_u32 s35, s35, s36")
    a("s_waitcnt lgkmcnt(0)")
    attn_srds(a,30,31)
    attn_body(a,34,35,"K2")
    a.label("K2_END")
    a("s_endpgm")
```

```python
from asmlib import *
from k1 import QH,KH,VT,VTP,HF,W2F,WOF,OF,GB
import k2,k3
ACC=0; FR=80; NS=4; G=200
vA=224; vW=225; vL=226; vX=227; vRW=228; vRR=229; vRR2=230; vFO=231; TT=232; TP=242; LCNT=102400
def gemm_part(a, nk, sA, sW, strideA_kg, tag):
    def ld(k):
        b=FR+36*(k%NS)
        a(f"s_add_u32 s61, s{sA}, s46")
        for t in range(4):
            if t: a(f"s_add_u32 s60, s61, {t*strideA_kg}")
            a.vmem(f"buffer_load_dwordx4 v[{b+4*t}:{b+4*t+3}], v{vA}, s[16:19], s{60 if t else 61} offen",f"{tag}{k}")
        a(f"s_add_u32 s60, s{sW}, s47")
        for j in range(5):
            if j==4:
                a.vmem(f"buffer_load_dwordx4 v[{b+16+4*j}:{b+16+4*j+3}], v{vW}, s[16:19], s60 offen",f"{tag}{k}")
            else:
                a.vmem(f"buffer_load_dwordx4 v[{b+16+4*j}:{b+16+4*j+3}], v{vA}, s[16:19], s60 offen offset:{1024*j}",f"{tag}{k}")
        a("s_add_u32 s46, s46, 1024"); a("s_add_u32 s47, s47, 40960")
        a("s_cmp_eq_u32 s46, 12288"); a("s_cselect_b32 s46, 0, s46"); a("s_cselect_b32 s47, 0, s47")
    return ld
def mm(a,k,first):
    b=FR+36*(k%NS)
    for t in range(4):
        for j in range(5):
            d=ACC+4*(5*t+j)
            c="0" if first else f"v[{d}:{d+3}]"
            a(f"v_mfma_f32_16x16x32_bf16 v[{d}:{d+3}], v[{b+16+4*j}:{b+16+4*j+3}], v[{b+4*t}:{b+4*t+3}], {c}")
def reduce(a, dst):
    a("s_nop 7")
    for t in range(4):
        for j in range(5):
            d=ACC+4*(5*t+j)
            a.lds(f"ds_write_b128 v{vRW}, v[{d}:{d+3}] offset:{(t*5+j)*1024}","rw")
    a.wait_lg_all(); a("s_barrier")
    for w in range(4):
        for j in range(5):
            r = dst+4*j if w==0 else ACC+20*w+4*j
            a.lds(f"ds_read_b128 v[{r}:{r+3}], v{vRR if w<2 else vRR2} offset:{(w&1)*20480+j*1024}","rr")
    a.wait_lg_all()
    for w in range(1,4):
        for k in range(20): a(f"v_add_f32 v{dst+k}, v{dst+k}, v{ACC+20*w+k}")
CNT=0x1C10000
def fsync(a,off):
    l=a.newlabel("FS"); d=a.newlabel("FSD")
    a(f"v_mov_b32 v{TP+6}, {LCNT+off}"); a(f"v_mov_b32 v{TP+7}, 1")
    a("s_mov_b64 exec, 1")
    a(f"ds_add_u32 v{TP+6}, v{TP+7}")
    a.label(l)
    a(f"ds_read_b32 v{TP+7}, v{TP+6}")
    a("s_waitcnt lgkmcnt(0)")
    a(f"v_readfirstlane_b32 s62, v{TP+7}")
    a("s_cmp_ge_u32 s62, 4"); a(f"s_cbranch_scc1 {d}")
    a("s_sleep 1"); a(f"s_branch {l}")
    a.label(d)
    a("s_mov_b64 exec, -1")
def gen_k23(a):
    a.label("k23_kernel")
    a("s_cmp_ge_u32 s2, 256"); a("s_cbranch_scc1 K23_END")
    stamp(a,0); stamp(a,10)
    a("s_load_dwordx2 s[4:5], s[0:1], 0")
    a("s_load_dwordx4 s[24:27], s[0:1], 56")
    a("s_load_dwordx4 s[28:31], s[0:1], 72")
    a("v_lshrrev_b32 v1, 6, v0"); a("s_nop 0"); a("v_readfirstlane_b32 s33, v1")
    a("s_and_b32 s36, s33, 3")
    a("s_and_b32 s34, s2, 7"); a("s_lshl_b32 s34, s34, 2"); a("s_lshr_b32 s35, s2, 6"); a("s_add_u32 s34, s34, s35"); a("s_bfe_u32 s35, s2, 0x30003")
    a(f"v_mov_b32 v1, {LCNT}"); a("v_mov_b32 v2, 0"); a("v_mov_b32 v3, 0"); a("ds_write_b64 v1, v[2:3]"); a("ds_write_b64 v1, v[2:3] offset:8"); a("ds_write_b64 v1, v[2:3] offset:16"); a("ds_write_b64 v1, v[2:3] offset:24")
    a("s_cmp_ge_u32 s33, 4"); a("s_cbranch_scc1 K23_F")
    a(f"v_and_b32 v{k2.vL}, 63, v0")
    a("s_lshl_b32 s35, s35, 2"); a("s_add_u32 s35, s35, s36")
    a("s_waitcnt lgkmcnt(0)")
    k2.attn_srds(a,30,31)
    import os
    a(f"s_setprio {os.environ.get('APRIO','3')}")
    def signal():
        l=a.newlabel("SG")
        a("s_lshl_b32 s95, s94, 2"); a(f"s_add_u32 s96, s95, {LCNT+16}")
        a("v_mov_b32 v254, s96"); a("v_mov_b32 v255, 1")
        a("s_mov_b64 exec, 1")
        a("ds_add_rtn_u32 v255, v254, v255")
        a("s_waitcnt lgkmcnt(0)")
        a("v_readfirstlane_b32 s96, v255")
        a("s_cmp_lg_u32 s96, 3"); a(f"s_cbranch_scc1 {l}")
        a("s_lshl_b32 s96, s34, 8"); a("s_add_u32 s96, s96, s95"); a(f"s_add_u32 s96, s96, {CNT}")
        a("v_mov_b32 v254, s96"); a("v_mov_b32 v255, 1")
        a("global_atomic_add v254, v255, s[30:31] sc1")
        a.label(l)
        a("s_mov_b64 exec, -1")
    k2.attn_loop(a,34,35,"K2",sc1="sc1",signal=signal)
    a("s_endpgm")
    a.label("K23_F"); a.vm=[]; a.lg=[]
    a(f"v_and_b32 v{vL}, 63, v0")
    a("s_waitcnt lgkmcnt(0)")
    srd(a,16,30,31,0x2000000); srd(a,8,4,5,2048*1280); srd(a,12,26,27,2048*1280); srd(a,20,24,25,1280)
    a(f"v_lshlrev_b32 v{vA}, 4, v{vL}"); a(f"v_add_u32 v{vW}, 4096, v{vA}")
    a("s_mul_i32 s40, s34, 200704"); a("s_mul_i32 s37, s36, 12288"); a("s_add_u32 s40, s40, s37"); a(f"s_add_u32 s40, s40, {HF}")
    a("s_mul_i32 s41, s36, 491520"); a("s_mul_i32 s37, s35, 5120"); a("s_add_u32 s41, s41, s37"); a(f"s_add_u32 s41, s41, {W2F}")
    a("s_and_b32 s46, s34, 3"); a("s_mul_i32 s46, s46, 3"); a("s_add_u32 s46, s46, s35"); a("s_lshr_b32 s47, s35, 1"); a("s_add_u32 s46, s46, s47")
    a("s_cmp_ge_u32 s46, 12"); a("s_cbranch_scc0 K23_R0"); a("s_sub_u32 s46, s46, 12"); a.label("K23_R0")
    a("s_mul_i32 s47, s46, 40960"); a("s_lshl_b32 s46, s46, 10")
    ld=gemm_part(a,12,40,41,50176,"F")
    a("s_barrier")
    import os
    if os.environ.get("NOF"): a("s_branch K23_SKIPF")
    ld(0); ld(1); ld(2)
    a("s_mul_i32 s37, s36, 20480"); a(f"v_add_u32 v{vRW}, s37, v{vA}")
    a("s_mul_i32 s37, s36, 5120"); a(f"v_add_u32 v{vRR}, s37, v{vA}"); a(f"v_add_u32 v{vRR2}, 40960, v{vRR}")
    a("s_mul_i32 s42, s34, 81920"); a("s_mul_i32 s37, s36, 20480"); a("s_add_u32 s42, s42, s37"); a(f"s_add_u32 s42, s42, {OF}")
    a("s_mul_i32 s43, s36, 204800"); a("s_mul_i32 s37, s35, 5120"); a("s_add_u32 s43, s43, s37"); a(f"s_add_u32 s43, s43, {WOF}")
    a(f"v_and_b32 v1, 15, v{vL}"); a(f"v_lshrrev_b32 v2, 4, v{vL}")
    a("s_lshl_b32 s37, s34, 6"); a("s_lshl_b32 s38, s36, 4"); a("s_add_u32 s37, s37, s38"); a("v_add_u32 v1, s37, v1"); a("v_mul_u32_u24 v1, 1280, v1")
    a("s_mul_i32 s38, s35, 160"); a("v_lshlrev_b32 v2, 3, v2"); a("v_add_u32 v2, s38, v2"); a(f"v_add_u32 v{vX}, v1, v2")
    a(f"v_mov_b32 v{vFO}, v2")
    for k in range(4):
        ld(k+3); a.wait_vm(f"F{k}"); mm(a,k,k==0)
    a("s_mov_b32 s45, 0"); a.label("K23_FL")
    for k in range(4,8):
        if k==4:
            ld(k+3); a("s_waitcnt vmcnt(27)")
        else:
            l1=a.newlabel("FLs"); l2=a.newlabel("FLt")
            a("s_cmp_eq_u32 s45, 1"); a(f"s_cbranch_scc1 {l1}")
            ld(k+3); a("s_waitcnt vmcnt(27)"); a(f"s_branch {l2}")
            a.label(l1)
            if k==6:
                for j in range(5): a(f"buffer_load_dwordx2 v[{TT+2*j}:{TT+2*j+1}], v{vFO}, s[20:23], 0 offen offset:{32*j}")
            a(f"s_waitcnt vmcnt({ {5:18,6:14,7:5}[k] })")
            a.label(l2)
        mm(a,k,False)
    a("s_add_u32 s45, s45, 1"); a("s_cmp_lt_u32 s45, 2"); a("s_cbranch_scc1 K23_FL")
    a.vm=["b2"]*5
    a.label("K23_SKIPF")
    stamp(a,1)
    a("s_nop 7")
    for t in range(4):
        for j in range(5):
            d=ACC+4*(5*t+j)
            a.lds(f"ds_write_b128 v{vRW}, v[{d}:{d+3}] offset:{(t*5+j)*1024}","rw")
    a.wait_lg_all(); fsync(a,4)
    stamp(a,2)
    for w in range(4):
        for j in range(5):
            r = G+4*j if w==0 else ACC+20*w+4*j
            a.lds(f"ds_read_b128 v[{r}:{r+3}], v{vRR if w<2 else vRR2} offset:{(w&1)*20480+j*1024}","rr")
    a.wait_lg_all()
    fsync(a,8)
    a("s_mul_i32 s47, s36, 25600")
    for kk in range(5):
        a(f"s_add_u32 s60, s43, {kk*40960}")
        for j in range(5):
            a(f"s_add_u32 m0, s47, {kk*5120+j*1024}")
            if j: a("s_add_u32 s60, s60, 1024")
            else: a("s_nop 0")
            a.vmem(f"buffer_load_dwordx4 v{vA}, s[16:19], s60 offen lds","WO")
    for w in range(1,4):
        for k in range(20): a(f"v_add_f32 v{G+k}, v{G+k}, v{ACC+20*w+k}")
    a.wait_vm("b2")
    a("s_mov_b32 s44, 0xbfb8aa3b")
    for j in range(5):
        for h in range(2):
            a(f"v_lshlrev_b32 v{TP}, 16, v{TT+2*j+h}"); a(f"v_and_b32 v{TP+1}, 0xffff0000, v{TT+2*j+h}")
            for e in range(2):
                r=G+4*j+2*h+e
                a(f"v_add_f32 v{r}, v{r}, v{TP+e}")
                a(f"v_mul_f32 v{TP+2+e}, s44, v{r}"); a(f"v_exp_f32 v{TP+2+e}, v{TP+2+e}"); a("s_nop 0")
                a(f"v_add_f32 v{TP+2+e}, 1.0, v{TP+2+e}"); a(f"v_rcp_f32 v{TP+2+e}, v{TP+2+e}"); a("s_nop 0")
                a(f"v_mul_f32 v{r}, v{r}, v{TP+2+e}")
    for j in range(5): a.vmem(f"buffer_load_dwordx2 v[{TT+2*j}:{TT+2*j+1}], v{vX}, s[8:11], 0 offen offset:{32*j}","xr")
    a(f"v_add_u32 v{vW}, 51200, v{vA}")
    a.wait_vm_all()
    fsync(a,12)
    a("s_lshl_b32 s37, s34, 8"); a("s_lshl_b32 s38, s36, 2"); a("s_add_u32 s37, s37, s38"); a(f"s_add_u32 s37, s37, {CNT}")
    a(f"v_mov_b32 v{TP+6}, s37")
    a.label("K23_POLL")
    a(f"global_load_dword v{TP+7}, v{TP+6}, s[30:31] sc1")
    a("s_waitcnt vmcnt(0)")
    a(f"v_readfirstlane_b32 s38, v{TP+7}")
    a("s_cmp_ge_u32 s38, 8"); a("s_cbranch_scc1 K23_PD")
    a("s_sleep 4"); a("s_branch K23_POLL")
    a.label("K23_PD")
    stamp(a,3)
    OFR=80; WR_=160; NR=10
    for kg in range(20):
        a(f"s_add_u32 s60, s42, {kg*1024}")
        a.vmem(f"buffer_load_dwordx4 v[{OFR+4*kg}:{OFR+4*kg+3}], v{vA}, s[16:19], s60 offen sc1",f"O{kg}")
    def rdw(i):
        kg,j=divmod(i,5); off=kg*5120+j*1024
        b=WR_+4*(i%NR)
        a.lds(f"ds_read_b128 v[{b}:{b+3}], v{vA if off<51200 else vW} offset:{off if off<51200 else off-51200}",f"w{i}")
    for i in range(NR-2): rdw(i)
    for i in range(100):
        kg,j=divmod(i,5)
        if j==0: a.wait_vm(f"O{kg}")
        a.wait_lg(f"w{i}")
        d=4*j; b=WR_+4*(i%NR)
        c="0" if kg==0 else f"v[{d}:{d+3}]"
        a(f"v_mfma_f32_16x16x32_bf16 v[{d}:{d+3}], v[{b}:{b+3}], v[{OFR+4*kg}:{OFR+4*kg+3}], {c}")
        if i+NR-2<100: rdw(i+NR-2)
    stamp(a,4)
    a("s_nop 7")
    T2=TP
    for j in range(5):
        for h in range(2):
            a(f"v_lshlrev_b32 v{T2}, 16, v{TT+2*j+h}"); a(f"v_and_b32 v{T2+1}, 0xffff0000, v{TT+2*j+h}")
            for e in range(2):
                a(f"v_fma_f32 v{T2+e}, v{4*j+2*h+e}, v{G+4*j+2*h+e}, v{T2+e}")
            a(f"v_cvt_pk_bf16_f32 v{T2+4+h}, v{T2}, v{T2+1}")
        a(f"buffer_store_dwordx2 v[{T2+4}:{T2+5}], v{vX}, s[12:15], 0 offen offset:{32*j}")
        a("s_nop 1")
    if STAMP:
        a("s_waitcnt vmcnt(0)"); stamp(a,5); stamp_out(a,6,8,144,1)
    a.label("K23_END")
    a("s_endpgm")
```

```python
from asmlib import *
from k1 import QH,KH,VT,VTP,HF,W2F,WOF,OF,QSCALE,fbits
XS=40960
WSL=[122880,139264,81920,98304]
MISC=155648; ST=MISC; CSA=MISC+2048; BBA=MISC+2560; STG=0x1C00000
WF=0; ACC=[160,176]; XF=192; XA=224; SO=232; T=236; P=240; C4=244; B4=248
vRS=252; vMR=253; vTMP=254; vCB=255
vTRB=236; vTRB2=237; vS1=238; vONE=239; vLANE=243
XD=200; vWD=210; vSA=211; vSA2=212; vSTA=213; lS1=214; lS2=215; lONE=216; SRB=160

import os
EXP=int(os.environ.get('EXP','0'))
XS_V=int(os.environ.get('XS_V','2'))
XSCHED=[{2:7,3:9},{2:6,3:8},{2:5,3:7},{2:5,3:8}][XS_V]
XLASTW=max(XSCHED)
ROT=int(os.environ.get('ROT','1'))
WPRE=int(os.environ.get('WPRE','4'))
PC0=int(os.environ.get('PC0','4'))
MERGE=int(os.environ.get('MERGE','1'))
W0=int(os.environ.get('W0','4'))
PFX_AT=int(os.environ.get('PFX_AT','2'))
PRIO=int(os.environ.get('PRIO','2'))
def gen_k1(a):
    a.label("k1_kernel")
    a("s_cmp_ge_u32 s2, 256"); a("s_cbranch_scc1 K1_END")
    stamp(a,0)
    a("s_load_dwordx4 s[4:7], s[0:1], 0")
    a("s_load_dwordx2 s[20:21], s[0:1], 16")
    a("s_load_dwordx4 s[24:27], s[0:1], 32")
    a("s_load_dwordx2 s[28:29], s[0:1], 48")
    a("s_load_dwordx2 s[30:31], s[0:1], 80")
    a("s_and_b32 s32, s2, 7")
    a("s_lshr_b32 s80, s2, 3"); a("s_add_u32 s33, s80, 28"); a("s_and_b32 s33, s33, 31")
    a("s_load_dwordx2 s[82:83], s[0:1], 72")
    a("s_lshr_b32 s34, s32, 1")
    a("s_and_b32 s35, s32, 1")
    a("s_lshr_b32 s36, s33, 2")
    a("s_and_b32 s37, s33, 3")
    a("s_mul_i32 s38, s34, 7"); a("s_add_u32 s38, s38, s36")
    a("s_lshl_b32 s39, s35, 5"); a("s_lshl_b32 s40, s37, 3"); a("s_add_u32 s39, s39, s40")
    L=vLANE
    a(f"v_and_b32 v{L}, 63, v0")
    a("v_lshrrev_b32 v1, 6, v0"); a("s_nop 0"); a("v_readfirstlane_b32 s78, v1")
    a("s_and_b32 s41, s78, 3")
    a("s_mul_i32 s49, s39, 40960")
    a("s_mul_i32 s50, s41, 10240")
    a("s_waitcnt lgkmcnt(0)")
    a("s_cmp_ge_u32 s36, 7"); a("s_cbranch_scc1 K1_HELP")
    a("s_cmp_ge_u32 s38, 27"); a("s_cbranch_scc1 K1_HELP")
    srd(a,12,4,5,2048*1280)
    srd(a,16,30,31,0x2000000)
    def xd_calc():
        for i in range(10):
            if i: a(f"v_add_u32 v1, {64*i}, v{L}")
            src = "v1" if i else f"v{L}"
            a(f"v_mul_u32_u24 v2, 52429, {src}"); a("v_lshrrev_b32 v2, 22, v2")
            a("v_mul_u32_u24 v3, 80, v2"); a(f"v_sub_u32 v3, {src}, v3")
            a("v_add_u32 v2, s79, v2")
            a("v_and_b32 v4, 15, v2"); a("v_xor_b32 v3, v3, v4")
            a("v_add_u32 v3, s77, v3"); a("v_subrev_u32 v4, 80, v3"); a("v_min_u32 v3, v3, v4")
            a("v_mul_u32_u24 v2, 1280, v2"); a(f"v_lshl_add_u32 v{XD+i}, v3, 4, v2")
    def dma_x(sl_sgpr, soff, tag):
        for i in range(10):
            a(f"s_add_u32 m0, s{sl_sgpr}, {i*1024}"); a("s_nop 0")
            a.vmem(f"buffer_load_dwordx4 v{XD+i}, s[12:15], s{soff} offen lds", tag)
    a("s_lshl_b32 s79, s41, 3")
    a("s_mul_i32 s81, s37, 3"); a("s_add_u32 s81, s81, s36"); a("s_cmp_ge_u32 s81, 10"); a("s_cbranch_scc0 K1_O0"); a("s_sub_u32 s81, s81, 10"); a.label("K1_O0")
    if not ROT: a("s_mov_b32 s81, 0")
    a("s_lshl_b32 s77, s81, 3")
    a("s_cmp_ge_u32 s78, 4"); a("s_cbranch_scc1 K1_LOAD")
    a(f"s_setprio {PRIO}")
    a(f"v_bfe_u32 v1, v{L}, 2, 2")
    a(f"v_lshrrev_b32 v2, 5, v{L}")
    a("v_lshl_add_u32 v2, v2, 3, v1"); a("v_lshlrev_b32 v2, 8, v2")
    a("v_xor_b32 v1, s41, v1"); a("v_lshl_add_u32 v2, v1, 6, v2")
    a(f"v_bfe_u32 v1, v{L}, 4, 1"); a("v_lshl_add_u32 v2, v1, 5, v2")
    a(f"v_and_b32 v1, 3, v{L}"); a("v_lshl_add_u32 v2, v1, 3, v2")
    a(f"v_add_u32 v{vTRB}, {WSL[2]}, v2"); a(f"v_add_u32 v{vTRB2}, {WSL[0]}, v2")
    a(f"v_and_b32 v1, 31, v{L}"); a(f"v_lshrrev_b32 v2, 5, v{L}"); a("v_and_b32 v3, 15, v1"); a("v_mul_u32_u24 v4, 1280, v1")
    for j in range(8):
        a(f"v_add_u32 v5, {2*j}, v2"); a("v_xor_b32 v5, v5, v3"); a(f"v_lshl_add_u32 v{XA+j}, v5, 4, v4")
    a(f"v_mov_b32 v{vONE}, 0x3f803f80")
    a(f"v_mov_b32 v{vS1}, 0")
    a("s_cmp_lt_u32 s38, 10"); a("s_cbranch_scc1 K1_QK")
    a("s_cmp_lt_u32 s38, 15"); a("s_cbranch_scc1 K1_V")
    for typ in ("H","QK","V"):
        a.label(f"K1_{typ}")
        gen_type(a,typ)
    gen_loader(a,xd_calc,dma_x)
    gen_help(a)
    if MERGE:
        a.label("K1_DONE")
        a("s_setprio 0"); a("s_mov_b64 exec, -1")
        a("s_waitcnt vmcnt(0) lgkmcnt(0)")
        a("s_barrier")
        a("s_cmp_lg_u32 s78, 0"); a("s_cbranch_scc1 K1_MGW")
        a("s_load_dwordx2 s[82:83], s[0:1], 72")
        if MERGE==1:
            a("buffer_wbl2 sc1")
        a("v_mov_b32 v1, 0"); a("v_mov_b32 v2, 1")
        a("s_waitcnt vmcnt(0) lgkmcnt(0)")
        a("s_mov_b64 exec, 1")
        a("global_atomic_add v1, v2, s[82:83] offset:248 sc1")
        a.label("K1_MGP")
        a("global_load_dword v3, v1, s[82:83] offset:248 sc1")
        a("s_waitcnt vmcnt(0)")
        a("v_readfirstlane_b32 s4, v3")
        a("s_cmp_ge_u32 s4, 256"); a("s_cbranch_scc1 K1_MGD")
        a("s_sleep 1"); a("s_branch K1_MGP")
        a.label("K1_MGD")
        a("s_mov_b64 exec, -1")
        a("buffer_inv sc1")
        a("s_waitcnt vmcnt(0)")
        a.label("K1_MGW")
        a("v_mbcnt_lo_u32_b32 v0, -1, 0"); a("v_mbcnt_hi_u32_b32 v0, -1, v0")
        a("s_lshl_b32 s4, s78, 6"); a("v_add_u32 v0, s4, v0")
        a("s_barrier")
        a("s_branch k23_kernel")
    a.label("K1_END")
    a("s_endpgm")

def gen_loader(a,xd_calc,dma_x):
    L=vLANE
    a.label("K1_LOAD"); a.vm=[]; a.lg=[]
    a("s_cmp_lt_u32 s38, 15"); a("s_cbranch_scc0 K1_W1")
    srd(a,8,6,7,640*3840); a("s_mov_b32 s42, 3840"); a("s_lshl_b32 s43, s38, 8"); a("s_branch K1_WD")
    a.label("K1_W1")
    srd(a,8,24,25,640*3072); a("s_mov_b32 s42, 3072"); a("s_sub_u32 s43, s38, 15"); a("s_lshl_b32 s43, s43, 8")
    a.label("K1_WD")
    a(f"v_lshrrev_b32 v1, 4, v{L}")
    a(f"v_bfe_u32 v2, v{L}, 2, 2")
    a("v_xor_b32 v2, v2, v1")
    a(f"v_and_b32 v3, 3, v{L}")
    a("v_lshl_or_b32 v2, v2, 2, v3")
    a("v_lshlrev_b32 v2, 4, v2")
    a("v_mul_lo_u32 v1, v1, s42")
    a(f"v_add_u32 v{vWD}, v1, v2")
    a("s_lshl_b32 s44, s41, 4"); a("s_mul_i32 s44, s44, s42"); a("s_add_u32 s44, s44, s43")
    a("s_lshl_b32 s45, s41, 12")
    a("s_lshl_b32 s46, s42, 2")
    a("s_lshl_b32 s47, s42, 6")
    if STAMP: a("s_memtime s[100:101]"); a("s_waitcnt lgkmcnt(0)"); a(f"s_mov_b32 s70, s100")
    a("s_mov_b32 s56, s81")
    def ld_w(c):
        a("s_mul_i32 s57, s47, s56"); a("s_add_u32 s57, s57, s44")
        for i in range(4):
            if i: a(f"s_add_u32 s57, s57, s46")
            r=16*c+4*i
            a.vmem(f"buffer_load_dwordx4 v[{r}:{r+3}], v{vWD}, s[8:11], s57 offen", f"W{c}")
        a("s_add_u32 s56, s56, 1"); a("s_cmp_eq_u32 s56, 10"); a("s_cselect_b32 s56, 0, s56")
    a("s_mov_b32 s58, s81")
    for i in range(10):
        a(f"s_lshl_b32 s{86+i}, s58, 7")
        a("s_add_u32 s58, s58, 1"); a("s_cmp_eq_u32 s58, 10"); a("s_cselect_b32 s58, 0, s58")
    vXG=200; vWA=201; vWC=202; vXW=203
    a(f"v_lshrrev_b32 v{SRB+1}, 3, v{L}"); a(f"v_add_u32 v{SRB+1}, s79, v{SRB+1}")
    a(f"v_and_b32 v{SRB+2}, 7, v{L}"); a(f"v_and_b32 v{SRB+3}, 15, v{SRB+1}"); a(f"v_mul_u32_u24 v{SRB+4}, 1280, v{SRB+1}")
    a(f"v_lshl_add_u32 v{vXG}, v{SRB+2}, 4, v{SRB+4}")
    a(f"v_xor_b32 v{SRB+5}, v{SRB+2}, v{SRB+3}"); a(f"v_lshl_add_u32 v{vXW}, v{SRB+5}, 4, v{SRB+4}")
    a(f"v_add_u32 v{SRB+5}, 8, v{SRB+2}"); a(f"v_xor_b32 v{SRB+5}, v{SRB+5}, v{SRB+3}"); a(f"v_lshl_add_u32 v{vXW+1}, v{SRB+5}, 4, v{SRB+4}")
    for sl in (1,2):
        for o in range(2): a(f"v_add_u32 v{vXW+2*sl+o}, {sl*XS}, v{vXW+o}")
    a(f"v_lshlrev_b32 v{vSTA}, 2, v{SRB+1}"); a(f"v_add_u32 v{vSTA}, {ST}, v{vSTA}")
    a(f"v_lshlrev_b32 v{vWA}, 4, v{L}"); a(f"v_add_u32 v{vWA}, s45, v{vWA}"); a(f"v_add_u32 v{vWC}, {WSL[2]}, v{vWA}"); a(f"v_add_u32 v{vWA}, {WSL[0]}, v{vWA}")
    a(f"v_mov_b32 v{lONE}, 0x3f803f80")
    def ld_x01(c):
        for j in range(2):
            r=SRB+8*(c%5)+4*j
            a(f"s_add_u32 s57, s{86+c}, s{49 if j==0 else 54}")
            a.vmem(f"buffer_load_dwordx4 v[{r}:{r+3}], v{vXG}, s[12:15], s57 offen", f"W{c}")
    a("s_add_u32 s54, s49, 40960")
    for c in range(W0): ld_w(c); ld_x01(c)
    if STAMP: a("s_memtime s[100:101]"); a("s_waitcnt lgkmcnt(0)"); a(f"s_mov_b32 s71, s100")
    if STAMP: a("s_mov_b32 s73, s70"); a("s_mov_b32 s74, s71")
    a("s_mov_b32 s71, 0x3acccccd"); a("s_mov_b32 s72, 0x3727c5ac")
    def ld_x(j):
        b=40*((j-2)%4)
        a(f"s_add_u32 s55, s49, {40960*j}")
        for i in range(10):
            a(f"s_add_u32 s57, s55, s{86+i}")
            a.vmem(f"buffer_load_dwordx4 v[{b+4*i}:{b+4*i+3}], v{vXG}, s[12:15], s57 offen", f"X{j}")
    A0=224; A1=228; A2=232; U=236
    def acc4(A,r,first):
        for k in range(4):
            u=U+2*(k&1)
            a(f"v_lshlrev_b32 v{u}, 16, v{r+k}"); a(f"v_and_b32 v{u+1}, 0xffff0000, v{r+k}")
            if first and k==0:
                a(f"v_pk_add_f32 v[{A}:{A+1}], v[{u}:{u+1}], 0 op_sel_hi:[1,0]"); a(f"v_pk_mul_f32 v[{A+2}:{A+3}], v[{u}:{u+1}], v[{u}:{u+1}]")
            else:
                a(f"v_pk_add_f32 v[{A}:{A+1}], v[{A}:{A+1}], v[{u}:{u+1}]"); a(f"v_pk_fma_f32 v[{A+2}:{A+3}], v[{u}:{u+1}], v[{u}:{u+1}], v[{A+2}:{A+3}]")
    def fin(j,A):
        a(f"v_add_f32 v{lS1}, v{A}, v{A+1}"); a(f"v_add_f32 v{lS2}, v{A+2}, v{A+3}")
        for ctrl in ("quad_perm:[1,0,3,2]","quad_perm:[2,3,0,1]","row_half_mirror"):
            a("s_nop 1")
            a(f"v_add_f32_dpp v{lS1}, v{lS1}, v{lS1} {ctrl} row_mask:0xf bank_mask:0xf")
            a(f"v_add_f32_dpp v{lS2}, v{lS2}, v{lS2} {ctrl} row_mask:0xf bank_mask:0xf")
        a(f"v_mul_f32 v{lS1}, s71, v{lS1}")
        a(f"v_mul_f32 v{lS2}, s71, v{lS2}")
        a(f"v_fma_f32 v{lS2}, -v{lS1}, v{lS1}, v{lS2}")
        a(f"v_add_f32 v{lS2}, s72, v{lS2}")
        a(f"v_rsq_f32 v{lS2}, v{lS2}")
        a("s_nop 0")
        a(f"v_mul_f32 v{lS1}, v{lS1}, v{lS2}")
        a(f"ds_write_b32 v{vSTA}, v{lS2} offset:{j*256}")
        a(f"ds_write_b32 v{vSTA}, v{lS1} offset:{j*256+128}")
        a("s_waitcnt lgkmcnt(0)")
    def stats(j):
        sl=j%3
        b=40*((j-2)%4)
        a.wait_vm(f"X{j}")
        for i in range(10):
            a(f"ds_write_b128 v{vXW+2*sl+(i&1)}, v[{b+4*i}:{b+4*i+3}] offset:{(i>>1)*256}")
        a("s_waitcnt lgkmcnt(0)")
    def get_stats():
        a("s_cmp_ge_u32 s59, 32"); a("s_cbranch_scc1 K1_GSD")
        sv=list(a.vm)
        a(f"v_mov_b32 v{SRB}, 0")
        a.label("K1_POLL")
        a(f"global_load_dword v{SRB+1}, v{SRB}, s[82:83] offset:252 sc1")
        a("s_waitcnt vmcnt(0)"); a.vm=[]
        a(f"v_readfirstlane_b32 s51, v{SRB+1}")
        a("s_cmp_ge_u32 s51, 32"); a("s_cbranch_scc1 K1_POLLD")
        a("s_sleep 2"); a("s_branch K1_POLL")
        a.label("K1_POLLD")
        a("s_lshl_b32 s51, s39, 8"); a("s_lshl_b32 s52, s41, 9"); a("s_add_u32 s51, s51, s52"); a(f"s_add_u32 s51, s51, {STG}")
        a(f"v_lshlrev_b32 v{SRB}, 4, v{L}")
        a("s_mov_b32 exec_hi, 0")
        a(f"buffer_load_dwordx4 v[{SRB+4}:{SRB+7}], v{SRB}, s[16:19], s51 offen sc1")
        a(f"s_add_u32 s52, s52, {ST}"); a(f"v_add_u32 v{SRB}, s52, v{SRB}")
        a("s_waitcnt vmcnt(0)")
        a(f"ds_write_b128 v{SRB}, v[{SRB+4}:{SRB+7}]")
        a("s_mov_b64 exec, -1")
        a("s_waitcnt lgkmcnt(0)")
        a.label("K1_GSD"); a.vm=sv
    for c in range(10):
        a.wait_vm(f"W{c}")
        if STAMP: a("s_memtime s[100:101]"); a("s_waitcnt lgkmcnt(0)"); a(f"s_mov_b32 s{60+c}, s100")
        for i in range(4):
            r=16*c+4*i
            a(f"ds_write_b128 v{vWA if (c%4)<2 else vWC}, v[{r}:{r+3}] offset:{(c%2)*16384+i*1024}")
        for j in range(2):
            r=SRB+8*(c%5)+4*j
            a(f"ds_write_b128 v{vXW+2*j+(c&1)}, v[{r}:{r+3}] offset:{(c>>1)*256}")
        a("s_waitcnt lgkmcnt(0)")
        a("s_barrier")
        if c==PC0:
            a(f"v_mov_b32 v217, 0")
            a.vmem(f"global_load_dword v218, v217, s[82:83] offset:252 sc1","P")
        if c==PC0+3:
            a.wait_vm("P"); a("v_readfirstlane_b32 s59, v218")
            a("s_lshl_b32 s51, s39, 8"); a("s_lshl_b32 s52, s41, 9"); a("s_add_u32 s51, s51, s52"); a(f"s_add_u32 s51, s51, {STG}")
            a(f"v_lshlrev_b32 v217, 4, v{L}")
            a("s_mov_b32 exec_hi, 0")
            a.vmem(f"buffer_load_dwordx4 v[220:223], v217, s[16:19], s51 offen sc1","S1")
            a("s_mov_b64 exec, -1")
        if c==9:
            a.wait_vm("S1")
            a("s_cmp_ge_u32 s59, 32"); a("s_cbranch_scc0 K1_NS")
            a(f"s_add_u32 s52, s52, {ST}"); a(f"v_add_u32 v217, s52, v217")
            a("s_mov_b32 exec_hi, 0")
            a(f"ds_write_b128 v217, v[220:223]")
            a("s_mov_b64 exec, -1")
            a("s_waitcnt lgkmcnt(0)")
            a.label("K1_NS")
        if c==0:
            for cc in range(W0,WPRE): ld_w(cc); ld_x01(cc)
        if c+WPRE<10: ld_w(c+WPRE); ld_x01(c+WPRE)
        for j,cc in XSCHED.items():
            if cc==c:
                ld_x(j)
        if c==9: get_stats()
    nxt=[max(XSCHED)+1]
    def more():
        if nxt[0]<8: ld_x(nxt[0]); nxt[0]+=1
    a("s_barrier")
    stats(2)
    a("s_barrier")
    for j in range(3,8):
        more()
        stats(j)
        a("s_barrier")
    if STAMP:
        for i in range(10): a(f"s_mov_b32 s{85+i}, s{60+i}")
        a("s_mov_b32 s95, s73"); a("s_mov_b32 s96, s74")
        stamp_out(a,13,38,48,1)
    a("s_branch K1_DONE" if MERGE else "s_endpgm")

def gen_type(a,typ):
    L=vLANE
    a.vm=[]; a.lg=[]
    a(f"v_and_b32 v10, 31, v{L}"); a(f"v_lshrrev_b32 v11, 5, v{L}")
    if typ=="QK":
        a("s_cmp_lt_u32 s38, 5"); a(f"s_cselect_b32 s56, 0, {KH}"); a("s_cselect_b32 s57, 0, 5")
        a(f"s_cselect_b32 s62, 0x{fbits(QSCALE):x}, 0x3f800000")
        a("s_sub_u32 s57, s38, s57"); a("s_lshl_b32 s57, s57, 7"); a("s_lshl_b32 s58, s41, 5"); a("s_add_u32 s57, s57, s58")
        a("v_mul_u32_u24 v12, 40, v10")
        for q in range(4):
            a(f"v_lshl_add_u32 v13, v11, 2, s57")
            if q: a(f"v_add_u32 v13, {8*q}, v13")
            a("v_mul_u32_u24 v14, 3277, v13"); a("v_lshrrev_b32 v14, 16, v14")
            a("v_mul_u32_u24 v14, 81880, v14"); a("v_lshl_add_u32 v14, v13, 1, v14"); a(f"v_add_u32 v{SO+q}, v14, v12")
        a("s_mul_i32 s59, s39, 1280"); a("s_add_u32 s59, s59, s56")
        a("s_movk_i32 s60, 1280")
    elif typ=="H":
        srd(a,64,26,27,1536*2)
        a("s_sub_u32 s57, s38, 15"); a("s_lshl_b32 s57, s57, 2"); a("s_add_u32 s57, s57, s41")
        a("s_lshl_b32 s58, s57, 6")
        a("v_lshlrev_b32 v12, 1, v10")
        a("buffer_load_ushort v15, v12, s[64:67], s58 offen")
        a("v_lshrrev_b32 v12, 4, v10"); a("v_mul_u32_u24 v12, 50176, v12"); a("v_and_b32 v13, 15, v10")
        a("v_lshl_add_u32 v12, v13, 4, v12"); a(f"v_lshl_add_u32 v{SO}, v11, 8, v12")
        a("s_mul_i32 s59, s39, 100352"); a("s_lshl_b32 s58, s57, 10"); a("s_add_u32 s59, s59, s58"); a(f"s_add_u32 s59, s59, {HF}")
        a("s_mov_b32 s60, 100352")
    else:
        a("s_sub_u32 s57, s38, 10"); a("s_lshl_b32 s57, s57, 7"); a("s_lshl_b32 s58, s41, 5"); a("s_add_u32 s57, s57, s58")
        a("v_add_u32 v13, s57, v10")
        a("v_mul_u32_u24 v14, 3277, v13"); a("v_lshrrev_b32 v14, 16, v14")
        a("v_mul_u32_u24 v12, 20, v14"); a("v_sub_u32 v13, v13, v12")
        a("v_mul_u32_u24 v14, 81920, v14"); a("v_lshl_add_u32 v14, v13, 6, v14"); a(f"v_lshl_add_u32 v{SO}, v11, 4, v14")
        a(f"s_mul_i32 s59, s39, 1280"); a(f"s_add_u32 s59, s59, {VT}")
        a("s_movk_i32 s60, 1280")
    if typ=="V": a(f"v_lshlrev_b32 v{vTMP}, 4, v11"); a(f"v_add_u32 v{vTMP}, {ST}, v{vTMP}")
    else: a(f"v_lshlrev_b32 v{vTMP}, 2, v10"); a(f"v_add_u32 v{vTMP}, {ST}, v{vTMP}")
    a("s_lshl_b32 s51, s41, 7"); a(f"s_add_u32 s51, s51, {CSA}")
    a(f"v_lshlrev_b32 v{vCB}, 4, v11"); a(f"v_add_u32 v{vCB}, s51, v{vCB}")
    a(f"v_lshlrev_b32 v{vRS}, 2, v10"); a(f"v_add_u32 v{vRS}, s51, v{vRS}")
    stamp(a,1)
    a("s_waitcnt vmcnt(0)")
    if typ=="H":
        a("v_lshlrev_b32 v15, 16, v15"); a(f"ds_write_b32 v{vRS}, v15 offset:{BBA-CSA}")
    stamp(a,2)
    def mf(acc,s,xf,first):
        c = "0" if first else f"v[{acc}:{acc+15}]"
        wf=f"v[{WF+4*s}:{WF+4*s+3}]"; x=f"v[{xf}:{xf+3}]"
        if typ=="V": a(f"v_mfma_f32_32x32x16_bf16 v[{acc}:{acc+15}], {x}, {wf}, {c}")
        else: a(f"v_mfma_f32_32x32x16_bf16 v[{acc}:{acc+15}], {wf}, {x}, {c}")
    def xr2(c,k):
        s=4*c+(k&3)
        a(f"ds_read_b128 v[{XF+4*k}:{XF+4*k+3}], v{XA+(s%8)} offset:{(k>>2)*XS+(s>>3)*256}")
    for c in range(11):
        if c<10:
            a("s_barrier")
            if c==5: stamp(a,3)
            tb = vTRB2 if (c%4)<2 else vTRB
            for sp in range(4):
                for rd in range(2):
                    r=WF+16*c+4*sp+2*rd
                    a(f"ds_read_b64_tr_b16 v[{r}:{r+1}], v{tb} offset:{(c%2)*16384+sp*4096+rd*1024}")
        if c==0:
            for k in range(8): xr2(0,k)
        else:
            a(f"s_waitcnt lgkmcnt({8 if c<10 else 0})")
            for r in range(16): a(f"v_dot2c_f32_bf16 v{vS1}, v{vONE}, v{WF+16*(c-1)+r}")
            for k in range(8):
                kk=(k&1)*4+(k>>1)
                mf(ACC[kk>>2],4*(c-1)+(kk&3),XF+4*kk,(c==1 and (kk&3)==0))
                if c<10: xr2(c,kk)
        if c<10: a("s_waitcnt lgkmcnt(8)")
    a("s_waitcnt lgkmcnt(0)")
    a("s_barrier")
    a("s_nop 2")
    a(f"v_mov_b32 v{P}, v{vS1}"); a("s_nop 1"); a(f"v_permlane32_swap_b32 v{vS1}, v{P}"); a("s_nop 1")
    a(f"v_add_f32 v{vS1}, v{vS1}, v{P}")
    if typ=="V": a(f"v_mov_b32 v{vCB}, v{vS1}")
    else: a(f"ds_write_b32 v{vRS}, v{vS1}")
    a("s_waitcnt lgkmcnt(0)")
    stamp(a,4)
    def epi_fill(par,stoff):
        f=[]; acc=ACC[par]
        if typ!="V":
            def rd():
                a.lds(f"ds_read2_b32 v[{vRS}:{vMR}], v{vTMP} offset0:{stoff//4} offset1:{stoff//4+32}","st")
            f.append(rd)
            def rdq(q):
                def g():
                    a.lds(f"ds_read_b128 v[{C4}:{C4+3}], v{vCB} offset:{32*q}","cb")
                    if typ=="H": a.lds(f"ds_read_b128 v[{B4}:{B4+3}], v{vCB} offset:{BBA-CSA+32*q}","cb")
                return g
            for q in range(4):
                f.append(rdq(q)); f.append(None); f.append(None)
                def w(q=q):
                    a.wait_lg("cb")
                    if q==0 and typ=="QK": a(f"v_mul_f32 v{vRS}, s62, v{vRS}"); a(f"v_mul_f32 v{vMR}, s62, v{vMR}")
                f.append(w)
                for i in range(4):
                    k=4*q+i
                    def el(k=k,i=i):
                        if typ=="H":
                            a(f"v_fma_f32 v{T+i}, -v{vMR}, v{C4+i}, v{B4+i}")
                            a(f"v_fmac_f32 v{T+i}, v{acc+k}, v{vRS}")
                            a(f"v_max_f32 v{T+i}, 0, v{T+i}"); a(f"v_mul_f32 v{T+i}, v{T+i}, v{T+i}")
                        else:
                            a(f"v_mul_f32 v{T+i}, v{vMR}, v{C4+i}")
                            a(f"v_fma_f32 v{T+i}, v{acc+k}, v{vRS}, -v{T+i}")
                    f.append(el)
                def pk(q=q):
                    if typ=="QK":
                        b=P+2*(q&1)
                        a(f"v_cvt_pk_bf16_f32 v{b}, v{T}, v{T+1}"); a(f"v_cvt_pk_bf16_f32 v{b+1}, v{T+2}, v{T+3}")
                        a(f"buffer_store_dwordx2 v[{b}:{b+1}], v{SO+q}, s[16:19], s61 offen")
                    else:
                        b=P+2*(q&1)
                        a(f"v_cvt_pk_bf16_f32 v{b}, v{T}, v{T+1}"); a(f"v_cvt_pk_bf16_f32 v{b+1}, v{T+2}, v{T+3}")
                        if q&1:
                            a("s_nop 1"); a(f"v_permlane32_swap_b32 v{P}, v{P+2}"); a(f"v_permlane32_swap_b32 v{P+1}, v{P+3}")
                            a(f"buffer_store_dwordx4 v[{P}:{P+3}], v{SO}, s[16:19], s61 offen offset:{512*(q>>1)}")
                f.append(pk)
        else:
            for q in range(4):
                def rd(q=q):
                    a.lds(f"ds_read_b128 v[{C4}:{C4+3}], v{vTMP} offset:{stoff+32*q}","st")
                    a.lds(f"ds_read_b128 v[{B4}:{B4+3}], v{vTMP} offset:{stoff+128+32*q}","st")
                f.append(rd); f.append(None); f.append(None)
                def el(q=q):
                    a.wait_lg("st")
                    for i in range(4):
                        a(f"v_mul_f32 v{T+i}, v{B4+i}, v{vCB}")
                        a(f"v_fma_f32 v{T+i}, v{acc+4*q+i}, v{C4+i}, -v{T+i}")
                f.append(el)
                def pk(q=q):
                    b=P+2*(q&1)
                    a(f"v_cvt_pk_bf16_f32 v{b}, v{T}, v{T+1}"); a(f"v_cvt_pk_bf16_f32 v{b+1}, v{T+2}, v{T+3}")
                    if q&1:
                        a("s_nop 1"); a(f"v_permlane32_swap_b32 v{P}, v{P+2}"); a(f"v_permlane32_swap_b32 v{P+1}, v{P+3}")
                        a(f"buffer_store_dwordx4 v[{P}:{P+3}], v{SO}, s[16:19], s61 offen offset:{32*(q>>1)}")
                f.append(pk)
        return f
    a("s_mov_b32 s61, s59")
    a("s_nop 7"); a("s_nop 7")
    for fn in epi_fill(0,0):
        if fn: fn()
    a(f"v_add_u32 v{vTMP}, 256, v{vTMP}")
    a("s_add_u32 s61, s61, s60")
    a(f"s_mov_b32 s74, {2*XS}")
    for j in range(8): a(f"v_add_u32 v{XA+j}, s74, v{XA+j}")
    a(f"s_mov_b32 s75, {-2*XS & 0xffffffff}"); a(f"s_mov_b32 s76, {XS}")
    a("s_mov_b32 s69, 2"); a("s_mov_b32 s70, 0")
    a("s_waitcnt lgkmcnt(0)"); a.lg=[]
    a("s_barrier")
    stamp(a,5)
    LA=6
    def xread(s):
        a.lds(f"ds_read_b128 v[{XF+4*(s%8)}:{XF+4*(s%8)+3}], v{XA+(s%8)} offset:{((s%40)>>3)*256}", f"x{s%8}")
    for s in range(LA): xread(s)
    lab=f"K1_LOOP_{typ}"
    a.label(lab)
    if STAMP:
        a("s_memtime s[100:101]"); a("s_waitcnt lgkmcnt(0)")
        for i in range(3):
            a(f"s_cmp_eq_u32 s70, {i}"); a(f"s_cselect_b32 s{90+i}, s100, s{90+i}")
    for par in range(2):
        acc=ACC[par]
        ef=epi_fill(par^1, 0)
        sched=[[] for _ in range(40)]
        for i,fn in enumerate(ef):
            if EXP!=2: sched[2+(i*31)//len(ef)].append(fn)
        a("s_add_u32 s69, s69, 1"); a("s_cmp_ge_u32 s69, 3"); a("s_cselect_b32 s74, s75, s76"); a("s_cselect_b32 s69, 0, s69")
        for s in range(40):
            if s==36:
                a("s_waitcnt lgkmcnt(0)"); a.lg=[]
                if par==1:
                    a("s_cmp_eq_u32 s70, 2"); a(f"s_cbranch_scc1 {lab}_nb")
                a("s_barrier")
                if par==1: a.label(f"{lab}_nb")
                for j in range(8): a(f"v_add_u32 v{XA+j}, s74, v{XA+j}")
                xread(40); xread(41)
            a.wait_lg(f"x{s%8}")
            mf(acc,s,XF+4*(s%8),s==0)
            if s<34 or s>=36: xread(s+LA)
            for fn in sched[s]:
                if fn: fn()
        a("s_add_u32 s61, s61, s60"); a(f"v_add_u32 v{vTMP}, 256, v{vTMP}")
    a("s_add_u32 s70, s70, 1"); a("s_cmp_lt_u32 s70, 3"); a(f"s_cbranch_scc1 {lab}")
    stamp(a,9)
    a("s_waitcnt lgkmcnt(0)"); a.lg=[]
    a("s_nop 7"); a("s_nop 7")
    for fn in epi_fill(1,0):
        if fn: fn()
    if STAMP:
        a("s_waitcnt vmcnt(0)")
        stamp(a,10)
        stamp_out(a,11,32 if typ=="QK" else (130 if typ=="V" else 38),{"QK":0,"V":16,"H":32}[typ],1)
    a("s_branch K1_DONE" if MERGE else "s_endpgm")

def gen_help(a):
    L=vLANE
    a.label("K1_HELP")
    srd(a,16,30,31,0x2000000)
    a("s_cmp_ge_u32 s80, 4"); a("s_cbranch_scc1 K1_H1")
    srd(a,12,4,5,2048*1280)
    a("s_lshl_b32 s51, s80, 3"); a("s_add_u32 s51, s51, s32"); a("s_lshl_b32 s51, s51, 6"); a("s_lshl_b32 s52, s78, 3"); a("s_add_u32 s51, s51, s52")
    a(f"v_lshrrev_b32 v1, 3, v{L}"); a("v_add_u32 v1, s51, v1")
    a(f"v_and_b32 v2, 7, v{L}"); a("v_mul_u32_u24 v3, 1280, v1"); a("v_lshl_add_u32 v3, v2, 4, v3")
    for i in range(10): a(f"buffer_load_dwordx4 v[{8+4*i}:{11+4*i}], v3, s[12:15], 0 offen offset:{128*i}")
    a("v_mov_b32 v4, 0"); a("v_mov_b32 v5, 0"); a("v_mov_b32 v6, 0x3f803f80")
    a("v_lshrrev_b32 v7, 5, v1"); a("v_lshlrev_b32 v7, 8, v7"); a("v_and_b32 v1, 31, v1"); a("v_lshl_add_u32 v7, v1, 2, v7")
    a("s_mov_b32 s71, 0x3acccccd"); a("s_mov_b32 s72, 0x3727c5ac"); a(f"s_mov_b32 s73, {STG}")
    for i in range(10):
        a(f"s_waitcnt vmcnt({9-i})")
        for r in range(4):
            a(f"v_dot2c_f32_bf16 v4, v6, v{8+4*i+r}"); a(f"v_dot2c_f32_bf16 v5, v{8+4*i+r}, v{8+4*i+r}")
    for ctrl in ("quad_perm:[1,0,3,2]","quad_perm:[2,3,0,1]","row_half_mirror"):
        a("s_nop 2")
        a(f"v_add_f32_dpp v4, v4, v4 {ctrl} row_mask:0xf bank_mask:0xf")
        a(f"v_add_f32_dpp v5, v5, v5 {ctrl} row_mask:0xf bank_mask:0xf")
    a("v_mul_f32 v4, s71, v4"); a("v_mul_f32 v5, s71, v5"); a("v_fma_f32 v5, -v4, v4, v5"); a("v_add_f32 v5, s72, v5")
    a("v_rsq_f32 v5, v5"); a("s_nop 0"); a("v_mul_f32 v4, v4, v5")
    a("v_cmp_eq_u32 vcc, 0, v2"); a("s_and_saveexec_b64 s[74:75], vcc")
    a("buffer_store_dword v5, v7, s[16:19], s73 offen sc1")
    a("buffer_store_dword v4, v7, s[16:19], s73 offen offset:128 sc1")
    a("s_mov_b64 exec, s[74:75]")
    a("s_waitcnt vmcnt(0)")
    a("s_barrier")
    a("s_cmp_lg_u32 s78, 0"); a("s_cbranch_scc1 K1_H0")
    a("v_mov_b32 v4, 1"); a("v_mov_b32 v5, 0")
    a("s_mov_b64 exec, 1")
    a("global_atomic_add v5, v4, s[82:83] offset:252 sc1")
    a("s_mov_b64 exec, -1")
    a.label("K1_H0")
    a("s_cmp_lg_u32 s2, 0"); a("s_cbranch_scc1 K1_H1")
    a(f"v_lshlrev_b32 v1, 8, v{L}"); a("v_mov_b32 v4, 0"); a("v_mov_b32 v5, 0"); a("v_mov_b32 v6, 0"); a("v_mov_b32 v7, 0"); a("s_mov_b32 s51, 0x1C10000")
    a("buffer_store_dwordx4 v[4:7], v1, s[16:19], s51 offen")
    a.label("K1_H1")
    a("s_cmp_ge_u32 s32, 6"); a("s_cbranch_scc1 K1_H2")
    a("s_lshl_b32 s40, s32, 2"); a("s_add_u32 s40, s40, s33"); a("s_sub_u32 s40, s40, 28"); a("s_branch K1_H3")
    a.label("K1_H2")
    a("s_sub_u32 s40, s32, 6"); a("s_lshl_b32 s40, s40, 3"); a("s_add_u32 s40, s40, s33")
    a.label("K1_H3")
    a("s_lshl_b32 s40, s40, 3"); a("s_add_u32 s40, s40, s78")
    a(f"v_lshrrev_b32 v1, 4, v{L}"); a("v_mul_u32_u24 v1, 10240, v1"); a(f"v_and_b32 v2, 15, v{L}"); a("v_lshl_add_u32 v1, v2, 1, v1")
    a("v_add_u32 v2, 5120, v1"); a(f"v_lshlrev_b32 v3, 4, v{L}")
    for (lo,hi,nk,dst,n) in ((28,29,1536,W2F,6),(20,21,640,WOF,3)):
        srd(a,8,lo,hi,nk*1280)
        gs=list(range(n))
        for t,it in enumerate(gs):
            a(f"s_add_u32 s{44+t}, s40, {320*it}")
            a(f"s_mul_i32 s51, s{44+t}, 1639"); a("s_lshr_b32 s51, s51, 16")
            a("s_mul_i32 s52, s51, 40"); a(f"s_sub_u32 s52, s{44+t}, s52")
            a("s_mul_i32 s51, s51, 40960"); a("s_lshl_b32 s52, s52, 5"); a("s_add_u32 s51, s51, s52")
            for j in range(8):
                a(f"buffer_load_ushort v{40+8*t+j}, v{1 if j<4 else 2}, s[8:11], s51 offen offset:{(j&3)*1280}")
        a("s_waitcnt vmcnt(0)")
        for t,it in enumerate(gs):
            for j in range(4): a(f"v_lshl_or_b32 v{8+4*t+j}, v{40+8*t+2*j+1}, 16, v{40+8*t+2*j}")
            a(f"s_lshl_b32 s51, s{44+t}, 10"); a(f"s_add_u32 s51, s51, {dst}")
            a(f"buffer_store_dwordx4 v[{8+4*t}:{8+4*t+3}], v3, s[16:19], s51 offen")
        a("s_nop 1")
```

```python
import sys,os
from asmlib import *
import k1b as k1,k23
OUT=os.environ.get('OUT','recurrent_scan__sliding_block__dense_activation_squared_relu__prompt.s')
hdr=open('recurrent_scan__sliding_block__dense_activation_squared_relu__prompt.s.ref').read().split("; Override")[0]
out=hdr
out+="; @launch kernel=k1_kernel grid=(256,1,1) block=(512,1,1) lds=163840\n"
if not k1.MERGE: out+="; @launch kernel=k23_kernel grid=(256,1,1) block=(512,1,1) lds=%d\n"%(163840 if k23.EARLY else 102656)
out+='.amdgcn_target "amdgcn-amd-amdhsa--gfx950"\n.text\n'
for name,fn in (("k1_kernel",k1.gen_k1),("k23_kernel",k23.gen_k23)):
    a=Asm(); fn(a)
    if k1.MERGE and name=="k23_kernel":
        out+=".p2align 8\n"+a.text().replace("k23_kernel","K23_START")
    else:
        out+=f".globl {name}\n.p2align 8\n.type {name},@function\n"+a.text()
out+='.section .rodata,"a"\n.p2align 6\n'
out+=kdesc("k1_kernel",256,256)
if not k1.MERGE: out+=".p2align 6\n"+kdesc("k23_kernel",256,256)
open(OUT,'w').write(out)
```

```python
from asmlib import *
from k1 import QH,KH,VT,VTP,HF,W2F,WOF,OF,QSCALE,fbits
XS=40960
WSL=[122880,139264,81920,98304]
MISC=155648; ST=MISC; CSA=MISC+2048; BBA=MISC+2560; STG=0x1C00000
WF=0; ACC=[160,176]; XF=192; XA=224; SO=232; T=236; P=240; C4=244; B4=248
vRS=252; vMR=253; vTMP=254; vCB=255
vTRB=236; vTRB2=237; vS1=238; vONE=239; vLANE=243
XD=200; vWD=210; vSA=211; vSA2=212; vSTA=213; lS1=214; lS2=215; lONE=216; SRB=160

import os
EXP=int(os.environ.get('EXP','0'))
XS_V=int(os.environ.get('XS_V','2'))
XSCHED=[{2:7,3:9},{2:6,3:8},{2:5,3:7},{2:5,3:8}][XS_V]
XLASTW=max(XSCHED)
ROT=int(os.environ.get('ROT','1'))
WPRE=int(os.environ.get('WPRE','4'))
PC0=int(os.environ.get('PC0','4'))
MERGE=int(os.environ.get('MERGE','0'))
WT=' sc1' if MERGE>=2 else ''
W0=int(os.environ.get('W0','4'))
PFX_AT=int(os.environ.get('PFX_AT','2'))
PRIO=int(os.environ.get('PRIO','2'))
def gen_k1(a):
    a.label("k1_kernel")
    a("s_cmp_ge_u32 s2, 256"); a("s_cbranch_scc1 K1_END")
    stamp(a,0)
    a("s_load_dwordx4 s[4:7], s[0:1], 0")
    a("s_load_dwordx2 s[20:21], s[0:1], 16")
    a("s_load_dwordx4 s[24:27], s[0:1], 32")
    a("s_load_dwordx2 s[28:29], s[0:1], 48")
    a("s_load_dwordx2 s[30:31], s[0:1], 80")
    a("s_and_b32 s32, s2, 7")
    a("s_lshr_b32 s80, s2, 3"); a("s_add_u32 s33, s80, 28"); a("s_and_b32 s33, s33, 31")
    a("s_load_dwordx2 s[82:83], s[0:1], 72")
    a("s_lshr_b32 s34, s32, 1")
    a("s_and_b32 s35, s32, 1")
    a("s_lshr_b32 s36, s33, 2")
    a("s_and_b32 s37, s33, 3")
    a("s_mul_i32 s38, s34, 7"); a("s_add_u32 s38, s38, s36")
    a("s_lshl_b32 s39, s35, 5"); a("s_lshl_b32 s40, s37, 3"); a("s_add_u32 s39, s39, s40")
    L=vLANE
    a(f"v_and_b32 v{L}, 63, v0")
    a("v_lshrrev_b32 v1, 6, v0"); a("s_nop 0"); a("v_readfirstlane_b32 s78, v1")
    a("s_and_b32 s41, s78, 3")
    a("s_mul_i32 s49, s39, 40960")
    a("s_mul_i32 s50, s41, 10240")
    a("s_waitcnt lgkmcnt(0)")
    a("s_cmp_ge_u32 s36, 7"); a("s_cbranch_scc1 K1_HELP")
    a("s_cmp_ge_u32 s38, 27"); a("s_cbranch_scc1 K1_HELP")
    srd(a,12,4,5,2048*1280)
    srd(a,16,30,31,0x2000000)
    def xd_calc():
        for i in range(10):
            if i: a(f"v_add_u32 v1, {64*i}, v{L}")
            src = "v1" if i else f"v{L}"
            a(f"v_mul_u32_u24 v2, 52429, {src}"); a("v_lshrrev_b32 v2, 22, v2")
            a("v_mul_u32_u24 v3, 80, v2"); a(f"v_sub_u32 v3, {src}, v3")
            a("v_add_u32 v2, s79, v2")
            a("v_and_b32 v4, 15, v2"); a("v_xor_b32 v3, v3, v4")
            a("v_add_u32 v3, s77, v3"); a("v_subrev_u32 v4, 80, v3"); a("v_min_u32 v3, v3, v4")
            a("v_mul_u32_u24 v2, 1280, v2"); a(f"v_lshl_add_u32 v{XD+i}, v3, 4, v2")
    def dma_x(sl_sgpr, soff, tag):
        for i in range(10):
            a(f"s_add_u32 m0, s{sl_sgpr}, {i*1024}"); a("s_nop 0")
            a.vmem(f"buffer_load_dwordx4 v{XD+i}, s[12:15], s{soff} offen lds", tag)
    a("s_lshl_b32 s79, s41, 3")
    a("s_mul_i32 s81, s37, 3"); a("s_add_u32 s81, s81, s36"); a("s_cmp_ge_u32 s81, 10"); a("s_cbranch_scc0 K1_O0"); a("s_sub_u32 s81, s81, 10"); a.label("K1_O0")
    if not ROT: a("s_mov_b32 s81, 0")
    a("s_lshl_b32 s77, s81, 3")
    a("s_cmp_ge_u32 s78, 4"); a("s_cbranch_scc1 K1_LOAD")
    a(f"s_setprio {PRIO}")
    a(f"v_bfe_u32 v1, v{L}, 2, 2")
    a(f"v_lshrrev_b32 v2, 5, v{L}")
    a("v_lshl_add_u32 v2, v2, 3, v1"); a("v_lshlrev_b32 v2, 8, v2")
    a("v_xor_b32 v1, s41, v1"); a("v_lshl_add_u32 v2, v1, 6, v2")
    a(f"v_bfe_u32 v1, v{L}, 4, 1"); a("v_lshl_add_u32 v2, v1, 5, v2")
    a(f"v_and_b32 v1, 3, v{L}"); a("v_lshl_add_u32 v2, v1, 3, v2")
    a(f"v_add_u32 v{vTRB}, {WSL[2]}, v2"); a(f"v_add_u32 v{vTRB2}, {WSL[0]}, v2")
    a(f"v_and_b32 v1, 31, v{L}"); a(f"v_lshrrev_b32 v2, 5, v{L}"); a("v_and_b32 v3, 15, v1"); a("v_mul_u32_u24 v4, 1280, v1")
    for j in range(8):
        a(f"v_add_u32 v5, {2*j}, v2"); a("v_xor_b32 v5, v5, v3"); a(f"v_lshl_add_u32 v{XA+j}, v5, 4, v4")
    a(f"v_mov_b32 v{vONE}, 0x3f803f80")
    a(f"v_mov_b32 v{vS1}, 0")
    a("s_cmp_lt_u32 s38, 10"); a("s_cbranch_scc1 K1_QK")
    a("s_cmp_lt_u32 s38, 15"); a("s_cbranch_scc1 K1_V")
    for typ in ("H","QK","V"):
        a.label(f"K1_{typ}")
        gen_type(a,typ)
    gen_loader(a,xd_calc,dma_x)
    gen_help(a)
    if MERGE:
        a.label("K1_DONE")
        a("s_setprio 0"); a("s_mov_b64 exec, -1")
        a("s_waitcnt vmcnt(0) lgkmcnt(0)")
        a("s_barrier")
        a("s_cmp_lg_u32 s78, 0"); a("s_cbranch_scc1 K1_MGW")
        a("s_load_dwordx2 s[82:83], s[0:1], 72")
        if MERGE==1:
            a("buffer_wbl2 sc1")
        a("v_mov_b32 v1, 0"); a("v_mov_b32 v2, 1")
        a("s_waitcnt vmcnt(0) lgkmcnt(0)")
        a("s_mov_b64 exec, 1")
        a("global_atomic_add v1, v2, s[82:83] offset:248 sc1")
        a.label("K1_MGP")
        a("global_load_dword v3, v1, s[82:83] offset:248 sc1")
        a("s_waitcnt vmcnt(0)")
        a("v_readfirstlane_b32 s4, v3")
        a("s_cmp_ge_u32 s4, 256"); a("s_cbranch_scc1 K1_MGD")
        a("s_sleep 1"); a("s_branch K1_MGP")
        a.label("K1_MGD")
        a("s_mov_b64 exec, -1")
        if MERGE!=3: a("buffer_inv sc1")
        a("s_waitcnt vmcnt(0)")
        a.label("K1_MGW")
        a("v_mbcnt_lo_u32_b32 v0, -1, 0"); a("v_mbcnt_hi_u32_b32 v0, -1, v0")
        a("s_lshl_b32 s4, s78, 6"); a("v_add_u32 v0, s4, v0")
        a("s_barrier")
        a("s_branch k23_kernel")
    a.label("K1_END")
    a("s_endpgm")

def gen_loader(a,xd_calc,dma_x):
    L=vLANE
    a.label("K1_LOAD"); a.vm=[]; a.lg=[]
    a("s_cmp_lt_u32 s38, 15"); a("s_cbranch_scc0 K1_W1")
    srd(a,8,6,7,640*3840); a("s_mov_b32 s42, 3840"); a("s_lshl_b32 s43, s38, 8"); a("s_branch K1_WD")
    a.label("K1_W1")
    srd(a,8,24,25,640*3072); a("s_mov_b32 s42, 3072"); a("s_sub_u32 s43, s38, 15"); a("s_lshl_b32 s43, s43, 8")
    a.label("K1_WD")
    a(f"v_lshrrev_b32 v1, 4, v{L}")
    a(f"v_bfe_u32 v2, v{L}, 2, 2")
    a("v_xor_b32 v2, v2, v1")
    a(f"v_and_b32 v3, 3, v{L}")
    a("v_lshl_or_b32 v2, v2, 2, v3")
    a("v_lshlrev_b32 v2, 4, v2")
    a("v_mul_lo_u32 v1, v1, s42")
    a(f"v_add_u32 v{vWD}, v1, v2")
    a("s_lshl_b32 s44, s41, 4"); a("s_mul_i32 s44, s44, s42"); a("s_add_u32 s44, s44, s43")
    a("s_lshl_b32 s45, s41, 12")
    a("s_lshl_b32 s46, s42, 2")
    a("s_lshl_b32 s47, s42, 6")
    if STAMP: a("s_memtime s[100:101]"); a("s_waitcnt lgkmcnt(0)"); a(f"s_mov_b32 s70, s100")
    a("s_mov_b32 s56, s81")
    def ld_w(c):
        a("s_mul_i32 s57, s47, s56"); a("s_add_u32 s57, s57, s44")
        for i in range(4):
            if i: a(f"s_add_u32 s57, s57, s46")
            r=16*c+4*i
            a.vmem(f"buffer_load_dwordx4 v[{r}:{r+3}], v{vWD}, s[8:11], s57 offen", f"W{c}")
        a("s_add_u32 s56, s56, 1"); a("s_cmp_eq_u32 s56, 10"); a("s_cselect_b32 s56, 0, s56")
    a("s_mov_b32 s58, s81")
    for i in range(10):
        a(f"s_lshl_b32 s{86+i}, s58, 7")
        a("s_add_u32 s58, s58, 1"); a("s_cmp_eq_u32 s58, 10"); a("s_cselect_b32 s58, 0, s58")
    vXG=200; vWA=201; vWC=202; vXW=203
    a(f"v_lshrrev_b32 v{SRB+1}, 3, v{L}"); a(f"v_add_u32 v{SRB+1}, s79, v{SRB+1}")
    a(f"v_and_b32 v{SRB+2}, 7, v{L}"); a(f"v_and_b32 v{SRB+3}, 15, v{SRB+1}"); a(f"v_mul_u32_u24 v{SRB+4}, 1280, v{SRB+1}")
    a(f"v_lshl_add_u32 v{vXG}, v{SRB+2}, 4, v{SRB+4}")
    a(f"v_xor_b32 v{SRB+5}, v{SRB+2}, v{SRB+3}"); a(f"v_lshl_add_u32 v{vXW}, v{SRB+5}, 4, v{SRB+4}")
    a(f"v_add_u32 v{SRB+5}, 8, v{SRB+2}"); a(f"v_xor_b32 v{SRB+5}, v{SRB+5}, v{SRB+3}"); a(f"v_lshl_add_u32 v{vXW+1}, v{SRB+5}, 4, v{SRB+4}")
    for sl in (1,2):
        for o in range(2): a(f"v_add_u32 v{vXW+2*sl+o}, {sl*XS}, v{vXW+o}")
    a(f"v_lshlrev_b32 v{vSTA}, 2, v{SRB+1}"); a(f"v_add_u32 v{vSTA}, {ST}, v{vSTA}")
    a(f"v_lshlrev_b32 v{vWA}, 4, v{L}"); a(f"v_add_u32 v{vWA}, s45, v{vWA}"); a(f"v_add_u32 v{vWC}, {WSL[2]}, v{vWA}"); a(f"v_add_u32 v{vWA}, {WSL[0]}, v{vWA}")
    a(f"v_mov_b32 v{lONE}, 0x3f803f80")
    def ld_x01(c):
        for j in range(2):
            r=SRB+8*(c%5)+4*j
            a(f"s_add_u32 s57, s{86+c}, s{49 if j==0 else 54}")
            a.vmem(f"buffer_load_dwordx4 v[{r}:{r+3}], v{vXG}, s[12:15], s57 offen", f"W{c}")
    a("s_add_u32 s54, s49, 40960")
    for c in range(W0): ld_w(c); ld_x01(c)
    if STAMP: a("s_memtime s[100:101]"); a("s_waitcnt lgkmcnt(0)"); a(f"s_mov_b32 s71, s100")
    if STAMP: a("s_mov_b32 s73, s70"); a("s_mov_b32 s74, s71")
    a("s_mov_b32 s71, 0x3acccccd"); a("s_mov_b32 s72, 0x3727c5ac")
    def ld_x(j):
        b=40*((j-2)%4)
        a(f"s_add_u32 s55, s49, {40960*j}")
        for i in range(10):
            a(f"s_add_u32 s57, s55, s{86+i}")
            a.vmem(f"buffer_load_dwordx4 v[{b+4*i}:{b+4*i+3}], v{vXG}, s[12:15], s57 offen", f"X{j}")
    A0=224; A1=228; A2=232; U=236
    def acc4(A,r,first):
        for k in range(4):
            u=U+2*(k&1)
            a(f"v_lshlrev_b32 v{u}, 16, v{r+k}"); a(f"v_and_b32 v{u+1}, 0xffff0000, v{r+k}")
            if first and k==0:
                a(f"v_pk_add_f32 v[{A}:{A+1}], v[{u}:{u+1}], 0 op_sel_hi:[1,0]"); a(f"v_pk_mul_f32 v[{A+2}:{A+3}], v[{u}:{u+1}], v[{u}:{u+1}]")
            else:
                a(f"v_pk_add_f32 v[{A}:{A+1}], v[{A}:{A+1}], v[{u}:{u+1}]"); a(f"v_pk_fma_f32 v[{A+2}:{A+3}], v[{u}:{u+1}], v[{u}:{u+1}], v[{A+2}:{A+3}]")
    def fin(j,A):
        a(f"v_add_f32 v{lS1}, v{A}, v{A+1}"); a(f"v_add_f32 v{lS2}, v{A+2}, v{A+3}")
        for ctrl in ("quad_perm:[1,0,3,2]","quad_perm:[2,3,0,1]","row_half_mirror"):
            a("s_nop 1")
            a(f"v_add_f32_dpp v{lS1}, v{lS1}, v{lS1} {ctrl} row_mask:0xf bank_mask:0xf")
            a(f"v_add_f32_dpp v{lS2}, v{lS2}, v{lS2} {ctrl} row_mask:0xf bank_mask:0xf")
        a(f"v_mul_f32 v{lS1}, s71, v{lS1}")
        a(f"v_mul_f32 v{lS2}, s71, v{lS2}")
        a(f"v_fma_f32 v{lS2}, -v{lS1}, v{lS1}, v{lS2}")
        a(f"v_add_f32 v{lS2}, s72, v{lS2}")
        a(f"v_rsq_f32 v{lS2}, v{lS2}")
        a("s_nop 0")
        a(f"v_mul_f32 v{lS1}, v{lS1}, v{lS2}")
        a(f"ds_write_b32 v{vSTA}, v{lS2} offset:{j*256}")
        a(f"ds_write_b32 v{vSTA}, v{lS1} offset:{j*256+128}")
        a("s_waitcnt lgkmcnt(0)")
    def stats(j):
        sl=j%3
        b=40*((j-2)%4)
        a.wait_vm(f"X{j}")
        for i in range(10):
            a(f"ds_write_b128 v{vXW+2*sl+(i&1)}, v[{b+4*i}:{b+4*i+3}] offset:{(i>>1)*256}")
        a("s_waitcnt lgkmcnt(0)")
    def get_stats():
        a("s_cmp_ge_u32 s59, 32"); a("s_cbranch_scc1 K1_GSD")
        sv=list(a.vm)
        a(f"v_mov_b32 v{SRB}, 0")
        a.label("K1_POLL")
        a(f"global_load_dword v{SRB+1}, v{SRB}, s[82:83] offset:252 sc1")
        a("s_waitcnt vmcnt(0)"); a.vm=[]
        a(f"v_readfirstlane_b32 s51, v{SRB+1}")
        a("s_cmp_ge_u32 s51, 32"); a("s_cbranch_scc1 K1_POLLD")
        a("s_sleep 2"); a("s_branch K1_POLL")
        a.label("K1_POLLD")
        a("s_lshl_b32 s51, s39, 8"); a("s_lshl_b32 s52, s41, 9"); a("s_add_u32 s51, s51, s52"); a(f"s_add_u32 s51, s51, {STG}")
        a(f"v_lshlrev_b32 v{SRB}, 4, v{L}")
        a("s_mov_b32 exec_hi, 0")
        a(f"buffer_load_dwordx4 v[{SRB+4}:{SRB+7}], v{SRB}, s[16:19], s51 offen sc1")
        a(f"s_add_u32 s52, s52, {ST}"); a(f"v_add_u32 v{SRB}, s52, v{SRB}")
        a("s_waitcnt vmcnt(0)")
        a(f"ds_write_b128 v{SRB}, v[{SRB+4}:{SRB+7}]")
        a("s_mov_b64 exec, -1")
        a("s_waitcnt lgkmcnt(0)")
        a.label("K1_GSD"); a.vm=sv
    for c in range(10):
        a.wait_vm(f"W{c}")
        if STAMP: a("s_memtime s[100:101]"); a("s_waitcnt lgkmcnt(0)"); a(f"s_mov_b32 s{60+c}, s100")
        for i in range(4):
            r=16*c+4*i
            a(f"ds_write_b128 v{vWA if (c%4)<2 else vWC}, v[{r}:{r+3}] offset:{(c%2)*16384+i*1024}")
        for j in range(2):
            r=SRB+8*(c%5)+4*j
            a(f"ds_write_b128 v{vXW+2*j+(c&1)}, v[{r}:{r+3}] offset:{(c>>1)*256}")
        a("s_waitcnt lgkmcnt(0)")
        a("s_barrier")
        if c==PC0:
            a(f"v_mov_b32 v217, 0")
            a.vmem(f"global_load_dword v218, v217, s[82:83] offset:252 sc1","P")
        if c==PC0+3:
            a.wait_vm("P"); a("v_readfirstlane_b32 s59, v218")
            a("s_lshl_b32 s51, s39, 8"); a("s_lshl_b32 s52, s41, 9"); a("s_add_u32 s51, s51, s52"); a(f"s_add_u32 s51, s51, {STG}")
            a(f"v_lshlrev_b32 v217, 4, v{L}")
            a("s_mov_b32 exec_hi, 0")
            a.vmem(f"buffer_load_dwordx4 v[220:223], v217, s[16:19], s51 offen sc1","S1")
            a("s_mov_b64 exec, -1")
        if c==9:
            a.wait_vm("S1")
            a("s_cmp_ge_u32 s59, 32"); a("s_cbranch_scc0 K1_NS")
            a(f"s_add_u32 s52, s52, {ST}"); a(f"v_add_u32 v217, s52, v217")
            a("s_mov_b32 exec_hi, 0")
            a(f"ds_write_b128 v217, v[220:223]")
            a("s_mov_b64 exec, -1")
            a("s_waitcnt lgkmcnt(0)")
            a.label("K1_NS")
        if c==0:
            for cc in range(W0,WPRE): ld_w(cc); ld_x01(cc)
        if c+WPRE<10: ld_w(c+WPRE); ld_x01(c+WPRE)
        for j,cc in XSCHED.items():
            if cc==c:
                ld_x(j)
        if c==9: get_stats()
    nxt=[max(XSCHED)+1]
    def more():
        if nxt[0]<8: ld_x(nxt[0]); nxt[0]+=1
    a("s_barrier")
    stats(2)
    a("s_barrier")
    for j in range(3,8):
        more()
        stats(j)
        a("s_barrier")
    if STAMP:
        for i in range(10): a(f"s_mov_b32 s{85+i}, s{60+i}")
        a("s_mov_b32 s95, s73"); a("s_mov_b32 s96, s74")
        stamp_out(a,13,38,48,1)
    a("s_branch K1_DONE" if MERGE else "s_endpgm")

def gen_type(a,typ):
    L=vLANE
    a.vm=[]; a.lg=[]
    a(f"v_and_b32 v10, 31, v{L}"); a(f"v_lshrrev_b32 v11, 5, v{L}")
    if typ=="QK":
        a("s_cmp_lt_u32 s38, 5"); a(f"s_cselect_b32 s56, 0, {KH}"); a("s_cselect_b32 s57, 0, 5")
        a(f"s_cselect_b32 s62, 0x{fbits(QSCALE):x}, 0x3f800000")
        a("s_sub_u32 s57, s38, s57"); a("s_lshl_b32 s57, s57, 7"); a("s_lshl_b32 s58, s41, 5"); a("s_add_u32 s57, s57, s58")
        a("v_mul_u32_u24 v12, 40, v10")
        for q in range(4):
            a(f"v_lshl_add_u32 v13, v11, 2, s57")
            if q: a(f"v_add_u32 v13, {8*q}, v13")
            a("v_mul_u32_u24 v14, 3277, v13"); a("v_lshrrev_b32 v14, 16, v14")
            a("v_mul_u32_u24 v14, 81880, v14"); a("v_lshl_add_u32 v14, v13, 1, v14"); a(f"v_add_u32 v{SO+q}, v14, v12")
        a("s_mul_i32 s59, s39, 1280"); a("s_add_u32 s59, s59, s56")
        a("s_movk_i32 s60, 1280")
    elif typ=="H":
        srd(a,64,26,27,1536*2)
        a("s_sub_u32 s57, s38, 15"); a("s_lshl_b32 s57, s57, 2"); a("s_add_u32 s57, s57, s41")
        a("s_lshl_b32 s58, s57, 6")
        a("v_lshlrev_b32 v12, 1, v10")
        a("buffer_load_ushort v15, v12, s[64:67], s58 offen")
        a("v_lshrrev_b32 v12, 4, v10"); a("v_mul_u32_u24 v12, 50176, v12"); a("v_and_b32 v13, 15, v10")
        a("v_lshl_add_u32 v12, v13, 4, v12"); a(f"v_lshl_add_u32 v{SO}, v11, 8, v12")
        a("s_mul_i32 s59, s39, 100352"); a("s_lshl_b32 s58, s57, 10"); a("s_add_u32 s59, s59, s58"); a(f"s_add_u32 s59, s59, {HF}")
        a("s_mov_b32 s60, 100352")
    else:
        a("s_sub_u32 s57, s38, 10"); a("s_lshl_b32 s57, s57, 7"); a("s_lshl_b32 s58, s41, 5"); a("s_add_u32 s57, s57, s58")
        a("v_add_u32 v13, s57, v10")
        a("v_mul_u32_u24 v14, 3277, v13"); a("v_lshrrev_b32 v14, 16, v14")
        a("v_mul_u32_u24 v12, 20, v14"); a("v_sub_u32 v13, v13, v12")
        a("v_mul_u32_u24 v14, 81920, v14"); a("v_lshl_add_u32 v14, v13, 6, v14"); a(f"v_lshl_add_u32 v{SO}, v11, 4, v14")
        a(f"s_mul_i32 s59, s39, 1280"); a(f"s_add_u32 s59, s59, {VT}")
        a("s_movk_i32 s60, 1280")
    if typ=="V": a(f"v_lshlrev_b32 v{vTMP}, 4, v11"); a(f"v_add_u32 v{vTMP}, {ST}, v{vTMP}")
    else: a(f"v_lshlrev_b32 v{vTMP}, 2, v10"); a(f"v_add_u32 v{vTMP}, {ST}, v{vTMP}")
    a("s_lshl_b32 s51, s41, 7"); a(f"s_add_u32 s51, s51, {CSA}")
    a(f"v_lshlrev_b32 v{vCB}, 4, v11"); a(f"v_add_u32 v{vCB}, s51, v{vCB}")
    a(f"v_lshlrev_b32 v{vRS}, 2, v10"); a(f"v_add_u32 v{vRS}, s51, v{vRS}")
    stamp(a,1)
    a("s_waitcnt vmcnt(0)")
    if typ=="H":
        a("v_lshlrev_b32 v15, 16, v15"); a(f"ds_write_b32 v{vRS}, v15 offset:{BBA-CSA}")
    stamp(a,2)
    def mf(acc,s,xf,first):
        c = "0" if first else f"v[{acc}:{acc+15}]"
        wf=f"v[{WF+4*s}:{WF+4*s+3}]"; x=f"v[{xf}:{xf+3}]"
        if typ=="V": a(f"v_mfma_f32_32x32x16_bf16 v[{acc}:{acc+15}], {x}, {wf}, {c}")
        else: a(f"v_mfma_f32_32x32x16_bf16 v[{acc}:{acc+15}], {wf}, {x}, {c}")
    def xr2(c,k):
        s=4*c+(k&3)
        a(f"ds_read_b128 v[{XF+4*k}:{XF+4*k+3}], v{XA+(s%8)} offset:{(k>>2)*XS+(s>>3)*256}")
    for c in range(11):
        if c<10:
            a("s_barrier")
            if c==5: stamp(a,3)
            tb = vTRB2 if (c%4)<2 else vTRB
            for sp in range(4):
                for rd in range(2):
                    r=WF+16*c+4*sp+2*rd
                    a(f"ds_read_b64_tr_b16 v[{r}:{r+1}], v{tb} offset:{(c%2)*16384+sp*4096+rd*1024}")
        if c==0:
            for k in range(8): xr2(0,k)
        else:
            a(f"s_waitcnt lgkmcnt({8 if c<10 else 0})")
            for r in range(16): a(f"v_dot2c_f32_bf16 v{vS1}, v{vONE}, v{WF+16*(c-1)+r}")
            for k in range(8):
                kk=(k&1)*4+(k>>1)
                mf(ACC[kk>>2],4*(c-1)+(kk&3),XF+4*kk,(c==1 and (kk&3)==0))
                if c<10: xr2(c,kk)
        if c<10: a("s_waitcnt lgkmcnt(8)")
    a("s_waitcnt lgkmcnt(0)")
    a("s_barrier")
    a("s_nop 2")
    a(f"v_mov_b32 v{P}, v{vS1}"); a("s_nop 1"); a(f"v_permlane32_swap_b32 v{vS1}, v{P}"); a("s_nop 1")
    a(f"v_add_f32 v{vS1}, v{vS1}, v{P}")
    if typ=="V": a(f"v_mov_b32 v{vCB}, v{vS1}")
    else: a(f"ds_write_b32 v{vRS}, v{vS1}")
    a("s_waitcnt lgkmcnt(0)")
    stamp(a,4)
    def epi_fill(par,stoff):
        f=[]; acc=ACC[par]
        if typ!="V":
            def rd():
                a.lds(f"ds_read2_b32 v[{vRS}:{vMR}], v{vTMP} offset0:{stoff//4} offset1:{stoff//4+32}","st")
            f.append(rd)
            def rdq(q):
                def g():
                    a.lds(f"ds_read_b128 v[{C4}:{C4+3}], v{vCB} offset:{32*q}","cb")
                    if typ=="H": a.lds(f"ds_read_b128 v[{B4}:{B4+3}], v{vCB} offset:{BBA-CSA+32*q}","cb")
                return g
            for q in range(4):
                f.append(rdq(q)); f.append(None); f.append(None)
                def w(q=q):
                    a.wait_lg("cb")
                    if q==0 and typ=="QK": a(f"v_mul_f32 v{vRS}, s62, v{vRS}"); a(f"v_mul_f32 v{vMR}, s62, v{vMR}")
                f.append(w)
                for i in range(4):
                    k=4*q+i
                    def el(k=k,i=i):
                        if typ=="H":
                            a(f"v_fma_f32 v{T+i}, -v{vMR}, v{C4+i}, v{B4+i}")
                            a(f"v_fmac_f32 v{T+i}, v{acc+k}, v{vRS}")
                            a(f"v_max_f32 v{T+i}, 0, v{T+i}"); a(f"v_mul_f32 v{T+i}, v{T+i}, v{T+i}")
                        else:
                            a(f"v_mul_f32 v{T+i}, v{vMR}, v{C4+i}")
                            a(f"v_fma_f32 v{T+i}, v{acc+k}, v{vRS}, -v{T+i}")
                    f.append(el)
                def pk(q=q):
                    if typ=="QK":
                        b=P+2*(q&1)
                        a(f"v_cvt_pk_bf16_f32 v{b}, v{T}, v{T+1}"); a(f"v_cvt_pk_bf16_f32 v{b+1}, v{T+2}, v{T+3}")
                        a(f"buffer_store_dwordx2 v[{b}:{b+1}], v{SO+q}, s[16:19], s61 offen{WT}")
                    else:
                        b=P+2*(q&1)
                        a(f"v_cvt_pk_bf16_f32 v{b}, v{T}, v{T+1}"); a(f"v_cvt_pk_bf16_f32 v{b+1}, v{T+2}, v{T+3}")
                        if q&1:
                            a("s_nop 1"); a(f"v_permlane32_swap_b32 v{P}, v{P+2}"); a(f"v_permlane32_swap_b32 v{P+1}, v{P+3}")
                            a(f"buffer_store_dwordx4 v[{P}:{P+3}], v{SO}, s[16:19], s61 offen offset:{512*(q>>1)}{WT}")
                f.append(pk)
        else:
            for q in range(4):
                def rd(q=q):
                    a.lds(f"ds_read_b128 v[{C4}:{C4+3}], v{vTMP} offset:{stoff+32*q}","st")
                    a.lds(f"ds_read_b128 v[{B4}:{B4+3}], v{vTMP} offset:{stoff+128+32*q}","st")
                f.append(rd); f.append(None); f.append(None)
                def el(q=q):
                    a.wait_lg("st")
                    for i in range(4):
                        a(f"v_mul_f32 v{T+i}, v{B4+i}, v{vCB}")
                        a(f"v_fma_f32 v{T+i}, v{acc+4*q+i}, v{C4+i}, -v{T+i}")
                f.append(el)
                def pk(q=q):
                    b=P+2*(q&1)
                    a(f"v_cvt_pk_bf16_f32 v{b}, v{T}, v{T+1}"); a(f"v_cvt_pk_bf16_f32 v{b+1}, v{T+2}, v{T+3}")
                    if q&1:
                        a("s_nop 1"); a(f"v_permlane32_swap_b32 v{P}, v{P+2}"); a(f"v_permlane32_swap_b32 v{P+1}, v{P+3}")
                        a(f"buffer_store_dwordx4 v[{P}:{P+3}], v{SO}, s[16:19], s61 offen offset:{32*(q>>1)}{WT}")
                f.append(pk)
        return f
    a("s_mov_b32 s61, s59")
    a("s_nop 7"); a("s_nop 7")
    for fn in epi_fill(0,0):
        if fn: fn()
    a(f"v_add_u32 v{vTMP}, 256, v{vTMP}")
    a("s_add_u32 s61, s61, s60")
    a(f"s_mov_b32 s74, {2*XS}")
    for j in range(8): a(f"v_add_u32 v{XA+j}, s74, v{XA+j}")
    a(f"s_mov_b32 s75, {-2*XS & 0xffffffff}"); a(f"s_mov_b32 s76, {XS}")
    a("s_mov_b32 s69, 2"); a("s_mov_b32 s70, 0")
    a("s_waitcnt lgkmcnt(0)"); a.lg=[]
    a("s_barrier")
    stamp(a,5)
    LA=6
    def xread(s):
        a.lds(f"ds_read_b128 v[{XF+4*(s%8)}:{XF+4*(s%8)+3}], v{XA+(s%8)} offset:{((s%40)>>3)*256}", f"x{s%8}")
    for s in range(LA): xread(s)
    lab=f"K1_LOOP_{typ}"
    a.label(lab)
    if STAMP:
        a("s_memtime s[100:101]"); a("s_waitcnt lgkmcnt(0)")
        for i in range(3):
            a(f"s_cmp_eq_u32 s70, {i}"); a(f"s_cselect_b32 s{90+i}, s100, s{90+i}")
    for par in range(2):
        acc=ACC[par]
        ef=epi_fill(par^1, 0)
        sched=[[] for _ in range(40)]
        for i,fn in enumerate(ef):
            if EXP!=2: sched[2+(i*31)//len(ef)].append(fn)
        a("s_add_u32 s69, s69, 1"); a("s_cmp_ge_u32 s69, 3"); a("s_cselect_b32 s74, s75, s76"); a("s_cselect_b32 s69, 0, s69")
        for s in range(40):
            if s==36:
                a("s_waitcnt lgkmcnt(0)"); a.lg=[]
                if par==1:
                    a("s_cmp_eq_u32 s70, 2"); a(f"s_cbranch_scc1 {lab}_nb")
                a("s_barrier")
                if par==1: a.label(f"{lab}_nb")
                for j in range(8): a(f"v_add_u32 v{XA+j}, s74, v{XA+j}")
                xread(40); xread(41)
            a.wait_lg(f"x{s%8}")
            mf(acc,s,XF+4*(s%8),s==0)
            if s<34 or s>=36: xread(s+LA)
            for fn in sched[s]:
                if fn: fn()
        a("s_add_u32 s61, s61, s60"); a(f"v_add_u32 v{vTMP}, 256, v{vTMP}")
    a("s_add_u32 s70, s70, 1"); a("s_cmp_lt_u32 s70, 3"); a(f"s_cbranch_scc1 {lab}")
    stamp(a,9)
    a("s_waitcnt lgkmcnt(0)"); a.lg=[]
    a("s_nop 7"); a("s_nop 7")
    for fn in epi_fill(1,0):
        if fn: fn()
    if STAMP:
        a("s_waitcnt vmcnt(0)")
        stamp(a,10)
        stamp_out(a,11,32 if typ=="QK" else (130 if typ=="V" else 38),{"QK":0,"V":16,"H":32}[typ],1)
    a("s_branch K1_DONE" if MERGE else "s_endpgm")

def gen_help(a):
    L=vLANE
    a.label("K1_HELP")
    srd(a,16,30,31,0x2000000)
    a("s_cmp_ge_u32 s80, 4"); a("s_cbranch_scc1 K1_H1")
    srd(a,12,4,5,2048*1280)
    a("s_lshl_b32 s51, s80, 3"); a("s_add_u32 s51, s51, s32"); a("s_lshl_b32 s51, s51, 6"); a("s_lshl_b32 s52, s78, 3"); a("s_add_u32 s51, s51, s52")
    a(f"v_lshrrev_b32 v1, 3, v{L}"); a("v_add_u32 v1, s51, v1")
    a(f"v_and_b32 v2, 7, v{L}"); a("v_mul_u32_u24 v3, 1280, v1"); a("v_lshl_add_u32 v3, v2, 4, v3")
    for i in range(10): a(f"buffer_load_dwordx4 v[{8+4*i}:{11+4*i}], v3, s[12:15], 0 offen offset:{128*i}")
    a("v_mov_b32 v4, 0"); a("v_mov_b32 v5, 0"); a("v_mov_b32 v6, 0x3f803f80")
    a("v_lshrrev_b32 v7, 5, v1"); a("v_lshlrev_b32 v7, 8, v7"); a("v_and_b32 v1, 31, v1"); a("v_lshl_add_u32 v7, v1, 2, v7")
    a("s_mov_b32 s71, 0x3acccccd"); a("s_mov_b32 s72, 0x3727c5ac"); a(f"s_mov_b32 s73, {STG}")
    for i in range(10):
        a(f"s_waitcnt vmcnt({9-i})")
        for r in range(4):
            a(f"v_dot2c_f32_bf16 v4, v6, v{8+4*i+r}"); a(f"v_dot2c_f32_bf16 v5, v{8+4*i+r}, v{8+4*i+r}")
    for ctrl in ("quad_perm:[1,0,3,2]","quad_perm:[2,3,0,1]","row_half_mirror"):
        a("s_nop 2")
        a(f"v_add_f32_dpp v4, v4, v4 {ctrl} row_mask:0xf bank_mask:0xf")
        a(f"v_add_f32_dpp v5, v5, v5 {ctrl} row_mask:0xf bank_mask:0xf")
    a("v_mul_f32 v4, s71, v4"); a("v_mul_f32 v5, s71, v5"); a("v_fma_f32 v5, -v4, v4, v5"); a("v_add_f32 v5, s72, v5")
    a("v_rsq_f32 v5, v5"); a("s_nop 0"); a("v_mul_f32 v4, v4, v5")
    a("v_cmp_eq_u32 vcc, 0, v2"); a("s_and_saveexec_b64 s[74:75], vcc")
    a("buffer_store_dword v5, v7, s[16:19], s73 offen sc1")
    a("buffer_store_dword v4, v7, s[16:19], s73 offen offset:128 sc1")
    a("s_mov_b64 exec, s[74:75]")
    a("s_waitcnt vmcnt(0)")
    a("s_barrier")
    a("s_cmp_lg_u32 s78, 0"); a("s_cbranch_scc1 K1_H0")
    a("v_mov_b32 v4, 1"); a("v_mov_b32 v5, 0")
    a("s_mov_b64 exec, 1")
    a("global_atomic_add v5, v4, s[82:83] offset:252 sc1")
    a("s_mov_b64 exec, -1")
    a.label("K1_H0")
    a("s_cmp_lg_u32 s2, 0"); a("s_cbranch_scc1 K1_H1")
    a(f"v_lshlrev_b32 v1, 8, v{L}"); a("v_mov_b32 v4, 0"); a("v_mov_b32 v5, 0"); a("v_mov_b32 v6, 0"); a("v_mov_b32 v7, 0"); a("s_mov_b32 s51, 0x1C10000")
    a(f"buffer_store_dwordx4 v[4:7], v1, s[16:19], s51 offen{WT}")
    a.label("K1_H1")
    a("s_cmp_ge_u32 s32, 6"); a("s_cbranch_scc1 K1_H2")
    a("s_lshl_b32 s40, s32, 2"); a("s_add_u32 s40, s40, s33"); a("s_sub_u32 s40, s40, 28"); a("s_branch K1_H3")
    a.label("K1_H2")
    a("s_sub_u32 s40, s32, 6"); a("s_lshl_b32 s40, s40, 3"); a("s_add_u32 s40, s40, s33")
    a.label("K1_H3")
    a("s_lshl_b32 s40, s40, 3"); a("s_add_u32 s40, s40, s78")
    a(f"v_lshrrev_b32 v1, 4, v{L}"); a("v_mul_u32_u24 v1, 10240, v1"); a(f"v_and_b32 v2, 15, v{L}"); a("v_lshl_add_u32 v1, v2, 1, v1")
    a("v_add_u32 v2, 5120, v1"); a(f"v_lshlrev_b32 v3, 4, v{L}")
    if int(os.environ.get('SENT','1')):
        for i in range(4): a(f"v_mov_b32 v{4+i}, -1")
        a("s_lshl_b32 s51, s40, 13"); a(f"s_add_u32 s51, s51, {OF}"); a("s_add_u32 s52, s51, 4096")
        for i in range(8): a(f"buffer_store_dwordx4 v[4:7], v3, s[16:19], s{51+(i>>2)} offen offset:{(i&3)*1024}")
    for (lo,hi,nk,dst,n) in ((28,29,1536,W2F,6),(20,21,640,WOF,3)):
        srd(a,8,lo,hi,nk*1280)
        gs=list(range(n))
        for t,it in enumerate(gs):
            a(f"s_add_u32 s{44+t}, s40, {320*it}")
            a(f"s_mul_i32 s51, s{44+t}, 1639"); a("s_lshr_b32 s51, s51, 16")
            a("s_mul_i32 s52, s51, 40"); a(f"s_sub_u32 s52, s{44+t}, s52")
            a("s_mul_i32 s51, s51, 40960"); a("s_lshl_b32 s52, s52, 5"); a("s_add_u32 s51, s51, s52")
            for j in range(8):
                a(f"buffer_load_ushort v{40+8*t+j}, v{1 if j<4 else 2}, s[8:11], s51 offen offset:{(j&3)*1280}")
        a("s_waitcnt vmcnt(0)")
        for t,it in enumerate(gs):
            for j in range(4): a(f"v_lshl_or_b32 v{8+4*t+j}, v{40+8*t+2*j+1}, 16, v{40+8*t+2*j}")
            a(f"s_lshl_b32 s51, s{44+t}, 10"); a(f"s_add_u32 s51, s51, {dst}")
            a(f"buffer_store_dwordx4 v[{8+4*t}:{8+4*t+3}], v3, s[16:19], s51 offen{WT}")
        a("s_nop 1")
```

```python
import os
from asmlib import *
from k1 import QH,KH,VT,VTP,HF,W2F,WOF,OF,GB
import os
SENT=int(os.environ.get('SENT','1'))
KF=0; VF=72; S=144; Q=216; O=232
vKO=240; vVO=241; vVO1=242; vQO=243; vOO=244; vOO1=245; vNEG=246; vM=247; vT=248; vT2=249; vBP=250; vL=251

def attn_body(a, s_m, s_h, pfx, sc1=""):
    L=vL
    a(f"v_and_b32 v151, 15, v{L}"); a(f"v_lshrrev_b32 v152, 4, v{L}")
    a("v_lshrrev_b32 v153, 2, v151"); a("v_and_b32 v154, 3, v151"); a("v_lshl_add_u32 v153, v153, 3, v154")
    a(f"s_lshl_b32 s72, s{s_h}, 11"); a(f"s_lshl_b32 s73, s{s_m}, 6"); a("s_add_u32 s72, s72, s73")
    a("s_mul_i32 s74, s72, 40")
    a("v_mul_u32_u24 v153, 40, v153"); a("v_lshl_add_u32 v153, v152, 4, v153"); a(f"v_add_u32 v{vKO}, s74, v153")
    a("v_mul_u32_u24 v153, 40, v151"); a("v_lshl_add_u32 v153, v152, 4, v153"); a(f"v_add_u32 v{vQO}, s74, v153")
    a(f"s_mul_i32 s75, s{s_h}, 20"); a("v_add_u32 v153, s75, v151"); a(f"v_mul_u32_u24 v153, {VTP}, v153")
    a("v_lshl_add_u32 v153, v152, 4, v153"); a("s_lshl_b32 s76, s73, 1"); a(f"v_add_u32 v{vVO}, s76, v153")
    a(f"v_add_u32 v{vVO1}, {16*VTP}, v{vVO}")
    def ldK(g):
        sl=g%9
        a(f"s_movk_i32 s77, {1280*g}")
        for ab in range(2):
            a.vmem(f"buffer_load_dwordx4 v[{KF+8*sl+4*ab}:{KF+8*sl+4*ab+3}], v{vKO}, s[8:11], s77 offen offset:{160*ab}",f"K{g}")
    def ldV(g):
        sl=g%9
        a.vmem(f"buffer_load_dwordx4 v[{VF+8*sl}:{VF+8*sl+3}], v{vVO}, s[12:15], 0 offen offset:{64*g}",f"V{g}")
        a("s_mov_b64 exec, s[78:79]")
        a.vmem(f"buffer_load_dwordx4 v[{VF+8*sl+4}:{VF+8*sl+7}], v{vVO1}, s[12:15], 0 offen offset:{64*g}",f"V{g}")
        a("s_mov_b64 exec, -1")
    a("v_cmp_gt_u32 s[78:79], 4, v151")
    for qb in range(4):
        a.vmem(f"buffer_load_dwordx4 v[{Q+4*qb}:{Q+4*qb+3}], v{vQO}, s[16:19], 0 offen offset:{640*qb}","Q")
    for g in range(9): ldK(g)
    a("v_cmp_eq_u32 vcc, 4, v151"); a("v_mov_b32 v153, 0x3f803f80"); a("s_nop 0"); a("v_cndmask_b32 v153, 0, v153, vcc")
    for sl in range(9):
        for r in range(4): a(f"v_mov_b32 v{VF+8*sl+4+r}, v153")
    for g in range(9): ldV(g)
    a("v_lshlrev_b32 v153, 3, v152")
    for par in range(2):
        for k in range(8):
            a(f"v_add_u32 v154, {k-16*par}, v153")
            a(f"v_cmp_le_i32 s[{40+2*(8*par+k)}:{41+2*(8*par+k)}], v154, v151")
    a(f"v_mov_b32 v{vNEG}, 0xf149f2ca")
    a("v_lshl_add_u32 v153, v152, 2, s75")
    a("v_lshrrev_b32 v154, 5, v153"); a("v_lshlrev_b32 v154, 10, v154"); a("v_lshl_add_u32 v154, v151, 4, v154")
    a("v_bfe_u32 v155, v153, 3, 2"); a("v_lshl_add_u32 v154, v155, 8, v154"); a("v_and_b32 v155, 4, v153"); a(f"v_lshl_add_u32 v{vOO}, v155, 1, v154")
    a("s_add_u32 s80, s75, 16"); a("s_lshr_b32 s81, s80, 5"); a("s_lshl_b32 s81, s81, 10"); a("s_bfe_u32 s82, s80, 0x20003"); a("s_lshl_b32 s82, s82, 8")
    a("s_add_u32 s81, s81, s82"); a("s_and_b32 s82, s80, 4"); a("s_lshl_b32 s82, s82, 1"); a("s_add_u32 s81, s81, s82")
    a(f"v_lshl_add_u32 v{vOO1}, v151, 4, s81")
    a(f"v_add_u32 v{vBP}, 16, v151"); a(f"v_lshlrev_b32 v{vBP}, 2, v{vBP}")
    a(f"s_mul_i32 s83, s{s_m}, 81920"); a(f"s_add_u32 s83, s83, {OF}")
    a("v_cmp_gt_u32 s[84:85], 3, v152"); a("v_cmp_gt_u32 s[86:87], 2, v152"); a("v_cmp_eq_u32 s[88:89], 0, v152")
    a.wait_vm("Q")
    for qb in range(4):
        for r in range(4): a(f"v_cndmask_b32 v{Q+4*qb+r}, 0, v{Q+4*qb+r}, s[{84 if r<2 else 86}:{85 if r<2 else 87}]")
    a(f"s_lshl_b32 s90, s{s_m}, 1"); a("s_sub_i32 s90, 8, s90"); a("s_max_i32 s90, s90, 0")
    def zeroV(g):
        lab=a.newlabel(pfx+"zv"); sl=g%9
        a(f"s_cmp_gt_u32 s90, {g}"); a(f"s_cbranch_scc0 {lab}")
        for r in range(4): a(f"v_mov_b32 v{VF+8*sl+r}, 0");
        a("s_mov_b64 exec, s[78:79]")
        for r in range(4): a(f"v_mov_b32 v{VF+8*sl+4+r}, 0")
        a("s_mov_b64 exec, -1")
        a.label(lab)
    for qb in range(4):
        g0=qb>>1; par=qb&1
        for gr in range(9):
            g=g0+gr; sl=g%9
            a.wait_vm(f"K{g}")
            for ab in range(2):
                a(f"v_mfma_f32_16x16x32_bf16 v[{S+8*gr+4*ab}:{S+8*gr+4*ab+3}], v[{KF+8*sl+4*ab}:{KF+8*sl+4*ab+3}], v[{Q+4*qb}:{Q+4*qb+3}], 0")
        if qb==1: ldK(9)
        a("s_nop 7")
        for k in range(8):
            m=f"s[{40+2*(8*par+k)}:{41+2*(8*par+k)}]"
            a(f"v_cndmask_b32 v{S+k}, v{S+k}, v{vNEG}, {m}")
            a(f"v_cndmask_b32 v{S+64+k}, v{vNEG}, v{S+64+k}, {m}")
        for gr in range(8):
            g=g0+gr
            if g<8:
                lab=a.newlabel(pfx+"inv")
                a(f"s_cmp_gt_u32 s90, {g}"); a(f"s_cbranch_scc0 {lab}")
                for k in range(8): a(f"v_mov_b32 v{S+8*gr+k}, v{vNEG}")
                a.label(lab)
        a(f"v_max3_f32 v{vM}, v{S}, v{S+1}, v{S+2}")
        for k in range(3,71,2): a(f"v_max3_f32 v{vM}, v{vM}, v{S+k}, v{S+k+1}")
        a(f"v_max_f32 v{vM}, v{vM}, v{S+71}")
        a(f"v_mov_b32 v{vT}, v{vM}"); a("s_nop 1"); a(f"v_permlane32_swap_b32 v{vM}, v{vT}"); a("s_nop 1"); a(f"v_max_f32 v{vM}, v{vM}, v{vT}")
        a(f"v_mov_b32 v{vT}, v{vM}"); a("s_nop 1"); a(f"v_permlane16_swap_b32 v{vM}, v{vT}"); a("s_nop 1"); a(f"v_max_f32 v{vM}, v{vM}, v{vT}")
        for gr in range(9):
            g=g0+gr; sl=g%9; b=S+8*gr
            for k in range(8): a(f"v_sub_f32 v{b+k}, v{b+k}, v{vM}")
            for k in range(8): a(f"v_exp_f32 v{b+k}, v{b+k}")
            a("s_nop 0")
            for k in range(4): a(f"v_cvt_pk_bf16_f32 v{b+k}, v{b+2*k}, v{b+2*k+1}")
            a.wait_vm(f"V{g}")
            if qb in (0,) and g<8: zeroV(g)
            a("s_nop 1")
            for dt in range(2):
                c = "0" if gr==0 else f"v[{O+4*dt}:{O+4*dt+3}]"
                a(f"v_mfma_f32_16x16x32_bf16 v[{O+4*dt}:{O+4*dt+3}], v[{VF+8*sl+4*dt}:{VF+8*sl+4*dt+3}], v[{b}:{b+3}], {c}")
        if qb==1: ldV(9)
        a("s_nop 7")
        a(f"ds_bpermute_b32 v{vT}, v{vBP}, v{O+4}")
        a("s_waitcnt lgkmcnt(0)")
        a(f"v_rcp_f32 v{vT}, v{vT}"); a("s_nop 0")
        for k in range(8): a(f"v_mul_f32 v{O+k}, v{O+k}, v{vT}")
        for k in range(4): a(f"v_cvt_pk_bf16_f32 v{O+k}, v{O+2*k}, v{O+2*k+1}")
        a(f"s_add_u32 s91, s83, {20480*qb}")
        a.vmem(f"buffer_store_dwordx2 v[{O}:{O+1}], v{vOO}, s[16:19], s91 offen {sc1}","st")
        a("s_mov_b64 exec, s[88:89]")
        a.vmem(f"buffer_store_dwordx2 v[{O+2}:{O+3}], v{vOO1}, s[16:19], s91 offen {sc1}","st")
        a("s_mov_b64 exec, -1")
        a("s_nop 1")

def attn_loop(a, s_m, s_h, pfx, sc1="", signal=None):
    L=vL
    a(f"v_and_b32 v151, 15, v{L}"); a(f"v_lshrrev_b32 v152, 4, v{L}")
    a("v_lshrrev_b32 v153, 2, v151"); a("v_and_b32 v154, 3, v151"); a("v_lshl_add_u32 v153, v153, 3, v154")
    a(f"s_lshl_b32 s72, s{s_h}, 11"); a(f"s_lshl_b32 s73, s{s_m}, 6"); a("s_add_u32 s72, s72, s73")
    a("s_mul_i32 s74, s72, 40")
    a("v_mul_u32_u24 v153, 40, v153"); a("v_lshl_add_u32 v153, v152, 4, v153"); a(f"v_add_u32 v{vKO}, s74, v153")
    a("v_mul_u32_u24 v153, 40, v151"); a("v_lshl_add_u32 v153, v152, 4, v153"); a(f"v_add_u32 v{vQO}, s74, v153")
    a(f"s_mul_i32 s75, s{s_h}, 20")
    a(f"s_mul_i32 s76, s{s_h}, 81920"); a(f"s_mul_i32 s77, s{s_m}, 2560"); a("s_add_u32 s76, s76, s77")
    a("v_lshlrev_b32 v153, 6, v151"); a("v_lshl_add_u32 v153, v152, 4, v153"); a(f"v_add_u32 v{vVO}, s76, v153")
    def ldK(g):
        sl=g%9
        a(f"s_movk_i32 s77, {1280*g}")
        for ab in range(2):
            a.vmem(f"buffer_load_dwordx4 v[{KF+8*sl+4*ab}:{KF+8*sl+4*ab+3}], v{vKO}, s[8:11], s77 offen offset:{160*ab}",f"K{g}")
    def ldV(g):
        sl=g%9
        a(f"s_movk_i32 s77, {1280*g}")
        a.vmem(f"buffer_load_dwordx4 v[{VF+8*sl}:{VF+8*sl+3}], v{vVO}, s[12:15], s77 offen",f"V{g}")
        a("s_mov_b64 exec, s[78:79]")
        a.vmem(f"buffer_load_dwordx4 v[{VF+8*sl+4}:{VF+8*sl+7}], v{vVO}, s[12:15], s77 offen offset:1024",f"V{g}")
        a("s_mov_b64 exec, -1")
    a("v_cmp_gt_u32 s[78:79], 4, v151")
    for qb in range(4):
        a.vmem(f"buffer_load_dwordx4 v[{Q+4*qb}:{Q+4*qb+3}], v{vQO}, s[16:19], 0 offen offset:{640*qb}","Q")
    for g in range(9): ldK(g)
    a("v_cmp_eq_u32 vcc, 4, v151"); a("v_mov_b32 v153, 0x3f803f80"); a("s_nop 0"); a("v_cndmask_b32 v153, 0, v153, vcc")
    for sl in range(9):
        for r in range(4): a(f"v_mov_b32 v{VF+8*sl+4+r}, v153")
    for g in range(9): ldV(g)
    a("s_waitcnt lgkmcnt(0)"); a("s_barrier")
    a("v_lshlrev_b32 v253, 3, v152"); a("v_mov_b32 v252, v151")
    a(f"v_mov_b32 v{vNEG}, 0xf149f2ca")
    a("v_lshl_add_u32 v153, v152, 2, s75")
    a("v_lshrrev_b32 v154, 5, v153"); a("v_lshlrev_b32 v154, 10, v154"); a("v_lshl_add_u32 v154, v151, 4, v154")
    a("v_bfe_u32 v155, v153, 3, 2"); a("v_lshl_add_u32 v154, v155, 8, v154"); a("v_and_b32 v155, 4, v153"); a(f"v_lshl_add_u32 v{vOO}, v155, 1, v154")
    a("s_add_u32 s80, s75, 16"); a("s_lshr_b32 s81, s80, 5"); a("s_lshl_b32 s81, s81, 10"); a("s_bfe_u32 s82, s80, 0x20003"); a("s_lshl_b32 s82, s82, 8")
    a("s_add_u32 s81, s81, s82"); a("s_and_b32 s82, s80, 4"); a("s_lshl_b32 s82, s82, 1"); a("s_add_u32 s81, s81, s82")
    a(f"v_lshl_add_u32 v{vOO1}, v151, 4, s81")
    a(f"v_add_u32 v{vBP}, 16, v151"); a(f"v_lshlrev_b32 v{vBP}, 2, v{vBP}")
    a(f"s_mul_i32 s83, s{s_m}, 81920"); a(f"s_add_u32 s83, s83, {OF}")
    a("v_cmp_gt_u32 s[84:85], 3, v152"); a("v_cmp_gt_u32 s[86:87], 2, v152"); a("v_cmp_eq_u32 s[88:89], 0, v152")
    a.wait_vm("Q")
    for qb in range(4):
        for r in range(4): a(f"v_cndmask_b32 v{Q+4*qb+r}, 0, v{Q+4*qb+r}, s[{84 if r<2 else 86}:{85 if r<2 else 87}]")
    a(f"s_lshl_b32 s90, s{s_m}, 1"); a("s_sub_i32 s90, 8, s90"); a("s_max_i32 s90, s90, 0")
    def zeroV(g):
        lab=a.newlabel(pfx+"zv"); sl=g%9
        a(f"s_cmp_gt_u32 s90, {g}"); a(f"s_cbranch_scc0 {lab}")
        for r in range(4): a(f"v_mov_b32 v{VF+8*sl+r}, 0");
        a("s_mov_b64 exec, s[78:79]")
        for r in range(4): a(f"v_mov_b32 v{VF+8*sl+4+r}, 0")
        a("s_mov_b64 exec, -1")
        a.label(lab)
    a("s_waitcnt vmcnt(0)"); a.vm=[]
    for g in range(8): zeroV(g)
    stamp(a,11)
    a("s_mov_b32 s92, 0"); a("s_mov_b32 s91, s83")
    lp=pfx+"_QB"
    a.label(lp)
    if STAMP:
        a("s_memtime s[100:101]"); a("s_waitcnt lgkmcnt(0)")
        a("s_cmp_eq_u32 s92, 1"); a("s_cselect_b32 s98, s100, s98"); a("s_cmp_eq_u32 s92, 2"); a("s_cselect_b32 s99, s100, s99")
    for sl in (1,2,3,4,5,6,7,8,0):
        if sl==0: a("s_waitcnt vmcnt(4)")
        for ab in range(2):
            a(f"v_mfma_f32_16x16x32_bf16 v[{S+8*sl+4*ab}:{S+8*sl+4*ab+3}], v[{KF+8*sl+4*ab}:{KF+8*sl+4*ab+3}], v[{Q}:{Q+3}], 0")
    a("s_cmp_lg_u32 s92, 1"); a(f"s_cbranch_scc1 {lp}_a")
    ldK(9)
    a.label(lp+"_a")
    a("s_and_b32 s93, s92, 1"); a("s_lshl_b32 s93, s93, 4")
    a("v_subrev_u32 v254, s93, v253")
    for k in range(8):
        a(f"v_cmp_le_i32 s[{40+2*k}:{41+2*k}], v254, v252")
        if k<7: a("v_add_u32 v254, 1, v254")
    for r in range(3): a(f"v_mov_b32 v{Q+4*r}, v{Q+4*r+4}"); a(f"v_mov_b32 v{Q+4*r+1}, v{Q+4*r+5}"); a(f"v_mov_b32 v{Q+4*r+2}, v{Q+4*r+6}"); a(f"v_mov_b32 v{Q+4*r+3}, v{Q+4*r+7}")
    a("s_nop 3")
    a("s_cmp_ge_u32 s92, 2"); a(f"s_cbranch_scc1 {lp}_m2")
    for k in range(8):
        m=f"s[{40+2*k}:{41+2*k}]"
        a(f"v_cndmask_b32 v{S+k}, v{S+k}, v{vNEG}, {m}")
        a(f"v_cndmask_b32 v{S+64+k}, v{vNEG}, v{S+64+k}, {m}")
    a("s_mov_b32 s93, 0"); a(f"s_branch {lp}_m3")
    a.label(lp+"_m2")
    for k in range(8):
        m=f"s[{40+2*k}:{41+2*k}]"
        a(f"v_cndmask_b32 v{S+8+k}, v{S+8+k}, v{vNEG}, {m}")
        a(f"v_cndmask_b32 v{S+k}, v{vNEG}, v{S+k}, {m}")
    a("s_mov_b32 s93, 9")
    a.label(lp+"_m3")
    a(f"s_cmp_eq_u32 s90, 0"); a(f"s_cbranch_scc1 {lp}_nv")
    for sl in range(8):
        lab=a.newlabel(pfx+"inv")
        if sl==0: a("s_cmp_gt_u32 s90, s93")
        else: a(f"s_cmp_gt_u32 s90, {sl}")
        a(f"s_cbranch_scc0 {lab}")
        for k in range(8): a(f"v_mov_b32 v{S+8*sl+k}, v{vNEG}")
        a.label(lab)
    a.label(lp+"_nv")
    a(f"v_max3_f32 v{vM}, v{S}, v{S+1}, v{S+2}")
    for k in range(3,71,2): a(f"v_max3_f32 v{vM}, v{vM}, v{S+k}, v{S+k+1}")
    a(f"v_max_f32 v{vM}, v{vM}, v{S+71}")
    a(f"v_mov_b32 v{vT}, v{vM}"); a("s_nop 1"); a(f"v_permlane32_swap_b32 v{vM}, v{vT}"); a("s_nop 1"); a(f"v_max_f32 v{vM}, v{vM}, v{vT}")
    a(f"v_mov_b32 v{vT}, v{vM}"); a("s_nop 1"); a(f"v_permlane16_swap_b32 v{vM}, v{vT}"); a("s_nop 1"); a(f"v_max_f32 v{vM}, v{vM}, v{vT}")
    for sl in (1,2,3,4,5,6,7,8,0):
        b=S+8*sl
        if sl==0:
            a("s_waitcnt vmcnt(0)")
            a("s_cmp_eq_u32 s92, 0"); a(f"s_cbranch_scc1 {lp}_sg")
            a("s_sub_u32 s94, s92, 1")
            signal()
            a.label(lp+"_sg")
        if os.environ.get("PK","0")=="1":
            if sl==1: a(f"v_mov_b32 v254, v{vM}"); a(f"v_mov_b32 v255, v{vM}")
            for k in range(0,8,2): a(f"v_pk_add_f32 v[{b+k}:{b+k+1}], v[{b+k}:{b+k+1}], v[254:255] neg_lo:[0,1] neg_hi:[0,1]")
        else:
            for k in range(8): a(f"v_sub_f32 v{b+k}, v{b+k}, v{vM}")
        for k in range(8): a(f"v_exp_f32 v{b+k}, v{b+k}")
        a("s_nop 0")
        for k in range(4): a(f"v_cvt_pk_bf16_f32 v{b+k}, v{b+2*k}, v{b+2*k+1}")
        a("s_nop 1")
        for dt in range(2):
            c = "0" if sl==1 else f"v[{O+4*dt}:{O+4*dt+3}]"
            a(f"v_mfma_f32_16x16x32_bf16 v[{O+4*dt}:{O+4*dt+3}], v[{VF+8*sl+4*dt}:{VF+8*sl+4*dt+3}], v[{b}:{b+3}], {c}")
    a("s_cmp_lg_u32 s92, 1"); a(f"s_cbranch_scc1 {lp}_b")
    ldV(9)
    a.label(lp+"_b")
    a("s_nop 7")
    a(f"ds_bpermute_b32 v{vT}, v{vBP}, v{O+4}")
    a("s_waitcnt lgkmcnt(0)")
    a(f"v_rcp_f32 v{vT}, v{vT}"); a("s_nop 0")
    for k in range(8): a(f"v_mul_f32 v{O+k}, v{O+k}, v{vT}")
    for k in range(4): a(f"v_cvt_pk_bf16_f32 v{O+k}, v{O+2*k}, v{O+2*k+1}")
    if SENT:
        for k in range(4): a(f"v_min_u32 v{O+k}, -2, v{O+k}")
    a(f"buffer_store_dwordx2 v[{O}:{O+1}], v{vOO}, s[16:19], s91 offen {sc1}")
    a("s_mov_b64 exec, s[88:89]")
    a(f"buffer_store_dwordx2 v[{O+2}:{O+3}], v{vOO1}, s[16:19], s91 offen {sc1}")
    a("s_mov_b64 exec, -1")
    a("s_add_u32 s91, s91, 20480")
    a("s_add_u32 s92, s92, 1"); a("s_cmp_lt_u32 s92, 4")
    a(f"s_cbranch_scc1 {lp}")
    if not SENT: a("s_waitcnt vmcnt(0)")
    a("s_mov_b32 s94, 3")
    signal()
    a.vm=[]

def attn_srds(a, wslo, wshi):
    srd(a,8,wslo,wshi,2621440+10240,KH-10240)
    srd(a,12,wslo,wshi,2621440+10240,VT-10240)
    srd(a,16,wslo,wshi,0x2000000)

def gen_k2(a):
    a.label("k2_kernel")
    a("s_cmp_ge_u32 s2, 256"); a("s_cbranch_scc1 K2_END")
    a("s_load_dwordx2 s[30:31], s[0:1], 80")
    a(f"v_and_b32 v{vL}, 63, v0"); a("v_lshrrev_b32 v1, 6, v0"); a("s_nop 0"); a("v_readfirstlane_b32 s36, v1")
    a("s_and_b32 s34, s2, 7"); a("s_lshl_b32 s34, s34, 2"); a("s_lshr_b32 s35, s2, 6"); a("s_add_u32 s34, s34, s35"); a("s_bfe_u32 s35, s2, 0x30003"); a("s_lshl_b32 s35, s35, 2"); a("s_add_u32 s35, s35, s36")
    a("s_waitcnt lgkmcnt(0)")
    attn_srds(a,30,31)
    attn_body(a,34,35,"K2")
    a.label("K2_END")
    a("s_endpgm")
```

```python
from asmlib import *
from k1 import QH,KH,VT,VTP,HF,W2F,WOF,OF,GB
import k2,k3
ACC=0; FR=80; NS=4; G=200
vA=224; vW=225; vL=226; vX=227; vRW=228; vRR=229; vRR2=230; vFO=231; TT=232; TP=242; LCNT=102400
def gemm_part(a, nk, sA, sW, strideA_kg, tag):
    def ld(k):
        b=FR+36*(k%NS)
        a(f"s_add_u32 s61, s{sA}, s46")
        for t in range(4):
            if t: a(f"s_add_u32 s60, s61, {t*strideA_kg}")
            a.vmem(f"buffer_load_dwordx4 v[{b+4*t}:{b+4*t+3}], v{vA}, s[16:19], s{60 if t else 61} offen",f"{tag}{k}")
        a(f"s_add_u32 s60, s{sW}, s47")
        for j in range(5):
            if j==4:
                a.vmem(f"buffer_load_dwordx4 v[{b+16+4*j}:{b+16+4*j+3}], v{vW}, s[16:19], s60 offen",f"{tag}{k}")
            else:
                a.vmem(f"buffer_load_dwordx4 v[{b+16+4*j}:{b+16+4*j+3}], v{vA}, s[16:19], s60 offen offset:{1024*j}",f"{tag}{k}")
        a("s_add_u32 s46, s46, 1024"); a("s_add_u32 s47, s47, 40960")
        a("s_cmp_eq_u32 s46, 12288"); a("s_cselect_b32 s46, 0, s46"); a("s_cselect_b32 s47, 0, s47")
    return ld
def mm(a,k,first):
    b=FR+36*(k%NS)
    for t in range(4):
        for j in range(5):
            d=ACC+4*(5*t+j)
            c="0" if first else f"v[{d}:{d+3}]"
            a(f"v_mfma_f32_16x16x32_bf16 v[{d}:{d+3}], v[{b+16+4*j}:{b+16+4*j+3}], v[{b+4*t}:{b+4*t+3}], {c}")
def reduce(a, dst):
    a("s_nop 7")
    for t in range(4):
        for j in range(5):
            d=ACC+4*(5*t+j)
            a.lds(f"ds_write_b128 v{vRW}, v[{d}:{d+3}] offset:{(t*5+j)*1024}","rw")
    a.wait_lg_all(); a("s_barrier")
    for w in range(4):
        for j in range(5):
            r = dst+4*j if w==0 else ACC+20*w+4*j
            a.lds(f"ds_read_b128 v[{r}:{r+3}], v{vRR if w<2 else vRR2} offset:{(w&1)*20480+j*1024}","rr")
    a.wait_lg_all()
    for w in range(1,4):
        for k in range(20): a(f"v_add_f32 v{dst+k}, v{dst+k}, v{ACC+20*w+k}")
CNT=0x1C10000
def fsync(a,off):
    l=a.newlabel("FS"); d=a.newlabel("FSD")
    a(f"v_mov_b32 v{TP+6}, {LCNT+off}"); a(f"v_mov_b32 v{TP+7}, 1")
    a("s_mov_b64 exec, 1")
    a(f"ds_add_u32 v{TP+6}, v{TP+7}")
    a.label(l)
    a(f"ds_read_b32 v{TP+7}, v{TP+6}")
    a("s_waitcnt lgkmcnt(0)")
    a(f"v_readfirstlane_b32 s62, v{TP+7}")
    a("s_cmp_ge_u32 s62, 4"); a(f"s_cbranch_scc1 {d}")
    a("s_sleep 1"); a(f"s_branch {l}")
    a.label(d)
    a("s_mov_b64 exec, -1")
def gen_k23(a):
    a.label("k23_kernel")
    a("s_cmp_ge_u32 s2, 256"); a("s_cbranch_scc1 K23_END")
    stamp(a,0); stamp(a,10)
    a("s_load_dwordx2 s[4:5], s[0:1], 0")
    a("s_load_dwordx4 s[24:27], s[0:1], 56")
    a("s_load_dwordx4 s[28:31], s[0:1], 72")
    a("v_lshrrev_b32 v1, 6, v0"); a("s_nop 0"); a("v_readfirstlane_b32 s33, v1")
    a("s_and_b32 s36, s33, 3")
    a("s_and_b32 s34, s2, 7"); a("s_lshl_b32 s34, s34, 2"); a("s_lshr_b32 s35, s2, 6"); a("s_add_u32 s34, s34, s35"); a("s_bfe_u32 s35, s2, 0x30003")
    a(f"v_mov_b32 v1, {LCNT}"); a("v_mov_b32 v2, 0"); a("v_mov_b32 v3, 0"); a("ds_write_b64 v1, v[2:3]"); a("ds_write_b64 v1, v[2:3] offset:8"); a("ds_write_b64 v1, v[2:3] offset:16"); a("ds_write_b64 v1, v[2:3] offset:24")
    a("s_cmp_ge_u32 s33, 4"); a("s_cbranch_scc1 K23_F")
    a(f"v_and_b32 v{k2.vL}, 63, v0")
    a("s_lshl_b32 s35, s35, 2"); a("s_add_u32 s35, s35, s36")
    a("s_waitcnt lgkmcnt(0)")
    k2.attn_srds(a,30,31)
    import os
    a(f"s_setprio {os.environ.get('APRIO','3')}")
    def signal():
        l=a.newlabel("SG")
        a("s_lshl_b32 s95, s94, 2"); a(f"s_add_u32 s96, s95, {LCNT+16}")
        a("v_mov_b32 v254, s96"); a("v_mov_b32 v255, 1")
        a("s_mov_b64 exec, 1")
        a("ds_add_rtn_u32 v255, v254, v255")
        a("s_waitcnt lgkmcnt(0)")
        a("v_readfirstlane_b32 s96, v255")
        a("s_cmp_lg_u32 s96, 3"); a(f"s_cbranch_scc1 {l}")
        a("s_lshl_b32 s96, s34, 8"); a("s_add_u32 s96, s96, s95"); a(f"s_add_u32 s96, s96, {CNT}")
        a("v_mov_b32 v254, s96"); a("v_mov_b32 v255, 1")
        a("global_atomic_add v254, v255, s[30:31] sc1")
        a.label(l)
        a("s_mov_b64 exec, -1")
    k2.attn_loop(a,34,35,"K2",sc1="sc1",signal=signal)
    a("s_endpgm")
    a.label("K23_F"); a.vm=[]; a.lg=[]
    a(f"v_and_b32 v{vL}, 63, v0")
    a("s_waitcnt lgkmcnt(0)")
    srd(a,16,30,31,0x2000000); srd(a,8,4,5,2048*1280); srd(a,12,26,27,2048*1280); srd(a,20,24,25,1280)
    a(f"v_lshlrev_b32 v{vA}, 4, v{vL}"); a(f"v_add_u32 v{vW}, 4096, v{vA}")
    a("s_mul_i32 s40, s34, 200704"); a("s_mul_i32 s37, s36, 12288"); a("s_add_u32 s40, s40, s37"); a(f"s_add_u32 s40, s40, {HF}")
    a("s_mul_i32 s41, s36, 491520"); a("s_mul_i32 s37, s35, 5120"); a("s_add_u32 s41, s41, s37"); a(f"s_add_u32 s41, s41, {W2F}")
    a("s_and_b32 s46, s34, 3"); a("s_mul_i32 s46, s46, 3"); a("s_add_u32 s46, s46, s35"); a("s_lshr_b32 s47, s35, 1"); a("s_add_u32 s46, s46, s47")
    a("s_cmp_ge_u32 s46, 12"); a("s_cbranch_scc0 K23_R0"); a("s_sub_u32 s46, s46, 12"); a.label("K23_R0")
    a("s_mul_i32 s47, s46, 40960"); a("s_lshl_b32 s46, s46, 10")
    ld=gemm_part(a,12,40,41,50176,"F")
    a("s_barrier")
    import os
    if os.environ.get("NOF"): a("s_branch K23_SKIPF")
    ld(0); ld(1); ld(2)
    a("s_mul_i32 s37, s36, 20480"); a(f"v_add_u32 v{vRW}, s37, v{vA}")
    a("s_mul_i32 s37, s36, 5120"); a(f"v_add_u32 v{vRR}, s37, v{vA}"); a(f"v_add_u32 v{vRR2}, 40960, v{vRR}")
    a("s_mul_i32 s42, s34, 81920"); a("s_mul_i32 s37, s36, 20480"); a("s_add_u32 s42, s42, s37"); a(f"s_add_u32 s42, s42, {OF}")
    a("s_mul_i32 s43, s36, 204800"); a("s_mul_i32 s37, s35, 5120"); a("s_add_u32 s43, s43, s37"); a(f"s_add_u32 s43, s43, {WOF}")
    a(f"v_and_b32 v1, 15, v{vL}"); a(f"v_lshrrev_b32 v2, 4, v{vL}")
    a("s_lshl_b32 s37, s34, 6"); a("s_lshl_b32 s38, s36, 4"); a("s_add_u32 s37, s37, s38"); a("v_add_u32 v1, s37, v1"); a("v_mul_u32_u24 v1, 1280, v1")
    a("s_mul_i32 s38, s35, 160"); a("v_lshlrev_b32 v2, 3, v2"); a("v_add_u32 v2, s38, v2"); a(f"v_add_u32 v{vX}, v1, v2")
    a(f"v_mov_b32 v{vFO}, v2")
    for k in range(4):
        ld(k+3); a.wait_vm(f"F{k}"); mm(a,k,k==0)
    a("s_mov_b32 s45, 0"); a.label("K23_FL")
    for k in range(4,8):
        if k==4:
            ld(k+3); a("s_waitcnt vmcnt(27)")
        else:
            l1=a.newlabel("FLs"); l2=a.newlabel("FLt")
            a("s_cmp_eq_u32 s45, 1"); a(f"s_cbranch_scc1 {l1}")
            ld(k+3); a("s_waitcnt vmcnt(27)"); a(f"s_branch {l2}")
            a.label(l1)
            if k==6:
                for j in range(5): a(f"buffer_load_dwordx2 v[{TT+2*j}:{TT+2*j+1}], v{vFO}, s[20:23], 0 offen offset:{32*j}")
            a(f"s_waitcnt vmcnt({ {5:18,6:14,7:5}[k] })")
            a.label(l2)
        mm(a,k,False)
    a("s_add_u32 s45, s45, 1"); a("s_cmp_lt_u32 s45, 2"); a("s_cbranch_scc1 K23_FL")
    a.vm=["b2"]*5
    a.label("K23_SKIPF")
    stamp(a,1)
    a("s_nop 7")
    for t in range(4):
        for j in range(5):
            d=ACC+4*(5*t+j)
            a.lds(f"ds_write_b128 v{vRW}, v[{d}:{d+3}] offset:{(t*5+j)*1024}","rw")
    a.wait_lg_all(); fsync(a,4)
    stamp(a,2)
    for w in range(4):
        for j in range(5):
            r = G+4*j if w==0 else ACC+20*w+4*j
            a.lds(f"ds_read_b128 v[{r}:{r+3}], v{vRR if w<2 else vRR2} offset:{(w&1)*20480+j*1024}","rr")
    a.wait_lg_all()
    fsync(a,8)
    a("s_mul_i32 s47, s36, 25600")
    for kk in range(5):
        a(f"s_add_u32 s60, s43, {kk*40960}")
        for j in range(5):
            a(f"s_add_u32 m0, s47, {kk*5120+j*1024}")
            if j: a("s_add_u32 s60, s60, 1024")
            else: a("s_nop 0")
            a.vmem(f"buffer_load_dwordx4 v{vA}, s[16:19], s60 offen lds","WO")
    for w in range(1,4):
        for k in range(20): a(f"v_add_f32 v{G+k}, v{G+k}, v{ACC+20*w+k}")
    a.wait_vm("b2")
    a("s_mov_b32 s44, 0xbfb8aa3b")
    for j in range(5):
        for h in range(2):
            a(f"v_lshlrev_b32 v{TP}, 16, v{TT+2*j+h}"); a(f"v_and_b32 v{TP+1}, 0xffff0000, v{TT+2*j+h}")
            for e in range(2):
                r=G+4*j+2*h+e
                a(f"v_add_f32 v{r}, v{r}, v{TP+e}")
                a(f"v_mul_f32 v{TP+2+e}, s44, v{r}"); a(f"v_exp_f32 v{TP+2+e}, v{TP+2+e}"); a("s_nop 0")
                a(f"v_add_f32 v{TP+2+e}, 1.0, v{TP+2+e}"); a(f"v_rcp_f32 v{TP+2+e}, v{TP+2+e}"); a("s_nop 0")
                a(f"v_mul_f32 v{r}, v{r}, v{TP+2+e}")
    for j in range(5): a.vmem(f"buffer_load_dwordx2 v[{TT+2*j}:{TT+2*j+1}], v{vX}, s[8:11], 0 offen offset:{32*j}","xr")
    a(f"v_add_u32 v{vW}, 51200, v{vA}")
    a.wait_vm_all()
    fsync(a,12)
    a("s_lshl_b32 s37, s34, 8"); a("s_lshl_b32 s38, s36, 2"); a("s_add_u32 s37, s37, s38"); a(f"s_add_u32 s37, s37, {CNT}")
    a(f"v_mov_b32 v{TP+6}, s37")
    a.label("K23_POLL")
    a(f"global_load_dword v{TP+7}, v{TP+6}, s[30:31] sc1")
    a("s_waitcnt vmcnt(0)")
    a(f"v_readfirstlane_b32 s38, v{TP+7}")
    a("s_cmp_ge_u32 s38, 8"); a("s_cbranch_scc1 K23_PD")
    a("s_sleep 4"); a("s_branch K23_POLL")
    a.label("K23_PD")
    stamp(a,3)
    OFR=80; WR_=160; NR=10
    if k2.SENT: a(f"v_mov_b32 v{TP+5}, 0")
    for kg in range(20):
        a(f"s_add_u32 s60, s42, {kg*1024}")
        a.vmem(f"buffer_load_dwordx4 v[{OFR+4*kg}:{OFR+4*kg+3}], v{vA}, s[16:19], s60 offen sc1",f"O{kg}")
    def rdw(i):
        kg,j=divmod(i,5); off=kg*5120+j*1024
        b=WR_+4*(i%NR)
        a.lds(f"ds_read_b128 v[{b}:{b+3}], v{vA if off<51200 else vW} offset:{off if off<51200 else off-51200}",f"w{i}")
    for i in range(NR-2): rdw(i)
    for i in range(100):
        kg,j=divmod(i,5)
        if j==0: a.wait_vm(f"O{kg}")
        a.wait_lg(f"w{i}")
        d=4*j; b=WR_+4*(i%NR)
        c="0" if kg==0 else f"v[{d}:{d+3}]"
        a(f"v_mfma_f32_16x16x32_bf16 v[{d}:{d+3}], v[{b}:{b+3}], v[{OFR+4*kg}:{OFR+4*kg+3}], {c}")
        if i+NR-2<100: rdw(i+NR-2)
        if k2.SENT and j in (1,2):
            q=OFR+4*kg+2*(j-1)
            a(f"v_max3_u32 v{TP+5}, v{TP+5}, v{q}, v{q+1}")
    if k2.SENT:
        a(f"v_cmp_eq_u32 vcc, -1, v{TP+5}")
        a("s_cbranch_vccz K23_OK")
        a("s_sleep 1"); a("s_branch K23_PD")
        a.label("K23_OK")
    stamp(a,4)
    a("s_nop 7")
    T2=TP
    for j in range(5):
        for h in range(2):
            a(f"v_lshlrev_b32 v{T2}, 16, v{TT+2*j+h}"); a(f"v_and_b32 v{T2+1}, 0xffff0000, v{TT+2*j+h}")
            for e in range(2):
                a(f"v_fma_f32 v{T2+e}, v{4*j+2*h+e}, v{G+4*j+2*h+e}, v{T2+e}")
            a(f"v_cvt_pk_bf16_f32 v{T2+4+h}, v{T2}, v{T2+1}")
        a(f"buffer_store_dwordx2 v[{T2+4}:{T2+5}], v{vX}, s[12:15], 0 offen offset:{32*j}")
        a("s_nop 1")
    if STAMP:
        a("s_waitcnt vmcnt(0)"); stamp(a,5); stamp_out(a,6,8,144,1)
    a.label("K23_END")
    a("s_endpgm")
```

```python
from asmlib import *
from k1 import QH,KH,VT,VTP,HF,W2F,WOF,OF,GB
import k2,k3
ACC=0; FR=80; NS=4; G=200
vA=224; vW=225; vL=226; vX=227; vRW=228; vRR=229; vRR2=230; vFO=231; TT=232; TP=242; LCNT=102400
def gemm_part(a, nk, sA, sW, strideA_kg, tag):
    def ld(k):
        b=FR+36*(k%NS)
        a(f"s_add_u32 s61, s{sA}, s46")
        for t in range(4):
            if t: a(f"s_add_u32 s60, s61, {t*strideA_kg}")
            a.vmem(f"buffer_load_dwordx4 v[{b+4*t}:{b+4*t+3}], v{vA}, s[16:19], s{60 if t else 61} offen",f"{tag}{k}")
        a(f"s_add_u32 s60, s{sW}, s47")
        for j in range(5):
            if j==4:
                a.vmem(f"buffer_load_dwordx4 v[{b+16+4*j}:{b+16+4*j+3}], v{vW}, s[16:19], s60 offen",f"{tag}{k}")
            else:
                a.vmem(f"buffer_load_dwordx4 v[{b+16+4*j}:{b+16+4*j+3}], v{vA}, s[16:19], s60 offen offset:{1024*j}",f"{tag}{k}")
        a("s_add_u32 s46, s46, 1024"); a("s_add_u32 s47, s47, 40960")
        a("s_cmp_eq_u32 s46, 12288"); a("s_cselect_b32 s46, 0, s46"); a("s_cselect_b32 s47, 0, s47")
    return ld
def mm(a,k,first):
    b=FR+36*(k%NS)
    for t in range(4):
        for j in range(5):
            d=ACC+4*(5*t+j)
            c="0" if first else f"v[{d}:{d+3}]"
            a(f"v_mfma_f32_16x16x32_bf16 v[{d}:{d+3}], v[{b+16+4*j}:{b+16+4*j+3}], v[{b+4*t}:{b+4*t+3}], {c}")
def reduce(a, dst):
    a("s_nop 7")
    for t in range(4):
        for j in range(5):
            d=ACC+4*(5*t+j)
            a.lds(f"ds_write_b128 v{vRW}, v[{d}:{d+3}] offset:{(t*5+j)*1024}","rw")
    a.wait_lg_all(); a("s_barrier")
    for w in range(4):
        for j in range(5):
            r = dst+4*j if w==0 else ACC+20*w+4*j
            a.lds(f"ds_read_b128 v[{r}:{r+3}], v{vRR if w<2 else vRR2} offset:{(w&1)*20480+j*1024}","rr")
    a.wait_lg_all()
    for w in range(1,4):
        for k in range(20): a(f"v_add_f32 v{dst+k}, v{dst+k}, v{ACC+20*w+k}")
CNT=0x1C10000
import os
NOPOLL=int(os.environ.get('NOPOLL','0'))
def fsync(a,off):
    l=a.newlabel("FS"); d=a.newlabel("FSD")
    a(f"v_mov_b32 v{TP+6}, {LCNT+off}"); a(f"v_mov_b32 v{TP+7}, 1")
    a("s_mov_b64 exec, 1")
    a(f"ds_add_u32 v{TP+6}, v{TP+7}")
    a.label(l)
    a(f"ds_read_b32 v{TP+7}, v{TP+6}")
    a("s_waitcnt lgkmcnt(0)")
    a(f"v_readfirstlane_b32 s62, v{TP+7}")
    a("s_cmp_ge_u32 s62, 4"); a(f"s_cbranch_scc1 {d}")
    a("s_sleep 1"); a(f"s_branch {l}")
    a.label(d)
    a("s_mov_b64 exec, -1")
def gen_k23(a):
    a.label("k23_kernel")
    a("s_cmp_ge_u32 s2, 256"); a("s_cbranch_scc1 K23_END")
    stamp(a,0); stamp(a,10)
    a("s_load_dwordx2 s[4:5], s[0:1], 0")
    a("s_load_dwordx4 s[24:27], s[0:1], 56")
    a("s_load_dwordx4 s[28:31], s[0:1], 72")
    a("v_lshrrev_b32 v1, 6, v0"); a("s_nop 0"); a("v_readfirstlane_b32 s33, v1")
    a("s_and_b32 s36, s33, 3")
    a("s_and_b32 s34, s2, 7"); a("s_lshl_b32 s34, s34, 2"); a("s_lshr_b32 s35, s2, 6"); a("s_add_u32 s34, s34, s35"); a("s_bfe_u32 s35, s2, 0x30003")
    a(f"v_mov_b32 v1, {LCNT}"); a("v_mov_b32 v2, 0"); a("v_mov_b32 v3, 0"); a("ds_write_b64 v1, v[2:3]"); a("ds_write_b64 v1, v[2:3] offset:8"); a("ds_write_b64 v1, v[2:3] offset:16"); a("ds_write_b64 v1, v[2:3] offset:24")
    a("s_cmp_ge_u32 s33, 4"); a("s_cbranch_scc1 K23_F")
    a(f"v_and_b32 v{k2.vL}, 63, v0")
    a("s_lshl_b32 s35, s35, 2"); a("s_add_u32 s35, s35, s36")
    a("s_waitcnt lgkmcnt(0)")
    k2.attn_srds(a,30,31)
    import os
    a(f"s_setprio {os.environ.get('APRIO','3')}")
    def signal():
        l=a.newlabel("SG")
        a("s_lshl_b32 s95, s94, 2"); a(f"s_add_u32 s96, s95, {LCNT+16}")
        a("v_mov_b32 v254, s96"); a("v_mov_b32 v255, 1")
        a("s_mov_b64 exec, 1")
        a("ds_add_rtn_u32 v255, v254, v255")
        a("s_waitcnt lgkmcnt(0)")
        a("v_readfirstlane_b32 s96, v255")
        a("s_cmp_lg_u32 s96, 3"); a(f"s_cbranch_scc1 {l}")
        a("s_lshl_b32 s96, s34, 8"); a("s_add_u32 s96, s96, s95"); a(f"s_add_u32 s96, s96, {CNT}")
        a("v_mov_b32 v254, s96"); a("v_mov_b32 v255, 1")
        a("global_atomic_add v254, v255, s[30:31] sc1")
        a.label(l)
        a("s_mov_b64 exec, -1")
    k2.attn_loop(a,34,35,"K2",sc1="sc1",signal=None if NOPOLL else signal)
    a("s_endpgm")
    a.label("K23_F"); a.vm=[]; a.lg=[]
    a(f"v_and_b32 v{vL}, 63, v0")
    a("s_waitcnt lgkmcnt(0)")
    srd(a,16,30,31,0x2000000); srd(a,8,4,5,2048*1280); srd(a,12,26,27,2048*1280); srd(a,20,24,25,1280)
    a(f"v_lshlrev_b32 v{vA}, 4, v{vL}"); a(f"v_add_u32 v{vW}, 4096, v{vA}")
    a("s_mul_i32 s40, s34, 200704"); a("s_mul_i32 s37, s36, 12288"); a("s_add_u32 s40, s40, s37"); a(f"s_add_u32 s40, s40, {HF}")
    a("s_mul_i32 s41, s36, 491520"); a("s_mul_i32 s37, s35, 5120"); a("s_add_u32 s41, s41, s37"); a(f"s_add_u32 s41, s41, {W2F}")
    a("s_and_b32 s46, s34, 3"); a("s_mul_i32 s46, s46, 3"); a("s_add_u32 s46, s46, s35"); a("s_lshr_b32 s47, s35, 1"); a("s_add_u32 s46, s46, s47")
    a("s_cmp_ge_u32 s46, 12"); a("s_cbranch_scc0 K23_R0"); a("s_sub_u32 s46, s46, 12"); a.label("K23_R0")
    a("s_mul_i32 s47, s46, 40960"); a("s_lshl_b32 s46, s46, 10")
    ld=gemm_part(a,12,40,41,50176,"F")
    a("s_barrier")
    import os
    if os.environ.get("NOF"): a("s_branch K23_SKIPF")
    ld(0); ld(1); ld(2)
    a("s_mul_i32 s37, s36, 20480"); a(f"v_add_u32 v{vRW}, s37, v{vA}")
    a("s_mul_i32 s37, s36, 5120"); a(f"v_add_u32 v{vRR}, s37, v{vA}"); a(f"v_add_u32 v{vRR2}, 40960, v{vRR}")
    a("s_mul_i32 s42, s34, 81920"); a("s_mul_i32 s37, s36, 20480"); a("s_add_u32 s42, s42, s37"); a(f"s_add_u32 s42, s42, {OF}")
    a("s_mul_i32 s43, s36, 204800"); a("s_mul_i32 s37, s35, 5120"); a("s_add_u32 s43, s43, s37"); a(f"s_add_u32 s43, s43, {WOF}")
    a(f"v_and_b32 v1, 15, v{vL}"); a(f"v_lshrrev_b32 v2, 4, v{vL}")
    a("s_lshl_b32 s37, s34, 6"); a("s_lshl_b32 s38, s36, 4"); a("s_add_u32 s37, s37, s38"); a("v_add_u32 v1, s37, v1"); a("v_mul_u32_u24 v1, 1280, v1")
    a("s_mul_i32 s38, s35, 160"); a("v_lshlrev_b32 v2, 3, v2"); a("v_add_u32 v2, s38, v2"); a(f"v_add_u32 v{vX}, v1, v2")
    a(f"v_mov_b32 v{vFO}, v2")
    for k in range(4):
        ld(k+3); a.wait_vm(f"F{k}"); mm(a,k,k==0)
    a("s_mov_b32 s45, 0"); a.label("K23_FL")
    for k in range(4,8):
        if k==4:
            ld(k+3); a("s_waitcnt vmcnt(27)")
        else:
            l1=a.newlabel("FLs"); l2=a.newlabel("FLt")
            a("s_cmp_eq_u32 s45, 1"); a(f"s_cbranch_scc1 {l1}")
            ld(k+3); a("s_waitcnt vmcnt(27)"); a(f"s_branch {l2}")
            a.label(l1)
            if k==6:
                for j in range(5): a(f"buffer_load_dwordx2 v[{TT+2*j}:{TT+2*j+1}], v{vFO}, s[20:23], 0 offen offset:{32*j}")
            a(f"s_waitcnt vmcnt({ {5:18,6:14,7:5}[k] })")
            a.label(l2)
        mm(a,k,False)
    a("s_add_u32 s45, s45, 1"); a("s_cmp_lt_u32 s45, 2"); a("s_cbranch_scc1 K23_FL")
    a.vm=["b2"]*5
    a.label("K23_SKIPF")
    stamp(a,1)
    a("s_nop 7")
    for t in range(4):
        for j in range(5):
            d=ACC+4*(5*t+j)
            a.lds(f"ds_write_b128 v{vRW}, v[{d}:{d+3}] offset:{(t*5+j)*1024}","rw")
    a.wait_lg_all(); fsync(a,4)
    stamp(a,2)
    for w in range(4):
        for j in range(5):
            r = G+4*j if w==0 else ACC+20*w+4*j
            a.lds(f"ds_read_b128 v[{r}:{r+3}], v{vRR if w<2 else vRR2} offset:{(w&1)*20480+j*1024}","rr")
    a.wait_lg_all()
    fsync(a,8)
    a("s_mul_i32 s47, s36, 25600")
    for kk in range(5):
        a(f"s_add_u32 s60, s43, {kk*40960}")
        for j in range(5):
            a(f"s_add_u32 m0, s47, {kk*5120+j*1024}")
            if j: a("s_add_u32 s60, s60, 1024")
            else: a("s_nop 0")
            a.vmem(f"buffer_load_dwordx4 v{vA}, s[16:19], s60 offen lds","WO")
    for w in range(1,4):
        for k in range(20): a(f"v_add_f32 v{G+k}, v{G+k}, v{ACC+20*w+k}")
    a.wait_vm("b2")
    a("s_mov_b32 s44, 0xbfb8aa3b")
    for j in range(5):
        for h in range(2):
            a(f"v_lshlrev_b32 v{TP}, 16, v{TT+2*j+h}"); a(f"v_and_b32 v{TP+1}, 0xffff0000, v{TT+2*j+h}")
            for e in range(2):
                r=G+4*j+2*h+e
                a(f"v_add_f32 v{r}, v{r}, v{TP+e}")
                a(f"v_mul_f32 v{TP+2+e}, s44, v{r}"); a(f"v_exp_f32 v{TP+2+e}, v{TP+2+e}"); a("s_nop 0")
                a(f"v_add_f32 v{TP+2+e}, 1.0, v{TP+2+e}"); a(f"v_rcp_f32 v{TP+2+e}, v{TP+2+e}"); a("s_nop 0")
                a(f"v_mul_f32 v{r}, v{r}, v{TP+2+e}")
    for j in range(5): a.vmem(f"buffer_load_dwordx2 v[{TT+2*j}:{TT+2*j+1}], v{vX}, s[8:11], 0 offen offset:{32*j}","xr")
    a(f"v_add_u32 v{vW}, 51200, v{vA}")
    a.wait_vm_all()
    fsync(a,12)
    if not NOPOLL:
        a("s_lshl_b32 s37, s34, 8"); a("s_lshl_b32 s38, s36, 2"); a("s_add_u32 s37, s37, s38"); a(f"s_add_u32 s37, s37, {CNT}")
        a(f"v_mov_b32 v{TP+6}, s37")
        a.label("K23_POLL")
        a(f"global_load_dword v{TP+7}, v{TP+6}, s[30:31] sc1")
        a("s_waitcnt vmcnt(0)")
        a(f"v_readfirstlane_b32 s38, v{TP+7}")
        a("s_cmp_ge_u32 s38, 8"); a("s_cbranch_scc1 K23_PD")
        a("s_sleep 4"); a("s_branch K23_POLL")
    a.label("K23_PD")
    stamp(a,3)
    OFR=80; WR_=160; NR=10
    if k2.SENT: a(f"v_mov_b32 v{TP+5}, 0")
    for kg in range(20):
        a(f"s_add_u32 s60, s42, {kg*1024}")
        a.vmem(f"buffer_load_dwordx4 v[{OFR+4*kg}:{OFR+4*kg+3}], v{vA}, s[16:19], s60 offen sc1",f"O{kg}")
    def rdw(i):
        kg,j=divmod(i,5); off=kg*5120+j*1024
        b=WR_+4*(i%NR)
        a.lds(f"ds_read_b128 v[{b}:{b+3}], v{vA if off<51200 else vW} offset:{off if off<51200 else off-51200}",f"w{i}")
    for i in range(NR-2): rdw(i)
    for i in range(100):
        kg,j=divmod(i,5)
        if j==0: a.wait_vm(f"O{kg}")
        a.wait_lg(f"w{i}")
        d=4*j; b=WR_+4*(i%NR)
        c="0" if kg==0 else f"v[{d}:{d+3}]"
        a(f"v_mfma_f32_16x16x32_bf16 v[{d}:{d+3}], v[{b}:{b+3}], v[{OFR+4*kg}:{OFR+4*kg+3}], {c}")
        if i+NR-2<100: rdw(i+NR-2)
        if k2.SENT and j in (1,2):
            q=OFR+4*kg+2*(j-1)
            a(f"v_max3_u32 v{TP+5}, v{TP+5}, v{q}, v{q+1}")
    if k2.SENT:
        a(f"v_cmp_eq_u32 vcc, -1, v{TP+5}")
        a("s_cbranch_vccz K23_OK")
        a("s_sleep 1"); a("s_branch K23_PD")
        a.label("K23_OK")
    stamp(a,4)
    a("s_nop 7")
    T2=TP
    for j in range(5):
        for h in range(2):
            a(f"v_lshlrev_b32 v{T2}, 16, v{TT+2*j+h}"); a(f"v_and_b32 v{T2+1}, 0xffff0000, v{TT+2*j+h}")
            for e in range(2):
                a(f"v_fma_f32 v{T2+e}, v{4*j+2*h+e}, v{G+4*j+2*h+e}, v{T2+e}")
            a(f"v_cvt_pk_bf16_f32 v{T2+4+h}, v{T2}, v{T2+1}")
        a(f"buffer_store_dwordx2 v[{T2+4}:{T2+5}], v{vX}, s[12:15], 0 offen offset:{32*j}")
        a("s_nop 1")
    if STAMP:
        a("s_waitcnt vmcnt(0)"); stamp(a,5); stamp_out(a,6,8,144,1)
    a.label("K23_END")
    a("s_endpgm")
```

```python
import os
from asmlib import *
from k1 import QH,KH,VT,VTP,HF,W2F,WOF,OF,GB
import os
SENT=int(os.environ.get('SENT','1'))
KF=0; VF=72; S=144; Q=216; O=232
vKO=240; vVO=241; vVO1=242; vQO=243; vOO=244; vOO1=245; vNEG=246; vM=247; vT=248; vT2=249; vBP=250; vL=251

def attn_body(a, s_m, s_h, pfx, sc1=""):
    L=vL
    a(f"v_and_b32 v151, 15, v{L}"); a(f"v_lshrrev_b32 v152, 4, v{L}")
    a("v_lshrrev_b32 v153, 2, v151"); a("v_and_b32 v154, 3, v151"); a("v_lshl_add_u32 v153, v153, 3, v154")
    a(f"s_lshl_b32 s72, s{s_h}, 11"); a(f"s_lshl_b32 s73, s{s_m}, 6"); a("s_add_u32 s72, s72, s73")
    a("s_mul_i32 s74, s72, 40")
    a("v_mul_u32_u24 v153, 40, v153"); a("v_lshl_add_u32 v153, v152, 4, v153"); a(f"v_add_u32 v{vKO}, s74, v153")
    a("v_mul_u32_u24 v153, 40, v151"); a("v_lshl_add_u32 v153, v152, 4, v153"); a(f"v_add_u32 v{vQO}, s74, v153")
    a(f"s_mul_i32 s75, s{s_h}, 20"); a("v_add_u32 v153, s75, v151"); a(f"v_mul_u32_u24 v153, {VTP}, v153")
    a("v_lshl_add_u32 v153, v152, 4, v153"); a("s_lshl_b32 s76, s73, 1"); a(f"v_add_u32 v{vVO}, s76, v153")
    a(f"v_add_u32 v{vVO1}, {16*VTP}, v{vVO}")
    def ldK(g):
        sl=g%9
        a(f"s_movk_i32 s77, {1280*g}")
        for ab in range(2):
            a.vmem(f"buffer_load_dwordx4 v[{KF+8*sl+4*ab}:{KF+8*sl+4*ab+3}], v{vKO}, s[8:11], s77 offen offset:{160*ab}",f"K{g}")
    def ldV(g):
        sl=g%9
        a.vmem(f"buffer_load_dwordx4 v[{VF+8*sl}:{VF+8*sl+3}], v{vVO}, s[12:15], 0 offen offset:{64*g}",f"V{g}")
        a("s_mov_b64 exec, s[78:79]")
        a.vmem(f"buffer_load_dwordx4 v[{VF+8*sl+4}:{VF+8*sl+7}], v{vVO1}, s[12:15], 0 offen offset:{64*g}",f"V{g}")
        a("s_mov_b64 exec, -1")
    a("v_cmp_gt_u32 s[78:79], 4, v151")
    for qb in range(4):
        a.vmem(f"buffer_load_dwordx4 v[{Q+4*qb}:{Q+4*qb+3}], v{vQO}, s[16:19], 0 offen offset:{640*qb}","Q")
    for g in range(9): ldK(g)
    a("v_cmp_eq_u32 vcc, 4, v151"); a("v_mov_b32 v153, 0x3f803f80"); a("s_nop 0"); a("v_cndmask_b32 v153, 0, v153, vcc")
    for sl in range(9):
        for r in range(4): a(f"v_mov_b32 v{VF+8*sl+4+r}, v153")
    for g in range(9): ldV(g)
    a("v_lshlrev_b32 v153, 3, v152")
    for par in range(2):
        for k in range(8):
            a(f"v_add_u32 v154, {k-16*par}, v153")
            a(f"v_cmp_le_i32 s[{40+2*(8*par+k)}:{41+2*(8*par+k)}], v154, v151")
    a(f"v_mov_b32 v{vNEG}, 0xf149f2ca")
    a("v_lshl_add_u32 v153, v152, 2, s75")
    a("v_lshrrev_b32 v154, 5, v153"); a("v_lshlrev_b32 v154, 10, v154"); a("v_lshl_add_u32 v154, v151, 4, v154")
    a("v_bfe_u32 v155, v153, 3, 2"); a("v_lshl_add_u32 v154, v155, 8, v154"); a("v_and_b32 v155, 4, v153"); a(f"v_lshl_add_u32 v{vOO}, v155, 1, v154")
    a("s_add_u32 s80, s75, 16"); a("s_lshr_b32 s81, s80, 5"); a("s_lshl_b32 s81, s81, 10"); a("s_bfe_u32 s82, s80, 0x20003"); a("s_lshl_b32 s82, s82, 8")
    a("s_add_u32 s81, s81, s82"); a("s_and_b32 s82, s80, 4"); a("s_lshl_b32 s82, s82, 1"); a("s_add_u32 s81, s81, s82")
    a(f"v_lshl_add_u32 v{vOO1}, v151, 4, s81")
    a(f"v_add_u32 v{vBP}, 16, v151"); a(f"v_lshlrev_b32 v{vBP}, 2, v{vBP}")
    a(f"s_mul_i32 s83, s{s_m}, 81920"); a(f"s_add_u32 s83, s83, {OF}")
    a("v_cmp_gt_u32 s[84:85], 3, v152"); a("v_cmp_gt_u32 s[86:87], 2, v152"); a("v_cmp_eq_u32 s[88:89], 0, v152")
    a.wait_vm("Q")
    for qb in range(4):
        for r in range(4): a(f"v_cndmask_b32 v{Q+4*qb+r}, 0, v{Q+4*qb+r}, s[{84 if r<2 else 86}:{85 if r<2 else 87}]")
    a(f"s_lshl_b32 s90, s{s_m}, 1"); a("s_sub_i32 s90, 8, s90"); a("s_max_i32 s90, s90, 0")
    def zeroV(g):
        lab=a.newlabel(pfx+"zv"); sl=g%9
        a(f"s_cmp_gt_u32 s90, {g}"); a(f"s_cbranch_scc0 {lab}")
        for r in range(4): a(f"v_mov_b32 v{VF+8*sl+r}, 0");
        a("s_mov_b64 exec, s[78:79]")
        for r in range(4): a(f"v_mov_b32 v{VF+8*sl+4+r}, 0")
        a("s_mov_b64 exec, -1")
        a.label(lab)
    for qb in range(4):
        g0=qb>>1; par=qb&1
        for gr in range(9):
            g=g0+gr; sl=g%9
            a.wait_vm(f"K{g}")
            for ab in range(2):
                a(f"v_mfma_f32_16x16x32_bf16 v[{S+8*gr+4*ab}:{S+8*gr+4*ab+3}], v[{KF+8*sl+4*ab}:{KF+8*sl+4*ab+3}], v[{Q+4*qb}:{Q+4*qb+3}], 0")
        if qb==1: ldK(9)
        a("s_nop 7")
        for k in range(8):
            m=f"s[{40+2*(8*par+k)}:{41+2*(8*par+k)}]"
            a(f"v_cndmask_b32 v{S+k}, v{S+k}, v{vNEG}, {m}")
            a(f"v_cndmask_b32 v{S+64+k}, v{vNEG}, v{S+64+k}, {m}")
        for gr in range(8):
            g=g0+gr
            if g<8:
                lab=a.newlabel(pfx+"inv")
                a(f"s_cmp_gt_u32 s90, {g}"); a(f"s_cbranch_scc0 {lab}")
                for k in range(8): a(f"v_mov_b32 v{S+8*gr+k}, v{vNEG}")
                a.label(lab)
        a(f"v_max3_f32 v{vM}, v{S}, v{S+1}, v{S+2}")
        for k in range(3,71,2): a(f"v_max3_f32 v{vM}, v{vM}, v{S+k}, v{S+k+1}")
        a(f"v_max_f32 v{vM}, v{vM}, v{S+71}")
        a(f"v_mov_b32 v{vT}, v{vM}"); a("s_nop 1"); a(f"v_permlane32_swap_b32 v{vM}, v{vT}"); a("s_nop 1"); a(f"v_max_f32 v{vM}, v{vM}, v{vT}")
        a(f"v_mov_b32 v{vT}, v{vM}"); a("s_nop 1"); a(f"v_permlane16_swap_b32 v{vM}, v{vT}"); a("s_nop 1"); a(f"v_max_f32 v{vM}, v{vM}, v{vT}")
        for gr in range(9):
            g=g0+gr; sl=g%9; b=S+8*gr
            for k in range(8): a(f"v_sub_f32 v{b+k}, v{b+k}, v{vM}")
            for k in range(8): a(f"v_exp_f32 v{b+k}, v{b+k}")
            a("s_nop 0")
            for k in range(4): a(f"v_cvt_pk_bf16_f32 v{b+k}, v{b+2*k}, v{b+2*k+1}")
            a.wait_vm(f"V{g}")
            if qb in (0,) and g<8: zeroV(g)
            a("s_nop 1")
            for dt in range(2):
                c = "0" if gr==0 else f"v[{O+4*dt}:{O+4*dt+3}]"
                a(f"v_mfma_f32_16x16x32_bf16 v[{O+4*dt}:{O+4*dt+3}], v[{VF+8*sl+4*dt}:{VF+8*sl+4*dt+3}], v[{b}:{b+3}], {c}")
        if qb==1: ldV(9)
        a("s_nop 7")
        a(f"ds_bpermute_b32 v{vT}, v{vBP}, v{O+4}")
        a("s_waitcnt lgkmcnt(0)")
        a(f"v_rcp_f32 v{vT}, v{vT}"); a("s_nop 0")
        for k in range(8): a(f"v_mul_f32 v{O+k}, v{O+k}, v{vT}")
        for k in range(4): a(f"v_cvt_pk_bf16_f32 v{O+k}, v{O+2*k}, v{O+2*k+1}")
        a(f"s_add_u32 s91, s83, {20480*qb}")
        a.vmem(f"buffer_store_dwordx2 v[{O}:{O+1}], v{vOO}, s[16:19], s91 offen {sc1}","st")
        a("s_mov_b64 exec, s[88:89]")
        a.vmem(f"buffer_store_dwordx2 v[{O+2}:{O+3}], v{vOO1}, s[16:19], s91 offen {sc1}","st")
        a("s_mov_b64 exec, -1")
        a("s_nop 1")

def attn_loop(a, s_m, s_h, pfx, sc1="", signal=None):
    L=vL
    a(f"v_and_b32 v151, 15, v{L}"); a(f"v_lshrrev_b32 v152, 4, v{L}")
    a("v_lshrrev_b32 v153, 2, v151"); a("v_and_b32 v154, 3, v151"); a("v_lshl_add_u32 v153, v153, 3, v154")
    a(f"s_lshl_b32 s72, s{s_h}, 11"); a(f"s_lshl_b32 s73, s{s_m}, 6"); a("s_add_u32 s72, s72, s73")
    a("s_mul_i32 s74, s72, 40")
    a("v_mul_u32_u24 v153, 40, v153"); a("v_lshl_add_u32 v153, v152, 4, v153"); a(f"v_add_u32 v{vKO}, s74, v153")
    a("v_mul_u32_u24 v153, 40, v151"); a("v_lshl_add_u32 v153, v152, 4, v153"); a(f"v_add_u32 v{vQO}, s74, v153")
    a(f"s_mul_i32 s75, s{s_h}, 20")
    a(f"s_mul_i32 s76, s{s_h}, 81920"); a(f"s_mul_i32 s77, s{s_m}, 2560"); a("s_add_u32 s76, s76, s77")
    a("v_lshlrev_b32 v153, 6, v151"); a("v_lshl_add_u32 v153, v152, 4, v153"); a(f"v_add_u32 v{vVO}, s76, v153")
    def ldK(g):
        sl=g%9
        a(f"s_movk_i32 s77, {1280*g}")
        for ab in range(2):
            a.vmem(f"buffer_load_dwordx4 v[{KF+8*sl+4*ab}:{KF+8*sl+4*ab+3}], v{vKO}, s[8:11], s77 offen offset:{160*ab}",f"K{g}")
    def ldV(g):
        sl=g%9
        a(f"s_movk_i32 s77, {1280*g}")
        a.vmem(f"buffer_load_dwordx4 v[{VF+8*sl}:{VF+8*sl+3}], v{vVO}, s[12:15], s77 offen",f"V{g}")
        a("s_mov_b64 exec, s[78:79]")
        a.vmem(f"buffer_load_dwordx4 v[{VF+8*sl+4}:{VF+8*sl+7}], v{vVO}, s[12:15], s77 offen offset:1024",f"V{g}")
        a("s_mov_b64 exec, -1")
    a("v_cmp_gt_u32 s[78:79], 4, v151")
    for qb in range(4):
        a.vmem(f"buffer_load_dwordx4 v[{Q+4*qb}:{Q+4*qb+3}], v{vQO}, s[16:19], 0 offen offset:{640*qb}","Q")
    for g in range(9): ldK(g)
    a("v_cmp_eq_u32 vcc, 4, v151"); a("v_mov_b32 v153, 0x3f803f80"); a("s_nop 0"); a("v_cndmask_b32 v153, 0, v153, vcc")
    for sl in range(9):
        for r in range(4): a(f"v_mov_b32 v{VF+8*sl+4+r}, v153")
    for g in range(9): ldV(g)
    a("s_waitcnt lgkmcnt(0)"); a("s_barrier")
    a("v_lshlrev_b32 v253, 3, v152"); a("v_mov_b32 v252, v151")
    a(f"v_mov_b32 v{vNEG}, 0xf149f2ca")
    a("v_lshl_add_u32 v153, v152, 2, s75")
    a("v_lshrrev_b32 v154, 5, v153"); a("v_lshlrev_b32 v154, 10, v154"); a("v_lshl_add_u32 v154, v151, 4, v154")
    a("v_bfe_u32 v155, v153, 3, 2"); a("v_lshl_add_u32 v154, v155, 8, v154"); a("v_and_b32 v155, 4, v153"); a(f"v_lshl_add_u32 v{vOO}, v155, 1, v154")
    a("s_add_u32 s80, s75, 16"); a("s_lshr_b32 s81, s80, 5"); a("s_lshl_b32 s81, s81, 10"); a("s_bfe_u32 s82, s80, 0x20003"); a("s_lshl_b32 s82, s82, 8")
    a("s_add_u32 s81, s81, s82"); a("s_and_b32 s82, s80, 4"); a("s_lshl_b32 s82, s82, 1"); a("s_add_u32 s81, s81, s82")
    a(f"v_lshl_add_u32 v{vOO1}, v151, 4, s81")
    a(f"v_add_u32 v{vBP}, 16, v151"); a(f"v_lshlrev_b32 v{vBP}, 2, v{vBP}")
    a(f"s_mul_i32 s83, s{s_m}, 81920"); a(f"s_add_u32 s83, s83, {OF}")
    a("v_cmp_gt_u32 s[84:85], 3, v152"); a("v_cmp_gt_u32 s[86:87], 2, v152"); a("v_cmp_eq_u32 s[88:89], 0, v152")
    a.wait_vm("Q")
    for qb in range(4):
        for r in range(4): a(f"v_cndmask_b32 v{Q+4*qb+r}, 0, v{Q+4*qb+r}, s[{84 if r<2 else 86}:{85 if r<2 else 87}]")
    a(f"s_lshl_b32 s90, s{s_m}, 1"); a("s_sub_i32 s90, 8, s90"); a("s_max_i32 s90, s90, 0")
    def zeroV(g):
        lab=a.newlabel(pfx+"zv"); sl=g%9
        a(f"s_cmp_gt_u32 s90, {g}"); a(f"s_cbranch_scc0 {lab}")
        for r in range(4): a(f"v_mov_b32 v{VF+8*sl+r}, 0");
        a("s_mov_b64 exec, s[78:79]")
        for r in range(4): a(f"v_mov_b32 v{VF+8*sl+4+r}, 0")
        a("s_mov_b64 exec, -1")
        a.label(lab)
    a("s_waitcnt vmcnt(0)"); a.vm=[]
    for g in range(8): zeroV(g)
    stamp(a,11)
    a("s_mov_b32 s92, 0"); a("s_mov_b32 s91, s83")
    lp=pfx+"_QB"
    a.label(lp)
    if STAMP:
        a("s_memtime s[100:101]"); a("s_waitcnt lgkmcnt(0)")
        a("s_cmp_eq_u32 s92, 1"); a("s_cselect_b32 s98, s100, s98"); a("s_cmp_eq_u32 s92, 2"); a("s_cselect_b32 s99, s100, s99")
    for sl in (1,2,3,4,5,6,7,8,0):
        if sl==0: a("s_waitcnt vmcnt(4)")
        for ab in range(2):
            a(f"v_mfma_f32_16x16x32_bf16 v[{S+8*sl+4*ab}:{S+8*sl+4*ab+3}], v[{KF+8*sl+4*ab}:{KF+8*sl+4*ab+3}], v[{Q}:{Q+3}], 0")
    a("s_cmp_lg_u32 s92, 1"); a(f"s_cbranch_scc1 {lp}_a")
    ldK(9)
    a.label(lp+"_a")
    a("s_and_b32 s93, s92, 1"); a("s_lshl_b32 s93, s93, 4")
    a("v_subrev_u32 v254, s93, v253")
    for k in range(8):
        a(f"v_cmp_le_i32 s[{40+2*k}:{41+2*k}], v254, v252")
        if k<7: a("v_add_u32 v254, 1, v254")
    for r in range(3): a(f"v_mov_b32 v{Q+4*r}, v{Q+4*r+4}"); a(f"v_mov_b32 v{Q+4*r+1}, v{Q+4*r+5}"); a(f"v_mov_b32 v{Q+4*r+2}, v{Q+4*r+6}"); a(f"v_mov_b32 v{Q+4*r+3}, v{Q+4*r+7}")
    a("s_nop 3")
    a("s_cmp_ge_u32 s92, 2"); a(f"s_cbranch_scc1 {lp}_m2")
    for k in range(8):
        m=f"s[{40+2*k}:{41+2*k}]"
        a(f"v_cndmask_b32 v{S+k}, v{S+k}, v{vNEG}, {m}")
        a(f"v_cndmask_b32 v{S+64+k}, v{vNEG}, v{S+64+k}, {m}")
    a("s_mov_b32 s93, 0"); a(f"s_branch {lp}_m3")
    a.label(lp+"_m2")
    for k in range(8):
        m=f"s[{40+2*k}:{41+2*k}]"
        a(f"v_cndmask_b32 v{S+8+k}, v{S+8+k}, v{vNEG}, {m}")
        a(f"v_cndmask_b32 v{S+k}, v{vNEG}, v{S+k}, {m}")
    a("s_mov_b32 s93, 9")
    a.label(lp+"_m3")
    a(f"s_cmp_eq_u32 s90, 0"); a(f"s_cbranch_scc1 {lp}_nv")
    for sl in range(8):
        lab=a.newlabel(pfx+"inv")
        if sl==0: a("s_cmp_gt_u32 s90, s93")
        else: a(f"s_cmp_gt_u32 s90, {sl}")
        a(f"s_cbranch_scc0 {lab}")
        for k in range(8): a(f"v_mov_b32 v{S+8*sl+k}, v{vNEG}")
        a.label(lab)
    a.label(lp+"_nv")
    a(f"v_max3_f32 v{vM}, v{S}, v{S+1}, v{S+2}")
    for k in range(3,71,2): a(f"v_max3_f32 v{vM}, v{vM}, v{S+k}, v{S+k+1}")
    a(f"v_max_f32 v{vM}, v{vM}, v{S+71}")
    a(f"v_mov_b32 v{vT}, v{vM}"); a("s_nop 1"); a(f"v_permlane32_swap_b32 v{vM}, v{vT}"); a("s_nop 1"); a(f"v_max_f32 v{vM}, v{vM}, v{vT}")
    a(f"v_mov_b32 v{vT}, v{vM}"); a("s_nop 1"); a(f"v_permlane16_swap_b32 v{vM}, v{vT}"); a("s_nop 1"); a(f"v_max_f32 v{vM}, v{vM}, v{vT}")
    for sl in (1,2,3,4,5,6,7,8,0):
        b=S+8*sl
        if sl==0:
            a("s_waitcnt vmcnt(0)")
            if signal:
                a("s_cmp_eq_u32 s92, 0"); a(f"s_cbranch_scc1 {lp}_sg")
                a("s_sub_u32 s94, s92, 1")
                signal()
                a.label(lp+"_sg")
        if os.environ.get("PK","0")=="1":
            if sl==1: a(f"v_mov_b32 v254, v{vM}"); a(f"v_mov_b32 v255, v{vM}")
            for k in range(0,8,2): a(f"v_pk_add_f32 v[{b+k}:{b+k+1}], v[{b+k}:{b+k+1}], v[254:255] neg_lo:[0,1] neg_hi:[0,1]")
        else:
            for k in range(8): a(f"v_sub_f32 v{b+k}, v{b+k}, v{vM}")
        for k in range(8): a(f"v_exp_f32 v{b+k}, v{b+k}")
        a("s_nop 0")
        for k in range(4): a(f"v_cvt_pk_bf16_f32 v{b+k}, v{b+2*k}, v{b+2*k+1}")
        a("s_nop 1")
        for dt in range(2):
            c = "0" if sl==1 else f"v[{O+4*dt}:{O+4*dt+3}]"
            a(f"v_mfma_f32_16x16x32_bf16 v[{O+4*dt}:{O+4*dt+3}], v[{VF+8*sl+4*dt}:{VF+8*sl+4*dt+3}], v[{b}:{b+3}], {c}")
    a("s_cmp_lg_u32 s92, 1"); a(f"s_cbranch_scc1 {lp}_b")
    ldV(9)
    a.label(lp+"_b")
    a("s_nop 7")
    a(f"ds_bpermute_b32 v{vT}, v{vBP}, v{O+4}")
    a("s_waitcnt lgkmcnt(0)")
    a(f"v_rcp_f32 v{vT}, v{vT}"); a("s_nop 0")
    for k in range(8): a(f"v_mul_f32 v{O+k}, v{O+k}, v{vT}")
    for k in range(4): a(f"v_cvt_pk_bf16_f32 v{O+k}, v{O+2*k}, v{O+2*k+1}")
    if SENT:
        for k in range(4): a(f"v_min_u32 v{O+k}, -2, v{O+k}")
    a(f"buffer_store_dwordx2 v[{O}:{O+1}], v{vOO}, s[16:19], s91 offen {sc1}")
    a("s_mov_b64 exec, s[88:89]")
    a(f"buffer_store_dwordx2 v[{O+2}:{O+3}], v{vOO1}, s[16:19], s91 offen {sc1}")
    a("s_mov_b64 exec, -1")
    a("s_add_u32 s91, s91, 20480")
    a("s_add_u32 s92, s92, 1"); a("s_cmp_lt_u32 s92, 4")
    a(f"s_cbranch_scc1 {lp}")
    if not SENT: a("s_waitcnt vmcnt(0)")
    if signal:
        a("s_mov_b32 s94, 3")
        signal()
    a.vm=[]

def attn_srds(a, wslo, wshi):
    srd(a,8,wslo,wshi,2621440+10240,KH-10240)
    srd(a,12,wslo,wshi,2621440+10240,VT-10240)
    srd(a,16,wslo,wshi,0x2000000)

def gen_k2(a):
    a.label("k2_kernel")
    a("s_cmp_ge_u32 s2, 256"); a("s_cbranch_scc1 K2_END")
    a("s_load_dwordx2 s[30:31], s[0:1], 80")
    a(f"v_and_b32 v{vL}, 63, v0"); a("v_lshrrev_b32 v1, 6, v0"); a("s_nop 0"); a("v_readfirstlane_b32 s36, v1")
    a("s_and_b32 s34, s2, 7"); a("s_lshl_b32 s34, s34, 2"); a("s_lshr_b32 s35, s2, 6"); a("s_add_u32 s34, s34, s35"); a("s_bfe_u32 s35, s2, 0x30003"); a("s_lshl_b32 s35, s35, 2"); a("s_add_u32 s35, s35, s36")
    a("s_waitcnt lgkmcnt(0)")
    attn_srds(a,30,31)
    attn_body(a,34,35,"K2")
    a.label("K2_END")
    a("s_endpgm")
```

```python
from asmlib import *
from k1 import QH,KH,VT,VTP,HF,W2F,WOF,OF,GB
import k2,k3
ACC=0; FR=80; NS=4; G=200
vA=224; vW=225; vL=226; vX=227; vRW=228; vRR=229; vRR2=230; vFO=231; TT=232; TP=242; LCNT=102400
def gemm_part(a, nk, sA, sW, strideA_kg, tag):
    def ld(k):
        b=FR+36*(k%NS)
        a(f"s_add_u32 s61, s{sA}, s46")
        for t in range(4):
            if t: a(f"s_add_u32 s60, s61, {t*strideA_kg}")
            a.vmem(f"buffer_load_dwordx4 v[{b+4*t}:{b+4*t+3}], v{vA}, s[16:19], s{60 if t else 61} offen",f"{tag}{k}")
        a(f"s_add_u32 s60, s{sW}, s47")
        for j in range(5):
            if j==4:
                a.vmem(f"buffer_load_dwordx4 v[{b+16+4*j}:{b+16+4*j+3}], v{vW}, s[16:19], s60 offen",f"{tag}{k}")
            else:
                a.vmem(f"buffer_load_dwordx4 v[{b+16+4*j}:{b+16+4*j+3}], v{vA}, s[16:19], s60 offen offset:{1024*j}",f"{tag}{k}")
        a("s_add_u32 s46, s46, 1024"); a("s_add_u32 s47, s47, 40960")
        a("s_cmp_eq_u32 s46, 12288"); a("s_cselect_b32 s46, 0, s46"); a("s_cselect_b32 s47, 0, s47")
    return ld
def mm(a,k,first):
    b=FR+36*(k%NS)
    for t in range(4):
        for j in range(5):
            d=ACC+4*(5*t+j)
            c="0" if first else f"v[{d}:{d+3}]"
            a(f"v_mfma_f32_16x16x32_bf16 v[{d}:{d+3}], v[{b+16+4*j}:{b+16+4*j+3}], v[{b+4*t}:{b+4*t+3}], {c}")
def reduce(a, dst):
    a("s_nop 7")
    for t in range(4):
        for j in range(5):
            d=ACC+4*(5*t+j)
            a.lds(f"ds_write_b128 v{vRW}, v[{d}:{d+3}] offset:{(t*5+j)*1024}","rw")
    a.wait_lg_all(); a("s_barrier")
    for w in range(4):
        for j in range(5):
            r = dst+4*j if w==0 else ACC+20*w+4*j
            a.lds(f"ds_read_b128 v[{r}:{r+3}], v{vRR if w<2 else vRR2} offset:{(w&1)*20480+j*1024}","rr")
    a.wait_lg_all()
    for w in range(1,4):
        for k in range(20): a(f"v_add_f32 v{dst+k}, v{dst+k}, v{ACC+20*w+k}")
CNT=0x1C10000
import os
NOPOLL=int(os.environ.get('NOPOLL','1'))
EARLY=int(os.environ.get('EARLY','0'))
XE=int(os.environ.get('XE','1'))
def fsync(a,off):
    l=a.newlabel("FS"); d=a.newlabel("FSD")
    a(f"v_mov_b32 v{TP+6}, {LCNT+off}"); a(f"v_mov_b32 v{TP+7}, 1")
    a("s_mov_b64 exec, 1")
    a(f"ds_add_u32 v{TP+6}, v{TP+7}")
    a.label(l)
    a(f"ds_read_b32 v{TP+7}, v{TP+6}")
    a("s_waitcnt lgkmcnt(0)")
    a(f"v_readfirstlane_b32 s62, v{TP+7}")
    a("s_cmp_ge_u32 s62, 4"); a(f"s_cbranch_scc1 {d}")
    a("s_sleep 1"); a(f"s_branch {l}")
    a.label(d)
    a("s_mov_b64 exec, -1")
def gen_k23(a):
    a.label("k23_kernel")
    a("s_cmp_ge_u32 s2, 256"); a("s_cbranch_scc1 K23_END")
    stamp(a,0); stamp(a,10)
    a("s_load_dwordx2 s[4:5], s[0:1], 0")
    a("s_load_dwordx4 s[24:27], s[0:1], 56")
    a("s_load_dwordx4 s[28:31], s[0:1], 72")
    a("v_lshrrev_b32 v1, 6, v0"); a("s_nop 0"); a("v_readfirstlane_b32 s33, v1")
    a("s_and_b32 s36, s33, 3")
    a("s_and_b32 s34, s2, 7"); a("s_lshl_b32 s34, s34, 2"); a("s_lshr_b32 s35, s2, 6"); a("s_add_u32 s34, s34, s35"); a("s_bfe_u32 s35, s2, 0x30003")
    a(f"v_mov_b32 v1, {LCNT}"); a("v_mov_b32 v2, 0"); a("v_mov_b32 v3, 0"); a("ds_write_b64 v1, v[2:3]"); a("ds_write_b64 v1, v[2:3] offset:8"); a("ds_write_b64 v1, v[2:3] offset:16"); a("ds_write_b64 v1, v[2:3] offset:24")
    a("s_cmp_ge_u32 s33, 4"); a("s_cbranch_scc1 K23_F")
    a(f"v_and_b32 v{k2.vL}, 63, v0")
    a("s_lshl_b32 s35, s35, 2"); a("s_add_u32 s35, s35, s36")
    a("s_waitcnt lgkmcnt(0)")
    k2.attn_srds(a,30,31)
    import os
    a(f"s_setprio {os.environ.get('APRIO','3')}")
    def wo_dma(t,pmax,kg0,ldsbase,vr=vA):
        a(f"s_add_u32 s61, s36, {4*t}"); a(f"s_min_u32 s61, s61, {pmax}")
        a("s_mul_i32 s46, s61, 52429"); a("s_lshr_b32 s46, s46, 18"); a("s_mul_i32 s46, s46, 35840")
        a("s_lshl_b32 s47, s61, 10"); a("s_add_u32 s60, s46, s47"); a("s_add_u32 s60, s60, s43")
        if kg0: a(f"s_add_u32 s60, s60, {kg0*40960}")
        a(f"s_add_u32 m0, s47, {ldsbase}"); a("s_nop 0")
        a.vmem(f"buffer_load_dwordx4 v{vr}, s[16:19], s60 offen lds","WO")
    def signal():
        l=a.newlabel("SG")
        a("s_lshl_b32 s95, s94, 2"); a(f"s_add_u32 s96, s95, {LCNT+16}")
        a("v_mov_b32 v254, s96"); a("v_mov_b32 v255, 1")
        a("s_mov_b64 exec, 1")
        a("ds_add_rtn_u32 v255, v254, v255")
        a("s_waitcnt lgkmcnt(0)")
        a("v_readfirstlane_b32 s96, v255")
        a("s_cmp_lg_u32 s96, 3"); a(f"s_cbranch_scc1 {l}")
        a("s_lshl_b32 s96, s34, 8"); a("s_add_u32 s96, s96, s95"); a(f"s_add_u32 s96, s96, {CNT}")
        a("v_mov_b32 v254, s96"); a("v_mov_b32 v255, 1")
        a("global_atomic_add v254, v255, s[30:31] sc1")
        a.label(l)
        a("s_mov_b64 exec, -1")
    k2.attn_loop(a,34,35,"K2",sc1="sc1",signal=None if NOPOLL else signal)
    if EARLY==2:
        a(f"v_lshlrev_b32 v1, 4, v{k2.vL}")
        a("s_lshr_b32 s43, s35, 2"); a("s_mul_i32 s43, s43, 5120"); a(f"s_add_u32 s43, s43, {WOF}")
        for t in range(14): wo_dma(t,54,9,102656,1)
        a(f"v_mov_b32 v2, {LCNT+16}"); a("v_mov_b32 v3, 1")
        a("s_waitcnt vmcnt(0)")
        a("s_mov_b64 exec, 1")
        a("ds_add_u32 v2, v3"); a("s_waitcnt lgkmcnt(0)")
    if STAMP:
        stamp(a,1); a("s_waitcnt vmcnt(0)"); stamp(a,2); a("s_cmp_lg_u32 s36, 0"); a("s_cbranch_scc1 K23_END"); stamp_out(a,3,8,128,1)
    a("s_endpgm")
    a.label("K23_F"); a.vm=[]; a.lg=[]
    a(f"v_and_b32 v{vL}, 63, v0")
    a("s_waitcnt lgkmcnt(0)")
    srd(a,16,30,31,0x2000000); srd(a,8,4,5,2048*1280); srd(a,12,26,27,2048*1280); srd(a,20,24,25,1280)
    a(f"v_lshlrev_b32 v{vA}, 4, v{vL}"); a(f"v_add_u32 v{vW}, 4096, v{vA}")
    a("s_mul_i32 s40, s34, 200704"); a("s_mul_i32 s37, s36, 12288"); a("s_add_u32 s40, s40, s37"); a(f"s_add_u32 s40, s40, {HF}")
    a("s_mul_i32 s41, s36, 491520"); a("s_mul_i32 s37, s35, 5120"); a("s_add_u32 s41, s41, s37"); a(f"s_add_u32 s41, s41, {W2F}")
    a("s_and_b32 s46, s34, 3"); a("s_mul_i32 s46, s46, 3"); a("s_add_u32 s46, s46, s35"); a("s_lshr_b32 s47, s35, 1"); a("s_add_u32 s46, s46, s47")
    a("s_cmp_ge_u32 s46, 12"); a("s_cbranch_scc0 K23_R0"); a("s_sub_u32 s46, s46, 12"); a.label("K23_R0")
    a("s_mul_i32 s47, s46, 40960"); a("s_lshl_b32 s46, s46, 10")
    ld=gemm_part(a,12,40,41,50176,"F")
    a("s_barrier")
    import os
    if os.environ.get("NOF"): a("s_branch K23_SKIPF")
    ld(0); ld(1); ld(2)
    a("s_mul_i32 s37, s36, 20480"); a(f"v_add_u32 v{vRW}, s37, v{vA}")
    a("s_mul_i32 s37, s36, 5120"); a(f"v_add_u32 v{vRR}, s37, v{vA}"); a(f"v_add_u32 v{vRR2}, 40960, v{vRR}")
    a("s_mul_i32 s42, s34, 81920"); a("s_mul_i32 s37, s36, 20480"); a("s_add_u32 s42, s42, s37"); a(f"s_add_u32 s42, s42, {OF}")
    a("s_mov_b32 s43, 0" if EARLY else "s_mul_i32 s43, s36, 204800"); a("s_mul_i32 s37, s35, 5120"); a("s_add_u32 s43, s43, s37"); a(f"s_add_u32 s43, s43, {WOF}")
    a(f"v_and_b32 v1, 15, v{vL}"); a(f"v_lshrrev_b32 v2, 4, v{vL}")
    a("s_lshl_b32 s37, s34, 6"); a("s_lshl_b32 s38, s36, 4"); a("s_add_u32 s37, s37, s38"); a("v_add_u32 v1, s37, v1"); a("v_mul_u32_u24 v1, 1280, v1")
    a("s_mul_i32 s38, s35, 160"); a("v_lshlrev_b32 v2, 3, v2"); a("v_add_u32 v2, s38, v2"); a(f"v_add_u32 v{vX}, v1, v2")
    a(f"v_mov_b32 v{vFO}, v2")
    for k in range(4):
        ld(k+3); a.wait_vm(f"F{k}"); mm(a,k,k==0)
    a("s_mov_b32 s45, 0"); a.label("K23_FL")
    for k in range(4,8):
        if k==4:
            ld(k+3); a("s_waitcnt vmcnt(27)")
        else:
            l1=a.newlabel("FLs"); l2=a.newlabel("FLt")
            a("s_cmp_eq_u32 s45, 1"); a(f"s_cbranch_scc1 {l1}")
            ld(k+3); a("s_waitcnt vmcnt(27)"); a(f"s_branch {l2}")
            a.label(l1)
            if k==6:
                for j in range(5): a(f"buffer_load_dwordx2 v[{TT+2*j}:{TT+2*j+1}], v{vFO}, s[20:23], 0 offen offset:{32*j}")
            a(f"s_waitcnt vmcnt({ {5:18,6:14,7:5}[k] })")
            a.label(l2)
        mm(a,k,False)
    a("s_add_u32 s45, s45, 1"); a("s_cmp_lt_u32 s45, 2"); a("s_cbranch_scc1 K23_FL")
    a.vm=["b2"]*5
    a.label("K23_SKIPF")
    XR=[220,222,250,252,254] if XE else [TT+2*j for j in range(5)]
    if XE:
        for j in range(5): a.vmem(f"buffer_load_dwordx2 v[{XR[j]}:{XR[j]+1}], v{vX}, s[8:11], 0 offen offset:{32*j}","xr")
    if EARLY==1:
        for t in range(14): wo_dma(t,54,9,102656)
    stamp(a,1)
    a("s_nop 7")
    for t in range(4):
        for j in range(5):
            d=ACC+4*(5*t+j)
            a.lds(f"ds_write_b128 v{vRW}, v[{d}:{d+3}] offset:{(t*5+j)*1024}","rw")
    a.wait_lg_all(); fsync(a,4)
    stamp(a,2)
    for w in range(4):
        for j in range(5):
            r = G+4*j if w==0 else ACC+20*w+4*j
            a.lds(f"ds_read_b128 v[{r}:{r+3}], v{vRR if w<2 else vRR2} offset:{(w&1)*20480+j*1024}","rr")
    a.wait_lg_all()
    fsync(a,8)
    if EARLY:
        for t in range(12): wo_dma(t,44,0,0)
    else:
        a("s_mul_i32 s47, s36, 25600")
        for kk in range(5):
            a(f"s_add_u32 s60, s43, {kk*40960}")
            for j in range(5):
                a(f"s_add_u32 m0, s47, {kk*5120+j*1024}")
                if j: a("s_add_u32 s60, s60, 1024")
                else: a("s_nop 0")
                a.vmem(f"buffer_load_dwordx4 v{vA}, s[16:19], s60 offen lds","WO")
    for w in range(1,4):
        for k in range(20): a(f"v_add_f32 v{G+k}, v{G+k}, v{ACC+20*w+k}")
    a.wait_vm("b2")
    a("s_mov_b32 s44, 0xbfb8aa3b")
    for j in range(5):
        for h in range(2):
            a(f"v_lshlrev_b32 v{TP}, 16, v{TT+2*j+h}"); a(f"v_and_b32 v{TP+1}, 0xffff0000, v{TT+2*j+h}")
            for e in range(2):
                r=G+4*j+2*h+e
                a(f"v_add_f32 v{r}, v{r}, v{TP+e}")
                a(f"v_mul_f32 v{TP+2+e}, s44, v{r}"); a(f"v_exp_f32 v{TP+2+e}, v{TP+2+e}"); a("s_nop 0")
                a(f"v_add_f32 v{TP+2+e}, 1.0, v{TP+2+e}"); a(f"v_rcp_f32 v{TP+2+e}, v{TP+2+e}"); a("s_nop 0")
                a(f"v_mul_f32 v{r}, v{r}, v{TP+2+e}")
    if not XE:
        for j in range(5): a.vmem(f"buffer_load_dwordx2 v[{XR[j]}:{XR[j]+1}], v{vX}, s[8:11], 0 offen offset:{32*j}","xr")
    a(f"v_add_u32 v{vW}, {102656 if EARLY else 51200}, v{vA}")
    a.wait_vm_all()
    fsync(a,12)
    if EARLY==2:
        a(f"v_mov_b32 v{TP+6}, {LCNT+16}")
        a.label("K23_WA")
        a(f"ds_read_b32 v{TP+7}, v{TP+6}"); a("s_waitcnt lgkmcnt(0)"); a(f"v_readfirstlane_b32 s62, v{TP+7}")
        a("s_cmp_ge_u32 s62, 4"); a("s_cbranch_scc1 K23_WAD"); a("s_sleep 1"); a("s_branch K23_WA")
        a.label("K23_WAD")
    if not NOPOLL:
        a("s_lshl_b32 s37, s34, 8"); a("s_lshl_b32 s38, s36, 2"); a("s_add_u32 s37, s37, s38"); a(f"s_add_u32 s37, s37, {CNT}")
        a(f"v_mov_b32 v{TP+6}, s37")
        a.label("K23_POLL")
        a(f"global_load_dword v{TP+7}, v{TP+6}, s[30:31] sc1")
        a("s_waitcnt vmcnt(0)")
        a(f"v_readfirstlane_b32 s38, v{TP+7}")
        a("s_cmp_ge_u32 s38, 8"); a("s_cbranch_scc1 K23_PD")
        a("s_sleep 4"); a("s_branch K23_POLL")
    a.label("K23_PD")
    stamp(a,3)
    OFR=80; WR_=160; NR=10
    if k2.SENT: a(f"v_mov_b32 v{TP+5}, 0")
    for kg in range(20):
        a(f"s_add_u32 s60, s42, {kg*1024}")
        a.vmem(f"buffer_load_dwordx4 v[{OFR+4*kg}:{OFR+4*kg+3}], v{vA}, s[16:19], s60 offen sc1",f"O{kg}")
    def rdw(i):
        kg,j=divmod(i,5); off=kg*5120+j*1024
        b=WR_+4*(i%NR); TH=46080 if EARLY else 51200
        a.lds(f"ds_read_b128 v[{b}:{b+3}], v{vA if off<TH else vW} offset:{off if off<TH else off-TH}",f"w{i}")
    for i in range(NR-2): rdw(i)
    for i in range(100):
        kg,j=divmod(i,5)
        if j==0: a.wait_vm(f"O{kg}")
        a.wait_lg(f"w{i}")
        d=4*j; b=WR_+4*(i%NR)
        c="0" if kg==0 else f"v[{d}:{d+3}]"
        a(f"v_mfma_f32_16x16x32_bf16 v[{d}:{d+3}], v[{b}:{b+3}], v[{OFR+4*kg}:{OFR+4*kg+3}], {c}")
        if i+NR-2<100: rdw(i+NR-2)
        if k2.SENT and j in (1,2):
            q=OFR+4*kg+2*(j-1)
            a(f"v_max3_u32 v{TP+5}, v{TP+5}, v{q}, v{q+1}")
    if k2.SENT:
        a(f"v_cmp_eq_u32 vcc, -1, v{TP+5}")
        a("s_cbranch_vccz K23_OK")
        a("s_sleep 1"); a("s_branch K23_PD")
        a.label("K23_OK")
    stamp(a,4)
    a("s_nop 7")
    T2=TP
    for j in range(5):
        for h in range(2):
            a(f"v_lshlrev_b32 v{T2}, 16, v{XR[j]+h}"); a(f"v_and_b32 v{T2+1}, 0xffff0000, v{XR[j]+h}")
            for e in range(2):
                a(f"v_fma_f32 v{T2+e}, v{4*j+2*h+e}, v{G+4*j+2*h+e}, v{T2+e}")
            a(f"v_cvt_pk_bf16_f32 v{T2+4+h}, v{T2}, v{T2+1}")
        a(f"buffer_store_dwordx2 v[{T2+4}:{T2+5}], v{vX}, s[12:15], 0 offen offset:{32*j}")
        a("s_nop 1")
    if STAMP:
        a("s_waitcnt vmcnt(0)"); stamp(a,5); a("s_cmp_lg_u32 s36, 3"); a("s_cbranch_scc1 K23_END"); stamp_out(a,6,8,144,1)
    a.label("K23_END")
    a("s_endpgm")
```

```python
from asmlib import *
from k1 import QH,KH,VT,VTP,HF,W2F,WOF,OF,GB
import k2,k3
ACC=0; FR=80; NS=4; G=200
vA=224; vW=225; vL=226; vX=227; vRW=228; vRR=229; vRR2=230; vFO=231; TT=232; TP=242; LCNT=102400
def gemm_part(a, nk, sA, sW, strideA_kg, tag):
    def ld(k):
        b=FR+36*(k%NS)
        a(f"s_add_u32 s61, s{sA}, s46")
        for t in range(4):
            if t: a(f"s_add_u32 s60, s61, {t*strideA_kg}")
            a.vmem(f"buffer_load_dwordx4 v[{b+4*t}:{b+4*t+3}], v{vA}, s[16:19], s{60 if t else 61} offen",f"{tag}{k}")
        a(f"s_add_u32 s60, s{sW}, s47")
        for j in range(5):
            if j==4:
                a.vmem(f"buffer_load_dwordx4 v[{b+16+4*j}:{b+16+4*j+3}], v{vW}, s[16:19], s60 offen",f"{tag}{k}")
            else:
                a.vmem(f"buffer_load_dwordx4 v[{b+16+4*j}:{b+16+4*j+3}], v{vA}, s[16:19], s60 offen offset:{1024*j}",f"{tag}{k}")
        a("s_add_u32 s46, s46, 1024"); a("s_add_u32 s47, s47, 40960")
        a("s_cmp_eq_u32 s46, 12288"); a("s_cselect_b32 s46, 0, s46"); a("s_cselect_b32 s47, 0, s47")
    return ld
def mm(a,k,first):
    b=FR+36*(k%NS)
    for t in range(4):
        for j in range(5):
            d=ACC+4*(5*t+j)
            c="0" if first else f"v[{d}:{d+3}]"
            a(f"v_mfma_f32_16x16x32_bf16 v[{d}:{d+3}], v[{b+16+4*j}:{b+16+4*j+3}], v[{b+4*t}:{b+4*t+3}], {c}")
def reduce(a, dst):
    a("s_nop 7")
    for t in range(4):
        for j in range(5):
            d=ACC+4*(5*t+j)
            a.lds(f"ds_write_b128 v{vRW}, v[{d}:{d+3}] offset:{(t*5+j)*1024}","rw")
    a.wait_lg_all(); a("s_barrier")
    for w in range(4):
        for j in range(5):
            r = dst+4*j if w==0 else ACC+20*w+4*j
            a.lds(f"ds_read_b128 v[{r}:{r+3}], v{vRR if w<2 else vRR2} offset:{(w&1)*20480+j*1024}","rr")
    a.wait_lg_all()
    for w in range(1,4):
        for k in range(20): a(f"v_add_f32 v{dst+k}, v{dst+k}, v{ACC+20*w+k}")
CNT=0x1C10000
import os
NOPOLL=int(os.environ.get('NOPOLL','1'))
EARLY=int(os.environ.get('EARLY','0'))
XE=int(os.environ.get('XE','1'))
OE=int(os.environ.get('OE','0'))
def fsync(a,off):
    l=a.newlabel("FS"); d=a.newlabel("FSD")
    a(f"v_mov_b32 v{TP+6}, {LCNT+off}"); a(f"v_mov_b32 v{TP+7}, 1")
    a("s_mov_b64 exec, 1")
    a(f"ds_add_u32 v{TP+6}, v{TP+7}")
    a.label(l)
    a(f"ds_read_b32 v{TP+7}, v{TP+6}")
    a("s_waitcnt lgkmcnt(0)")
    a(f"v_readfirstlane_b32 s62, v{TP+7}")
    a("s_cmp_ge_u32 s62, 4"); a(f"s_cbranch_scc1 {d}")
    a("s_sleep 1"); a(f"s_branch {l}")
    a.label(d)
    a("s_mov_b64 exec, -1")
def gen_k23(a):
    a.label("k23_kernel")
    a("s_cmp_ge_u32 s2, 256"); a("s_cbranch_scc1 K23_END")
    stamp(a,0); stamp(a,10)
    a("s_load_dwordx2 s[4:5], s[0:1], 0")
    a("s_load_dwordx4 s[24:27], s[0:1], 56")
    a("s_load_dwordx4 s[28:31], s[0:1], 72")
    a("v_lshrrev_b32 v1, 6, v0"); a("s_nop 0"); a("v_readfirstlane_b32 s33, v1")
    a("s_and_b32 s36, s33, 3")
    a("s_and_b32 s34, s2, 7"); a("s_lshl_b32 s34, s34, 2"); a("s_lshr_b32 s35, s2, 6"); a("s_add_u32 s34, s34, s35"); a("s_bfe_u32 s35, s2, 0x30003")
    a(f"v_mov_b32 v1, {LCNT}"); a("v_mov_b32 v2, 0"); a("v_mov_b32 v3, 0"); a("ds_write_b64 v1, v[2:3]"); a("ds_write_b64 v1, v[2:3] offset:8"); a("ds_write_b64 v1, v[2:3] offset:16"); a("ds_write_b64 v1, v[2:3] offset:24")
    a("s_cmp_ge_u32 s33, 4"); a("s_cbranch_scc1 K23_F")
    a(f"v_and_b32 v{k2.vL}, 63, v0")
    a("s_lshl_b32 s35, s35, 2"); a("s_add_u32 s35, s35, s36")
    a("s_waitcnt lgkmcnt(0)")
    k2.attn_srds(a,30,31)
    import os
    a(f"s_setprio {os.environ.get('APRIO','3')}")
    def wo_dma(t,pmax,kg0,ldsbase,vr=vA):
        a(f"s_add_u32 s61, s36, {4*t}"); a(f"s_min_u32 s61, s61, {pmax}")
        a("s_mul_i32 s46, s61, 52429"); a("s_lshr_b32 s46, s46, 18"); a("s_mul_i32 s46, s46, 35840")
        a("s_lshl_b32 s47, s61, 10"); a("s_add_u32 s60, s46, s47"); a("s_add_u32 s60, s60, s43")
        if kg0: a(f"s_add_u32 s60, s60, {kg0*40960}")
        a(f"s_add_u32 m0, s47, {ldsbase}"); a("s_nop 0")
        a.vmem(f"buffer_load_dwordx4 v{vr}, s[16:19], s60 offen lds","WO")
    def signal():
        l=a.newlabel("SG")
        a("s_lshl_b32 s95, s94, 2"); a(f"s_add_u32 s96, s95, {LCNT+16}")
        a("v_mov_b32 v254, s96"); a("v_mov_b32 v255, 1")
        a("s_mov_b64 exec, 1")
        a("ds_add_rtn_u32 v255, v254, v255")
        a("s_waitcnt lgkmcnt(0)")
        a("v_readfirstlane_b32 s96, v255")
        a("s_cmp_lg_u32 s96, 3"); a(f"s_cbranch_scc1 {l}")
        a("s_lshl_b32 s96, s34, 8"); a("s_add_u32 s96, s96, s95"); a(f"s_add_u32 s96, s96, {CNT}")
        a("v_mov_b32 v254, s96"); a("v_mov_b32 v255, 1")
        a("global_atomic_add v254, v255, s[30:31] sc1")
        a.label(l)
        a("s_mov_b64 exec, -1")
    k2.attn_loop(a,34,35,"K2",sc1="sc1",signal=None if NOPOLL else signal)
    if EARLY==2:
        a(f"v_lshlrev_b32 v1, 4, v{k2.vL}")
        a("s_lshr_b32 s43, s35, 2"); a("s_mul_i32 s43, s43, 5120"); a(f"s_add_u32 s43, s43, {WOF}")
        for t in range(14): wo_dma(t,54,9,102656,1)
        a(f"v_mov_b32 v2, {LCNT+16}"); a("v_mov_b32 v3, 1")
        a("s_waitcnt vmcnt(0)")
        a("s_mov_b64 exec, 1")
        a("ds_add_u32 v2, v3"); a("s_waitcnt lgkmcnt(0)")
    if STAMP:
        stamp(a,1); a("s_waitcnt vmcnt(0)"); stamp(a,2); a("s_cmp_lg_u32 s36, 0"); a("s_cbranch_scc1 K23_END"); stamp_out(a,3,8,128,1)
    a("s_endpgm")
    a.label("K23_F"); a.vm=[]; a.lg=[]
    a(f"v_and_b32 v{vL}, 63, v0")
    a("s_waitcnt lgkmcnt(0)")
    srd(a,16,30,31,0x2000000); srd(a,8,4,5,2048*1280); srd(a,12,26,27,2048*1280); srd(a,20,24,25,1280)
    a(f"v_lshlrev_b32 v{vA}, 4, v{vL}"); a(f"v_add_u32 v{vW}, 4096, v{vA}")
    a("s_mul_i32 s40, s34, 200704"); a("s_mul_i32 s37, s36, 12288"); a("s_add_u32 s40, s40, s37"); a(f"s_add_u32 s40, s40, {HF}")
    a("s_mul_i32 s41, s36, 491520"); a("s_mul_i32 s37, s35, 5120"); a("s_add_u32 s41, s41, s37"); a(f"s_add_u32 s41, s41, {W2F}")
    a("s_and_b32 s46, s34, 3"); a("s_mul_i32 s46, s46, 3"); a("s_add_u32 s46, s46, s35"); a("s_lshr_b32 s47, s35, 1"); a("s_add_u32 s46, s46, s47")
    a("s_cmp_ge_u32 s46, 12"); a("s_cbranch_scc0 K23_R0"); a("s_sub_u32 s46, s46, 12"); a.label("K23_R0")
    a("s_mul_i32 s47, s46, 40960"); a("s_lshl_b32 s46, s46, 10")
    ld=gemm_part(a,12,40,41,50176,"F")
    a("s_barrier")
    import os
    if os.environ.get("NOF"): a("s_branch K23_SKIPF")
    ld(0); ld(1); ld(2)
    a("s_mul_i32 s37, s36, 20480"); a(f"v_add_u32 v{vRW}, s37, v{vA}")
    a("s_mul_i32 s37, s36, 5120"); a(f"v_add_u32 v{vRR}, s37, v{vA}"); a(f"v_add_u32 v{vRR2}, 40960, v{vRR}")
    a("s_mul_i32 s42, s34, 81920"); a("s_mul_i32 s37, s36, 20480"); a("s_add_u32 s42, s42, s37"); a(f"s_add_u32 s42, s42, {OF}")
    a("s_mov_b32 s43, 0" if EARLY else "s_mul_i32 s43, s36, 204800"); a("s_mul_i32 s37, s35, 5120"); a("s_add_u32 s43, s43, s37"); a(f"s_add_u32 s43, s43, {WOF}")
    a(f"v_and_b32 v1, 15, v{vL}"); a(f"v_lshrrev_b32 v2, 4, v{vL}")
    a("s_lshl_b32 s37, s34, 6"); a("s_lshl_b32 s38, s36, 4"); a("s_add_u32 s37, s37, s38"); a("v_add_u32 v1, s37, v1"); a("v_mul_u32_u24 v1, 1280, v1")
    a("s_mul_i32 s38, s35, 160"); a("v_lshlrev_b32 v2, 3, v2"); a("v_add_u32 v2, s38, v2"); a(f"v_add_u32 v{vX}, v1, v2")
    a(f"v_mov_b32 v{vFO}, v2")
    for k in range(4):
        ld(k+3); a.wait_vm(f"F{k}"); mm(a,k,k==0)
    a("s_mov_b32 s45, 0"); a.label("K23_FL")
    for k in range(4,8):
        if k==4:
            ld(k+3); a("s_waitcnt vmcnt(27)")
        else:
            l1=a.newlabel("FLs"); l2=a.newlabel("FLt")
            a("s_cmp_eq_u32 s45, 1"); a(f"s_cbranch_scc1 {l1}")
            ld(k+3); a("s_waitcnt vmcnt(27)"); a(f"s_branch {l2}")
            a.label(l1)
            if k==6:
                for j in range(5): a(f"buffer_load_dwordx2 v[{TT+2*j}:{TT+2*j+1}], v{vFO}, s[20:23], 0 offen offset:{32*j}")
            a(f"s_waitcnt vmcnt({ {5:18,6:14,7:5}[k] })")
            a.label(l2)
        mm(a,k,False)
    a("s_add_u32 s45, s45, 1"); a("s_cmp_lt_u32 s45, 2"); a("s_cbranch_scc1 K23_FL")
    a.vm=["b2"]*5
    a.label("K23_SKIPF")
    XR=[220,222,250,252,254] if XE else [TT+2*j for j in range(5)]
    if XE:
        for j in range(5): a.vmem(f"buffer_load_dwordx2 v[{XR[j]}:{XR[j]+1}], v{vX}, s[8:11], 0 offen offset:{32*j}","xr")
    if OE:
        for kg in range(20):
            a(f"s_add_u32 s60, s42, {kg*1024}")
            a.vmem(f"buffer_load_dwordx4 v[{80+4*kg}:{80+4*kg+3}], v{vA}, s[16:19], s60 offen sc1",f"E{kg}")
    if EARLY==1:
        for t in range(14): wo_dma(t,54,9,102656)
    stamp(a,1)
    a("s_nop 7")
    for t in range(4):
        for j in range(5):
            d=ACC+4*(5*t+j)
            a.lds(f"ds_write_b128 v{vRW}, v[{d}:{d+3}] offset:{(t*5+j)*1024}","rw")
    a.wait_lg_all(); fsync(a,4)
    stamp(a,2)
    for w in range(4):
        for j in range(5):
            r = G+4*j if w==0 else ACC+20*w+4*j
            a.lds(f"ds_read_b128 v[{r}:{r+3}], v{vRR if w<2 else vRR2} offset:{(w&1)*20480+j*1024}","rr")
    a.wait_lg_all()
    fsync(a,8)
    if EARLY:
        for t in range(12): wo_dma(t,44,0,0)
    else:
        a("s_mul_i32 s47, s36, 25600")
        for kk in range(5):
            a(f"s_add_u32 s60, s43, {kk*40960}")
            for j in range(5):
                a(f"s_add_u32 m0, s47, {kk*5120+j*1024}")
                if j: a("s_add_u32 s60, s60, 1024")
                else: a("s_nop 0")
                a.vmem(f"buffer_load_dwordx4 v{vA}, s[16:19], s60 offen lds","WO")
    for w in range(1,4):
        for k in range(20): a(f"v_add_f32 v{G+k}, v{G+k}, v{ACC+20*w+k}")
    a.wait_vm("b2")
    a("s_mov_b32 s44, 0xbfb8aa3b")
    for j in range(5):
        for h in range(2):
            a(f"v_lshlrev_b32 v{TP}, 16, v{TT+2*j+h}"); a(f"v_and_b32 v{TP+1}, 0xffff0000, v{TT+2*j+h}")
            for e in range(2):
                r=G+4*j+2*h+e
                a(f"v_add_f32 v{r}, v{r}, v{TP+e}")
                a(f"v_mul_f32 v{TP+2+e}, s44, v{r}"); a(f"v_exp_f32 v{TP+2+e}, v{TP+2+e}"); a("s_nop 0")
                a(f"v_add_f32 v{TP+2+e}, 1.0, v{TP+2+e}"); a(f"v_rcp_f32 v{TP+2+e}, v{TP+2+e}"); a("s_nop 0")
                a(f"v_mul_f32 v{r}, v{r}, v{TP+2+e}")
    if not XE:
        for j in range(5): a.vmem(f"buffer_load_dwordx2 v[{XR[j]}:{XR[j]+1}], v{vX}, s[8:11], 0 offen offset:{32*j}","xr")
    a(f"v_add_u32 v{vW}, {102656 if EARLY else 51200}, v{vA}")
    a.wait_vm_all()
    fsync(a,12)
    if EARLY==2:
        a(f"v_mov_b32 v{TP+6}, {LCNT+16}")
        a.label("K23_WA")
        a(f"ds_read_b32 v{TP+7}, v{TP+6}"); a("s_waitcnt lgkmcnt(0)"); a(f"v_readfirstlane_b32 s62, v{TP+7}")
        a("s_cmp_ge_u32 s62, 4"); a("s_cbranch_scc1 K23_WAD"); a("s_sleep 1"); a("s_branch K23_WA")
        a.label("K23_WAD")
    if not NOPOLL:
        a("s_lshl_b32 s37, s34, 8"); a("s_lshl_b32 s38, s36, 2"); a("s_add_u32 s37, s37, s38"); a(f"s_add_u32 s37, s37, {CNT}")
        a(f"v_mov_b32 v{TP+6}, s37")
        a.label("K23_POLL")
        a(f"global_load_dword v{TP+7}, v{TP+6}, s[30:31] sc1")
        a("s_waitcnt vmcnt(0)")
        a(f"v_readfirstlane_b32 s38, v{TP+7}")
        a("s_cmp_ge_u32 s38, 8"); a("s_cbranch_scc1 K23_PD")
        a("s_sleep 4"); a("s_branch K23_POLL")
    if OE: a("s_branch K23_GO")
    a.label("K23_PD")
    stamp(a,3)
    OFR=80; WR_=160; NR=10
    for kg in range(20):
        a(f"s_add_u32 s60, s42, {kg*1024}")
        a.vmem(f"buffer_load_dwordx4 v[{OFR+4*kg}:{OFR+4*kg+3}], v{vA}, s[16:19], s60 offen sc1",f"O{kg}")
    a.label("K23_GO")
    if k2.SENT: a(f"v_mov_b32 v{TP+5}, 0")
    def rdw(i):
        kg,j=divmod(i,5); off=kg*5120+j*1024
        b=WR_+4*(i%NR); TH=46080 if EARLY else 51200
        a.lds(f"ds_read_b128 v[{b}:{b+3}], v{vA if off<TH else vW} offset:{off if off<TH else off-TH}",f"w{i}")
    for i in range(NR-2): rdw(i)
    for i in range(100):
        kg,j=divmod(i,5)
        if j==0: a.wait_vm(f"O{kg}")
        a.wait_lg(f"w{i}")
        d=4*j; b=WR_+4*(i%NR)
        c="0" if kg==0 else f"v[{d}:{d+3}]"
        a(f"v_mfma_f32_16x16x32_bf16 v[{d}:{d+3}], v[{b}:{b+3}], v[{OFR+4*kg}:{OFR+4*kg+3}], {c}")
        if i+NR-2<100: rdw(i+NR-2)
        if k2.SENT and j in (1,2):
            q=OFR+4*kg+2*(j-1)
            a(f"v_max3_u32 v{TP+5}, v{TP+5}, v{q}, v{q+1}")
    if k2.SENT:
        a(f"v_cmp_eq_u32 vcc, -1, v{TP+5}")
        a("s_cbranch_vccz K23_OK")
        a("s_sleep 1"); a("s_branch K23_PD")
        a.label("K23_OK")
    stamp(a,4)
    a("s_nop 7")
    T2=TP
    for j in range(5):
        for h in range(2):
            a(f"v_lshlrev_b32 v{T2}, 16, v{XR[j]+h}"); a(f"v_and_b32 v{T2+1}, 0xffff0000, v{XR[j]+h}")
            for e in range(2):
                a(f"v_fma_f32 v{T2+e}, v{4*j+2*h+e}, v{G+4*j+2*h+e}, v{T2+e}")
            a(f"v_cvt_pk_bf16_f32 v{T2+4+h}, v{T2}, v{T2+1}")
        a(f"buffer_store_dwordx2 v[{T2+4}:{T2+5}], v{vX}, s[12:15], 0 offen offset:{32*j}")
        a("s_nop 1")
    if STAMP:
        a("s_waitcnt vmcnt(0)"); stamp(a,5); a("s_cmp_lg_u32 s36, 3"); a("s_cbranch_scc1 K23_END"); stamp_out(a,6,8,144,1)
    a.label("K23_END")
    a("s_endpgm")
```
